```python
import torch

def _softmax(x, axis=-1):
    return torch.softmax(x, dim=axis)
def _gelu(x):
    return torch.nn.functional.gelu(x, approximate="tanh")
def _silu(x):
    return torch.nn.functional.silu(x)
def _sigmoid(x):
    return torch.sigmoid(x)
def _layernorm(x, axis=-1, eps=1e-5):
    m = x.mean(dim=axis, keepdim=True)
    v = x.var(dim=axis, keepdim=True, unbiased=False)
    return (x - m) / torch.sqrt(v + eps)
def _scatter_add(tgt, idx, src, axis=0):
    return tgt.clone().index_add_(axis, idx, src)
def _segment_sum(src, seg, n):
    out = torch.zeros((n,) + src.shape[1:], dtype=src.dtype)
    return out.index_add_(0, seg, src)
def _pad(x, pw):
    flat = tuple(v for pair in reversed(pw) for v in pair)
    return torch.nn.functional.pad(x, flat)

kernel_name = 'standalone__batchnorm__sampling'

def setup_inputs():

    _w = (lambda a: (lambda t: t.to(torch.bfloat16) if t.is_floating_point() else t)(torch.as_tensor(a)))
    B, S, C = 1024, 4, 576
    K = 3
    return {
        "x": _w((lambda *s: torch.randn(*s, dtype=torch.bfloat16) * 0.05)(B, S, C)),
        "w": _w((lambda *s: torch.randn(*s, dtype=torch.bfloat16) * 0.05)(K, C, C) * (1.0 / (K * C) ** 0.5)),
        "mean": _w((lambda *s: torch.randn(*s, dtype=torch.bfloat16) * 0.05)(C) * 0.1),
        "var": _w(torch.abs((lambda *s: torch.randn(*s, dtype=torch.bfloat16) * 0.05)(C)) + 0.5),
        "g": _w((lambda *s: torch.randn(*s, dtype=torch.bfloat16) * 0.05)(C) + 1.0),
        "b": _w((lambda *s: torch.randn(*s, dtype=torch.bfloat16) * 0.05)(C) * 0.1),
    }

def reference(x, w, mean, var, g, b):
    K = 3
    P = K // 2
    S = x.shape[1]
    xp = _pad(x, ((0, 0), (P, P), (0, 0)))
    y = sum(torch.einsum('bsc,cd->bsd', xp[:, k:k + S, :], w[k]) for k in range(K))
    inv_std = 1.0 / torch.sqrt(var + 1e-5)
    y = (y - mean) * (g * inv_std) + b
    return _silu(y)
```

```python
import sys

STAMP = '--stamp' in sys.argv
out = []
def e(s=''):
    out.append('    ' + s if s and not s.endswith(':') else s)

HEADER = open('standalone__batchnorm__sampling.s.ref').read().split('; Override launch')[0]

NWG = 234
WSLOT = 24576
NWS = 3
XBASE = WSLOT * NWS
XSLOT = 20480 + 256
NXS = 4
LDS_BYTES = XBASE + XSLOT * NXS
X_BYTES = 1024*4*576*2
W_BYTES = 3*576*576*2
TAP = 576*576*2
ROW = 1152

for t in range(NWG):
    assert (t*57) >> 9 == t // 9

sX, sW, sOut = 20, 24, 28
sWave, sBt, sCt, sB0 = 32, 33, 34, 35
sT0, sT1, sT2, sT3 = 36, 37, 38, 39
sXl, sXm, sWl, sK = 40, 41, 42, 43
sIt, sDX, sDW = 44, 45, 46
sXi, sWi = 47, 48
sStamp = 52

e('s_load_dwordx4 s[4:7], s[0:1], 0')
e('s_load_dwordx8 s[8:15], s[0:1], 16')
e('s_load_dwordx4 s[16:19], s[0:1], 48')
if STAMP:
    e('s_load_dwordx2 s[50:51], s[0:1], 64')
    e('s_memtime s[52:53]')
e(f's_cmp_ge_u32 s2, {NWG}')
e('s_cbranch_scc1 L_end')
e('v_readfirstlane_b32 s3, v0')
e(f's_and_b32 s{sT0}, s2, 7')
e(f's_lshr_b32 s{sT1}, s2, 3')
e(f's_mul_i32 s{sT2}, s{sT0}, 29')
e(f's_min_u32 s{sT0}, s{sT0}, 2')
e(f's_add_u32 s{sT1}, s{sT1}, s{sT2}')
e(f's_add_u32 s{sT1}, s{sT1}, s{sT0}')
e(f's_mul_i32 s{sBt}, s{sT1}, 57')
e(f's_lshr_b32 s{sBt}, s{sBt}, 9')
e(f's_mul_i32 s{sT0}, s{sBt}, 9')
e(f's_sub_u32 s{sCt}, s{sT1}, s{sT0}')
e(f's_mul_i32 s{sB0}, s{sBt}, 40')
e(f's_lshr_b32 s{sWave}, s3, 6')
e('v_and_b32 v1, 63, v0')
e(f's_mov_b32 s{sX+2}, {X_BYTES}')
e(f's_mov_b32 s{sX+3}, 0x20000')
e(f's_mov_b32 s{sW+2}, {W_BYTES}')
e(f's_mov_b32 s{sW+3}, 0x20000')
e(f's_mov_b32 s{sOut+2}, {X_BYTES}')
e(f's_mov_b32 s{sOut+3}, 0x20000')
e(f's_cmp_ge_u32 s{sWave}, 4')
e('s_cbranch_scc1 L_consumer')

vX = [10, 11, 12, 13, 14]
vW = [15, 16, 17]
e('v_lshrrev_b32 v2, 3, v1')
e('v_and_b32 v3, 7, v1')
e('v_lshrrev_b32 v4, 4, v1')
e('v_xor_b32 v5, v3, v4')
e('v_lshlrev_b32 v5, 4, v5')
e('v_mul_u32_u24 v6, 4608, v2')
e('v_add_u32 v6, v6, v5')
e('v_xor_b32 v7, 64, v6')
e(f's_mul_i32 s{sT0}, s{sB0}, 4608')
e(f's_mul_i32 s{sT1}, s{sWave}, 1152')
e(f's_add_u32 s{sT1}, s{sT1}, s{sT0}')
e(f'v_add_u32 v{vX[0]}, s{sT1}, v6')
e(f's_add_u32 s{sT2}, s{sT1}, {8*4608}')
e(f'v_add_u32 v{vX[1]}, s{sT2}, v7')
e(f's_add_u32 s{sT2}, s{sT1}, {20*4608}')
e(f'v_add_u32 v{vX[2]}, s{sT2}, v6')
e(f's_add_u32 s{sT2}, s{sT1}, {28*4608}')
e(f'v_add_u32 v{vX[3]}, s{sT2}, v7')
e(f's_lshr_b32 s{sT1}, s{sWave}, 1')
e(f's_and_b32 s{sT2}, s{sWave}, 1')
e(f's_mul_i32 s{sT3}, s{sT1}, {20*4608}')
e(f's_add_u32 s{sT0}, s{sT0}, s{sT3}')
e(f's_mul_i32 s{sT3}, s{sT2}, {8*1152}')
e(f's_add_u32 s{sT0}, s{sT0}, s{sT3}')
e(f's_add_u32 s{sT0}, s{sT0}, {16*4608}')
e('v_mul_u32_u24 v8, 1152, v2')
e(f's_lshl_b32 s{sT3}, s{sT2}, 6')
e(f'v_xor_b32 v9, s{sT3}, v5')
e('v_add_u32 v9, v9, v8')
e(f'v_add_u32 v{vX[4]}, s{sT0}, v9')
e(f's_lshl_b32 s{sXl}, s{sWave}, 11')
e(f's_mul_i32 s{sXm}, s{sT1}, {80*128}')
e(f's_lshl_b32 s{sT3}, s{sT2}, 10')
e(f's_add_u32 s{sXm}, s{sXm}, s{sT3}')
e(f's_lshl_b32 s{sWl}, s{sWave}, 10')
e('v_and_b32 v9, 1, v4')
e('v_lshlrev_b32 v9, 1, v9')
e(f's_lshl_b32 s{sT3}, s{sT2}, 2')
e(f'v_or_b32 v9, s{sT3}, v9')
e('v_xor_b32 v9, v9, v3')
e('v_lshlrev_b32 v9, 4, v9')
e('v_add_u32 v9, v9, v8')
e(f's_mul_i32 s{sT0}, s{sWave}, {8*1152}')
e(f's_lshl_b32 s{sT1}, s{sCt}, 7')
e(f's_add_u32 s{sT0}, s{sT0}, s{sT1}')
e(f'v_add_u32 v{vW[0]}, s{sT0}, v9')
e(f'v_add_u32 v{vW[1]}, {TAP}, v{vW[0]}')
e(f'v_add_u32 v{vW[2]}, {2*TAP}, v{vW[0]}')
e('s_waitcnt lgkmcnt(0)')
e(f's_mov_b32 s{sX}, s4')
e(f's_mov_b32 s{sX+1}, s5')
e(f's_mov_b32 s{sW}, s6')
e(f's_mov_b32 s{sW+1}, s7')

def load_x(st):
    slot = XBASE + (st % NXS) * XSLOT
    off = st * 128
    dests = [(sXl, 0), (sXl, 8*128), (sXl, 80*128), (sXl, 88*128), (sXm, 64*128)]
    for i, (sr, c) in enumerate(dests):
        e(f's_add_u32 m0, s{sr}, {slot + c - off}')
        e('s_nop 0')
        e(f'buffer_load_dwordx4 v{vX[i]}, s[{sX}:{sX+3}], 0 offen offset:{off} lds')
def load_w(st):
    slot = (st % NWS) * WSLOT
    for ks in range(2):
        e(f's_mov_b32 s{sK}, {(st*2+ks)*32*ROW}')
        for tap in range(3):
            e(f's_add_u32 m0, s{sWl}, {slot + (ks*3+tap)*4096}')
            e('s_nop 0')
            e(f'buffer_load_dwordx4 v{vW[tap]}, s[{sW}:{sW+3}], s{sK} offen lds')

issued = []
def ix(st):
    load_x(st); issued.extend([('x', st)]*5)
def iw(st):
    load_w(st); issued.extend([('w', st)]*6)
ix(0); iw(0); ix(1); iw(1); ix(2); iw(2); ix(3)
for i in range(9):
    last = max(n for n, tg in enumerate(issued) if tg[1] <= i and tg in (('x', i), ('w', i)))
    N = len(issued) - 1 - last
    e(f's_waitcnt vmcnt({N})')
    e('s_barrier')
    if i >= 1:
        if i + 2 <= 8: iw(i + 2)
        if i + 3 <= 8: ix(i + 3)
e('s_endpgm')

e('L_consumer:')
vXa = [2, 3]
vXm0 = [4, 5]
vXm2 = [6, 7]
vWa = [8, 9]
vOut = 10; vOutM = 11
vPar = 12
ACC = 16
F = [56, 108]
PR = 160
def acc(tile, t): return ACC + (tile*2 + t)*4
def fx(buf, i): return F[buf] + i*4
def fw(buf, k, t): return F[buf] + 28 + (k*2 + t)*4

e(f's_sub_u32 s{sWave}, s{sWave}, 4')
e(f's_lshr_b32 s{sT0}, s{sWave}, 1')
e(f's_and_b32 s{sT1}, s{sWave}, 1')
e('v_and_b32 v13, 15, v1')
e('v_lshrrev_b32 v14, 4, v1')
e(f's_lshl_b32 s{sT2}, s{sCt}, 7')
e(f's_lshl_b32 s{sT3}, s{sT1}, 6')
e(f's_add_u32 s{sT2}, s{sT2}, s{sT3}')
e(f'v_lshlrev_b32 v{vPar}, 3, v14')
e(f'v_add_u32 v{vPar}, s{sT2}, v{vPar}')
e('s_waitcnt lgkmcnt(0)')
for p in range(4):
    for t in range(2):
        e(f'global_load_dwordx2 v[{PR+p*4+t*2}:{PR+p*4+t*2+1}], v{vPar}, s[{8+2*p}:{9+2*p}] offset:{32*t}')
e(f's_mov_b32 s{sOut}, s16')
e(f's_mov_b32 s{sOut+1}, s17')
e(f'v_mul_u32_u24 v15, {XSLOT}, v14')
e('v_lshl_add_u32 v15, v13, 4, v15')
e(f'v_add_u32 v15, {XBASE+20480}, v15')
for r in range(40):
    e(f'v_mov_b32 v{ACC+r}, 0')
e(f'ds_write_b128 v15, v[{ACC}:{ACC+3}]')
e(f's_mul_i32 s{sT3}, s{sT0}, {80*128}')
e(f's_add_u32 s{sT3}, s{sT3}, {XBASE}')
e('v_lshrrev_b32 v15, 1, v13')
e('v_xor_b32 v15, v15, v14')
e('v_lshlrev_b32 v15, 4, v15')
e('v_lshl_add_u32 v15, v13, 7, v15')
e(f'v_add_u32 v{vXa[0]}, s{sT3}, v15')
e(f'v_xor_b32 v{vXa[1]}, 64, v{vXa[0]}')
for k, regs in ((0, vXm0), (2, vXm2)):
    e(f'v_add_u32 v15, {k-1 if k==2 else 3}, v13')
    e('v_and_b32 v15, 3, v15')
    e(f'v_and_b32 v{F[0]}, 12, v13')
    e(f'v_or_b32 v15, v15, v{F[0]}')
    e(f'v_lshrrev_b32 v{F[0]}, 1, v15')
    e(f'v_xor_b32 v{F[0]}, v{F[0]}, v14')
    e(f'v_lshlrev_b32 v{F[0]}, 4, v{F[0]}')
    e(f'v_lshl_add_u32 v{F[0]}, v15, 7, v{F[0]}')
    e(f's_add_u32 s{sIt}, s{sT3}, {64*128}')
    e(f'v_add_u32 v{F[0]+1}, s{sIt}, v{F[0]}')
    e(f'v_and_b32 v{F[0]}, 0xff, v{F[0]}')
    e(f'v_add_u32 v{F[0]}, {XBASE+20480}, v{F[0]}')
    e('v_and_b32 v15, 3, v13')
    e(f'v_cmp_eq_u32 vcc, {0 if k==0 else 3}, v15')
    e('s_nop 1')
    e(f'v_cndmask_b32 v{regs[0]}, v{F[0]+1}, v{F[0]}, vcc')
    e(f'v_xor_b32 v{regs[1]}, 64, v{regs[0]}')
e('v_lshrrev_b32 v15, 2, v13')
e(f'v_lshl_add_u32 v{F[0]}, v14, 3, v15')
e(f'v_lshlrev_b32 v{F[0]}, 7, v{F[0]}')
e('v_lshrrev_b32 v15, 1, v15')
e(f'v_and_b32 v{F[0]+1}, 1, v14')
e(f'v_lshl_add_u32 v15, v{F[0]+1}, 1, v15')
e(f's_lshl_b32 s{sIt}, s{sT1}, 1')
e(f'v_xor_b32 v15, s{sIt}, v15')
e(f'v_lshl_add_u32 v{F[0]}, v15, 5, v{F[0]}')
e('v_and_b32 v15, 3, v13')
e(f'v_lshl_add_u32 v{vWa[0]}, v15, 3, v{F[0]}')
e(f'v_xor_b32 v{vWa[1]}, 32, v{vWa[0]}')
e(f's_mul_i32 s{sIt}, s{sT0}, 20')
e(f's_add_u32 s{sIt}, s{sIt}, s{sB0}')
e(f's_mul_i32 s{sIt}, s{sIt}, 4608')
e(f's_add_u32 s{sIt}, s{sIt}, s{sT2}')
e('v_and_b32 v15, 1, v14')
e('v_lshlrev_b32 v15, 5, v15')
e(f'v_lshrrev_b32 v{F[0]}, 1, v14')
e(f'v_lshl_add_u32 v15, v{F[0]}, 4, v15')
e(f'v_add_u32 v15, s{sIt}, v15')
e(f'v_mul_u32_u24 v{vOut}, 4608, v13')
e(f'v_add_u32 v{vOut}, v{vOut}, v15')
e(f'v_mul_u32_u24 v{vOutM}, 1152, v13')
e(f'v_add_u32 v{vOutM}, v{vOutM}, v15')
e(f'v_add_u32 v{vOutM}, {16*4608}, v{vOutM}')
SC = 176; SH = 184; SC2 = 192; SH2 = 200
e('s_waitcnt vmcnt(0)')
e(f's_mov_b32 s{sT0}, 0x3727c5ac')
e(f's_mov_b32 s{sT1}, 0xbfb8aa3b')
def unpack(dst, src, hi):
    if hi: e(f'v_and_b32 v{dst}, 0xffff0000, v{src}')
    else:  e(f'v_lshlrev_b32 v{dst}, 16, v{src}')
for t in range(2):
    for r in range(4):
        i = t*4 + r
        sub = t*2 + (r >> 1)
        a, b_, c, d = F[0], F[0]+1, F[0]+2, F[0]+3
        unpack(a, PR + 4 + sub, r & 1)
        unpack(b_, PR + 8 + sub, r & 1)
        e(f'v_add_f32 v{a}, s{sT0}, v{a}')
        e(f'v_rsq_f32 v{a}, v{a}')
        unpack(c, PR + 0 + sub, r & 1)
        unpack(d, PR + 12 + sub, r & 1)
        e(f'v_mul_f32 v{SC+i}, v{a}, v{b_}')
        e(f'v_fma_f32 v{SH+i}, -v{c}, v{SC+i}, v{d}')
        e(f'v_mul_f32 v{SC2+i}, s{sT1}, v{SC+i}')
        e(f'v_mul_f32 v{SH2+i}, s{sT1}, v{SH+i}')

def reads(buf, h):
    r = []
    for k in range(3):
        pass
    def rx(i):
        if i < 4: return f'ds_read_b128 v[{fx(buf,i)}:{fx(buf,i)+3}], v{vXa[h]} offset:{i*2048}'
        k = i - 4
        if k == 1: return f'ds_read_b128 v[{fx(buf,i)}:{fx(buf,i)+3}], v{vXa[h]} offset:{4*2048}'
        reg = vXm0[h] if k == 0 else vXm2[h]
        return f'ds_read_b128 v[{fx(buf,i)}:{fx(buf,i)+3}], v{reg}'
    def rw(k, t, hp):
        d = fw(buf, k, t) + 2*hp
        return f'ds_read_b64_tr_b16 v[{d}:{d+1}], v{vWa[t]} offset:{(h*3+k)*4096 + hp*512}'
    xs = [rx(i) for i in range(7)]
    ws = [rw(k, t, hp) for k in range(3) for t in range(2) for hp in range(2)]
    while xs or ws:
        if ws: r.append(ws.pop(0))
        if ws: r.append(ws.pop(0))
        if xs: r.append(xs.pop(0))
    return r
def mfmas(buf):
    r = []
    for k in range(3):
        for t in range(2):
            for s in range(4):
                sp = s + k - 1
                if 0 <= sp <= 3:
                    a = acc(s, t)
                    r.append(f'v_mfma_f32_16x16x32_bf16 v[{a}:{a+3}], v[{fw(buf,k,t)}:{fw(buf,k,t)+3}], v[{fx(buf,sp)}:{fx(buf,sp)+3}], v[{a}:{a+3}]')
            a = acc(4, t)
            r.append(f'v_mfma_f32_16x16x32_bf16 v[{a}:{a+3}], v[{fw(buf,k,t)}:{fw(buf,k,t)+3}], v[{fx(buf,4+k)}:{fx(buf,4+k)+3}], v[{a}:{a+3}]')
    return r
def interleave(ms, rs):
    for i, m in enumerate(ms):
        e(m)
        if i < len(rs): e(rs[i])

e(f's_mov_b32 s{sIt}, 0')
e(f's_mov_b32 s{sXi}, 0')
e(f's_mov_b32 s{sWi}, 0')
e('s_waitcnt lgkmcnt(0)')
e('s_barrier')
for r in reads(0, 0): e(r)
e('L_loop:')
e('s_waitcnt lgkmcnt(0)')
interleave(mfmas(0), reads(1, 1))
e(f's_add_u32 s{sXi}, s{sXi}, 1')
e(f's_cmp_eq_u32 s{sXi}, {NXS}')
e(f's_cselect_b32 s{sXi}, 0, s{sXi}')
e(f's_mov_b32 s{sDX}, {XSLOT}')
e(f's_cselect_b32 s{sDX}, {(-(NXS-1)*XSLOT) & 0xffffffff}, s{sDX}')
e(f's_add_u32 s{sWi}, s{sWi}, 1')
e(f's_cmp_eq_u32 s{sWi}, {NWS}')
e(f's_cselect_b32 s{sWi}, 0, s{sWi}')
e(f's_mov_b32 s{sDW}, {WSLOT}')
e(f's_cselect_b32 s{sDW}, {(-(NWS-1)*WSLOT) & 0xffffffff}, s{sDW}')
for v in vXa + vXm0 + vXm2:
    e(f'v_add_u32 v{v}, s{sDX}, v{v}')
for v in vWa:
    e(f'v_add_u32 v{v}, s{sDW}, v{v}')
e('s_waitcnt lgkmcnt(0)')
e('s_barrier')
interleave(mfmas(1), reads(0, 0))
e(f's_add_u32 s{sIt}, s{sIt}, 1')
e(f's_cmp_lt_u32 s{sIt}, 9')
e('s_cbranch_scc1 L_loop')
e('s_waitcnt lgkmcnt(0)')
e('s_nop 7')
T = F[0]
for tile in range(5):
    P = F[1] + tile*4
    for t in range(2):
        a = acc(tile, t)
        for r in range(4):
            i = t*4 + r
            e(f'v_fma_f32 v{T+r}, v{a+r}, v{SC2+i}, v{SH2+i}')
            e(f'v_fma_f32 v{a+r}, v{a+r}, v{SC+i}, v{SH+i}')
        for r in range(4):
            e(f'v_exp_f32 v{T+r}, v{T+r}')
        for r in range(4):
            e(f'v_add_f32 v{T+r}, 1.0, v{T+r}')
        for r in range(4):
            e(f'v_rcp_f32 v{T+r}, v{T+r}')
        for r in range(4):
            e(f'v_mul_f32 v{a+r}, v{a+r}, v{T+r}')
        e(f'v_cvt_pk_bf16_f32 v{P+2*t}, v{a}, v{a+1}')
        e(f'v_cvt_pk_bf16_f32 v{P+2*t+1}, v{a+2}, v{a+3}')
    e('s_nop 1')
    e(f'v_permlane16_swap_b32 v{P}, v{P+2}')
    e(f'v_permlane16_swap_b32 v{P+1}, v{P+3}')
    if tile < 4:
        e(f'buffer_store_dwordx4 v[{P}:{P+3}], v{vOut}, s[{sOut}:{sOut+3}], 0 offen offset:{tile*1152}')
    else:
        e(f'buffer_store_dwordx4 v[{P}:{P+3}], v{vOutM}, s[{sOut}:{sOut+3}], 0 offen')
e('L_end:')
e('s_endpgm')

body = '\n'.join(out)
text = HEADER + f'''; Override launch geometry by editing the next line (default: block=256,
; grid=ceil(out_elems/256), lds=0). Harness parses it; keep it on one line.
; @launch grid=({NWG},1,1) block=(512,1,1) lds={LDS_BYTES}
.amdgcn_target "amdgcn-amd-amdhsa--gfx950"
.text
.globl standalone__batchnorm__sampling_kernel
.p2align 8
.type standalone__batchnorm__sampling_kernel,@function
standalone__batchnorm__sampling_kernel:
{body}
.section .rodata,"a"
.p2align 6
.amdhsa_kernel standalone__batchnorm__sampling_kernel
  .amdhsa_next_free_vgpr 208
  .amdhsa_next_free_sgpr 64
  .amdhsa_accum_offset 208
  .amdhsa_group_segment_fixed_size 0
  .amdhsa_kernarg_size 72
  .amdhsa_user_sgpr_count 2
  .amdhsa_user_sgpr_kernarg_segment_ptr 1
  .amdhsa_system_sgpr_workgroup_id_x 1
.end_amdhsa_kernel
'''
dst = [a for a in sys.argv[1:] if not a.startswith('--')]
open(dst[0] if dst else 'standalone__batchnorm__sampling.s', 'w').write(text)
```

```python
import sys

STAMP = '--stamp' in sys.argv
out = []
def e(s=''):
    out.append('    ' + s if s and not s.endswith(':') else s)

HEADER = open('standalone__batchnorm__sampling.s.ref').read().split('; Override launch')[0]

NWG = 234
WSLOT = 24576
NWS = 3
XBASE = WSLOT * NWS
XSLOT = 20480 + 256
NXS = 4
LDS_BYTES = XBASE + XSLOT * NXS
X_BYTES = 1024*4*576*2
W_BYTES = 3*576*576*2
TAP = 576*576*2
ROW = 1152

for t in range(NWG):
    assert (t*57) >> 9 == t // 9

sX, sW, sOut = 20, 24, 28
sWave, sBt, sCt, sB0 = 32, 33, 34, 35
sT0, sT1, sT2, sT3 = 36, 37, 38, 39
sXl, sXm, sWl, sK = 40, 41, 42, 43
sIt, sDX, sDW = 44, 45, 46
sXi, sWi = 47, 48
sStamp = 52

NST = 16
def stamp(i):
    if STAMP: e(f's_memrealtime s[{sStamp+2*i}:{sStamp+2*i+1}]')
def cstamp(i):
    if STAMP: e(f's_memtime s[{sStamp+2*i}:{sStamp+2*i+1}]')
def stamp_flush(used, wave_sgpr_is_minus4):
    if not STAMP: return
    e('s_waitcnt vmcnt(0) lgkmcnt(0)')
    stamp(NST-1)
    e(f's_memtime s[{sStamp+26}:{sStamp+27}]')
    e('s_waitcnt lgkmcnt(0)')
    e(f's_lshl_b32 s3, s2, 3')
    e(f's_add_u32 s3, s3, s{sWave}')
    if wave_sgpr_is_minus4: e('s_add_u32 s3, s3, 4')
    e(f's_mul_i32 s3, s3, {NST*8}')
    e('v_mov_b32 v0, s3')
    e('s_mov_b64 exec, 1')
    for i in used + [12, 13, NST-1]:
        e(f'v_mov_b32 v2, s{sStamp+2*i}')
        e(f'v_mov_b32 v3, s{sStamp+2*i+1}')
        e(f'global_store_dwordx2 v0, v[2:3], s[50:51] offset:{8*i}')
        e('s_nop 1')
e('s_load_dwordx4 s[4:7], s[0:1], 0')
e('s_load_dwordx8 s[8:15], s[0:1], 16')
e('s_load_dwordx4 s[16:19], s[0:1], 48')
if STAMP:
    e('s_load_dwordx2 s[50:51], s[0:1], 64')
    stamp(0)
    e(f's_memtime s[{sStamp+24}:{sStamp+25}]')
e(f's_cmp_ge_u32 s2, {NWG}')
e('s_cbranch_scc1 L_end')
e('v_readfirstlane_b32 s3, v0')
e(f's_and_b32 s{sT0}, s2, 7')
e(f's_lshr_b32 s{sT1}, s2, 3')
e(f's_mul_i32 s{sT2}, s{sT0}, 29')
e(f's_min_u32 s{sT0}, s{sT0}, 2')
e(f's_add_u32 s{sT1}, s{sT1}, s{sT2}')
e(f's_add_u32 s{sT1}, s{sT1}, s{sT0}')
e(f's_mul_i32 s{sBt}, s{sT1}, 57')
e(f's_lshr_b32 s{sBt}, s{sBt}, 9')
e(f's_mul_i32 s{sT0}, s{sBt}, 9')
e(f's_sub_u32 s{sCt}, s{sT1}, s{sT0}')
e(f's_mul_i32 s{sB0}, s{sBt}, 40')
e(f's_lshr_b32 s{sWave}, s3, 6')
e('v_and_b32 v1, 63, v0')
e(f's_mov_b32 s{sX+2}, {X_BYTES}')
e(f's_mov_b32 s{sX+3}, 0x20000')
e(f's_mov_b32 s{sW+2}, {W_BYTES}')
e(f's_mov_b32 s{sW+3}, 0x20000')
e(f's_mov_b32 s{sOut+2}, {X_BYTES}')
e(f's_mov_b32 s{sOut+3}, 0x20000')
e(f's_cmp_ge_u32 s{sWave}, 4')
e('s_cbranch_scc1 L_consumer')

vX = [10, 11, 12, 13, 14]
vW = [15, 16, 17]
e('v_lshrrev_b32 v2, 3, v1')
e('v_and_b32 v3, 7, v1')
e('v_lshrrev_b32 v4, 4, v1')
e('v_xor_b32 v5, v3, v4')
e('v_lshlrev_b32 v5, 4, v5')
e('v_mul_u32_u24 v6, 4608, v2')
e('v_add_u32 v6, v6, v5')
e('v_xor_b32 v7, 64, v6')
e(f's_mul_i32 s{sT0}, s{sB0}, 4608')
e(f's_mul_i32 s{sT1}, s{sWave}, 1152')
e(f's_add_u32 s{sT1}, s{sT1}, s{sT0}')
e(f'v_add_u32 v{vX[0]}, s{sT1}, v6')
e(f's_add_u32 s{sT2}, s{sT1}, {8*4608}')
e(f'v_add_u32 v{vX[1]}, s{sT2}, v7')
e(f's_add_u32 s{sT2}, s{sT1}, {20*4608}')
e(f'v_add_u32 v{vX[2]}, s{sT2}, v6')
e(f's_add_u32 s{sT2}, s{sT1}, {28*4608}')
e(f'v_add_u32 v{vX[3]}, s{sT2}, v7')
e(f's_lshr_b32 s{sT1}, s{sWave}, 1')
e(f's_and_b32 s{sT2}, s{sWave}, 1')
e(f's_mul_i32 s{sT3}, s{sT1}, {20*4608}')
e(f's_add_u32 s{sT0}, s{sT0}, s{sT3}')
e(f's_mul_i32 s{sT3}, s{sT2}, {8*1152}')
e(f's_add_u32 s{sT0}, s{sT0}, s{sT3}')
e(f's_add_u32 s{sT0}, s{sT0}, {16*4608}')
e('v_mul_u32_u24 v8, 1152, v2')
e(f's_lshl_b32 s{sT3}, s{sT2}, 6')
e(f'v_xor_b32 v9, s{sT3}, v5')
e('v_add_u32 v9, v9, v8')
e(f'v_add_u32 v{vX[4]}, s{sT0}, v9')
e(f's_lshl_b32 s{sXl}, s{sWave}, 11')
e(f's_mul_i32 s{sXm}, s{sT1}, {80*128}')
e(f's_lshl_b32 s{sT3}, s{sT2}, 10')
e(f's_add_u32 s{sXm}, s{sXm}, s{sT3}')
e(f's_lshl_b32 s{sWl}, s{sWave}, 10')
e('v_and_b32 v9, 1, v4')
e('v_lshlrev_b32 v9, 1, v9')
e(f's_lshl_b32 s{sT3}, s{sT2}, 2')
e(f'v_or_b32 v9, s{sT3}, v9')
e('v_xor_b32 v9, v9, v3')
e('v_lshlrev_b32 v9, 4, v9')
e('v_add_u32 v9, v9, v8')
e(f's_mul_i32 s{sT0}, s{sWave}, {8*1152}')
e(f's_lshl_b32 s{sT1}, s{sCt}, 7')
e(f's_add_u32 s{sT0}, s{sT0}, s{sT1}')
e(f'v_add_u32 v{vW[0]}, s{sT0}, v9')
e(f'v_add_u32 v{vW[1]}, {TAP}, v{vW[0]}')
e(f'v_add_u32 v{vW[2]}, {2*TAP}, v{vW[0]}')
e('s_waitcnt lgkmcnt(0)')
e(f's_mov_b32 s{sX}, s4')
e(f's_mov_b32 s{sX+1}, s5')
e(f's_mov_b32 s{sW}, s6')
e(f's_mov_b32 s{sW+1}, s7')

def load_x(st):
    slot = XBASE + (st % NXS) * XSLOT
    off = st * 128
    dests = [(sXl, 0), (sXl, 8*128), (sXl, 80*128), (sXl, 88*128), (sXm, 64*128)]
    for i, (sr, c) in enumerate(dests):
        e(f's_add_u32 m0, s{sr}, {slot + c - off}')
        e('s_nop 0')
        e(f'buffer_load_dwordx4 v{vX[i]}, s[{sX}:{sX+3}], 0 offen offset:{off} lds')
def load_w(st):
    slot = (st % NWS) * WSLOT
    for ks in range(2):
        e(f's_mov_b32 s{sK}, {(st*2+ks)*32*ROW}')
        for tap in range(3):
            e(f's_add_u32 m0, s{sWl}, {slot + (ks*3+tap)*4096}')
            e('s_nop 0')
            e(f'buffer_load_dwordx4 v{vW[tap]}, s[{sW}:{sW+3}], s{sK} offen lds')

issued = []
def ix(st):
    load_x(st); issued.extend([('x', st)]*5)
def iw(st):
    load_w(st); issued.extend([('w', st)]*6)
stamp(1)
ix(0); iw(0); ix(1); iw(1); ix(2); iw(2); ix(3)
stamp(2)
for i in range(9):
    last = max(n for n, tg in enumerate(issued) if tg[1] <= i and tg in (('x', i), ('w', i)))
    N = len(issued) - 1 - last
    e(f's_waitcnt vmcnt({N})')
    stamp(3+i)
    e('s_barrier')
    if i >= 1:
        if i + 2 <= 8: iw(i + 2)
        if i + 3 <= 8: ix(i + 3)
stamp_flush(list(range(12)), False)
e('s_endpgm')

e('L_consumer:')
vXa = [2, 3]
vXm0 = [4, 5]
vXm2 = [6, 7]
vWa = [8, 9]
vOut = 10; vOutM = 11
vPar = 12
ACC = 16
F = [56, 108]
PR = 160
def acc(tile, t): return ACC + (tile*2 + t)*4
def fx(buf, i): return F[buf] + i*4
def fw(buf, k, t): return F[buf] + 28 + (k*2 + t)*4

e(f's_sub_u32 s{sWave}, s{sWave}, 4')
e(f's_lshr_b32 s{sT0}, s{sWave}, 1')
e(f's_and_b32 s{sT1}, s{sWave}, 1')
e('v_and_b32 v13, 15, v1')
e('v_lshrrev_b32 v14, 4, v1')
e(f's_lshl_b32 s{sT2}, s{sCt}, 7')
e(f's_lshl_b32 s{sT3}, s{sT1}, 6')
e(f's_add_u32 s{sT2}, s{sT2}, s{sT3}')
e(f'v_lshlrev_b32 v{vPar}, 3, v14')
e(f'v_add_u32 v{vPar}, s{sT2}, v{vPar}')
e('s_waitcnt lgkmcnt(0)')
for p in range(4):
    for t in range(2):
        e(f'global_load_dwordx2 v[{PR+p*4+t*2}:{PR+p*4+t*2+1}], v{vPar}, s[{8+2*p}:{9+2*p}] offset:{32*t}')
e(f's_mov_b32 s{sOut}, s16')
e(f's_mov_b32 s{sOut+1}, s17')
e(f'v_mul_u32_u24 v15, {XSLOT}, v14')
e('v_lshl_add_u32 v15, v13, 4, v15')
e(f'v_add_u32 v15, {XBASE+20480}, v15')
for r in range(40):
    e(f'v_mov_b32 v{ACC+r}, 0')
e(f'ds_write_b128 v15, v[{ACC}:{ACC+3}]')
e(f's_mul_i32 s{sT3}, s{sT0}, {80*128}')
e(f's_add_u32 s{sT3}, s{sT3}, {XBASE}')
e('v_lshrrev_b32 v15, 1, v13')
e('v_xor_b32 v15, v15, v14')
e('v_lshlrev_b32 v15, 4, v15')
e('v_lshl_add_u32 v15, v13, 7, v15')
e(f'v_add_u32 v{vXa[0]}, s{sT3}, v15')
e(f'v_xor_b32 v{vXa[1]}, 64, v{vXa[0]}')
for k, regs in ((0, vXm0), (2, vXm2)):
    e(f'v_add_u32 v15, {k-1 if k==2 else 3}, v13')
    e('v_and_b32 v15, 3, v15')
    e(f'v_and_b32 v{F[0]}, 12, v13')
    e(f'v_or_b32 v15, v15, v{F[0]}')
    e(f'v_lshrrev_b32 v{F[0]}, 1, v15')
    e(f'v_xor_b32 v{F[0]}, v{F[0]}, v14')
    e(f'v_lshlrev_b32 v{F[0]}, 4, v{F[0]}')
    e(f'v_lshl_add_u32 v{F[0]}, v15, 7, v{F[0]}')
    e(f's_add_u32 s{sIt}, s{sT3}, {64*128}')
    e(f'v_add_u32 v{F[0]+1}, s{sIt}, v{F[0]}')
    e(f'v_and_b32 v{F[0]}, 0xff, v{F[0]}')
    e(f'v_add_u32 v{F[0]}, {XBASE+20480}, v{F[0]}')
    e('v_and_b32 v15, 3, v13')
    e(f'v_cmp_eq_u32 vcc, {0 if k==0 else 3}, v15')
    e('s_nop 1')
    e(f'v_cndmask_b32 v{regs[0]}, v{F[0]+1}, v{F[0]}, vcc')
    e(f'v_xor_b32 v{regs[1]}, 64, v{regs[0]}')
e('v_lshrrev_b32 v15, 2, v13')
e(f'v_lshl_add_u32 v{F[0]}, v14, 3, v15')
e(f'v_lshlrev_b32 v{F[0]}, 7, v{F[0]}')
e('v_lshrrev_b32 v15, 1, v15')
e(f'v_and_b32 v{F[0]+1}, 1, v14')
e(f'v_lshl_add_u32 v15, v{F[0]+1}, 1, v15')
e(f's_lshl_b32 s{sIt}, s{sT1}, 1')
e(f'v_xor_b32 v15, s{sIt}, v15')
e(f'v_lshl_add_u32 v{F[0]}, v15, 5, v{F[0]}')
e('v_and_b32 v15, 3, v13')
e(f'v_lshl_add_u32 v{vWa[0]}, v15, 3, v{F[0]}')
e(f'v_xor_b32 v{vWa[1]}, 32, v{vWa[0]}')
e(f's_mul_i32 s{sIt}, s{sT0}, 20')
e(f's_add_u32 s{sIt}, s{sIt}, s{sB0}')
e(f's_mul_i32 s{sIt}, s{sIt}, 4608')
e(f's_add_u32 s{sIt}, s{sIt}, s{sT2}')
e('v_and_b32 v15, 1, v14')
e('v_lshlrev_b32 v15, 5, v15')
e(f'v_lshrrev_b32 v{F[0]}, 1, v14')
e(f'v_lshl_add_u32 v15, v{F[0]}, 4, v15')
e(f'v_add_u32 v15, s{sIt}, v15')
e(f'v_mul_u32_u24 v{vOut}, 4608, v13')
e(f'v_add_u32 v{vOut}, v{vOut}, v15')
e(f'v_mul_u32_u24 v{vOutM}, 1152, v13')
e(f'v_add_u32 v{vOutM}, v{vOutM}, v15')
e(f'v_add_u32 v{vOutM}, {16*4608}, v{vOutM}')
SC = 176; SH = 184; SC2 = 192; SH2 = 200
e('s_waitcnt vmcnt(0)')
e(f's_mov_b32 s{sT0}, 0x3727c5ac')
e(f's_mov_b32 s{sT1}, 0xbfb8aa3b')
def unpack(dst, src, hi):
    if hi: e(f'v_and_b32 v{dst}, 0xffff0000, v{src}')
    else:  e(f'v_lshlrev_b32 v{dst}, 16, v{src}')
for t in range(2):
    for r in range(4):
        i = t*4 + r
        sub = t*2 + (r >> 1)
        a, b_, c, d = F[0], F[0]+1, F[0]+2, F[0]+3
        unpack(a, PR + 4 + sub, r & 1)
        unpack(b_, PR + 8 + sub, r & 1)
        e(f'v_add_f32 v{a}, s{sT0}, v{a}')
        e(f'v_rsq_f32 v{a}, v{a}')
        unpack(c, PR + 0 + sub, r & 1)
        unpack(d, PR + 12 + sub, r & 1)
        e(f'v_mul_f32 v{SC+i}, v{a}, v{b_}')
        e(f'v_fma_f32 v{SH+i}, -v{c}, v{SC+i}, v{d}')
        e(f'v_mul_f32 v{SC2+i}, s{sT1}, v{SC+i}')
        e(f'v_mul_f32 v{SH2+i}, s{sT1}, v{SH+i}')

def reads(buf, h):
    r = []
    for k in range(3):
        pass
    def rx(i):
        if i < 4: return f'ds_read_b128 v[{fx(buf,i)}:{fx(buf,i)+3}], v{vXa[h]} offset:{i*2048}'
        k = i - 4
        if k == 1: return f'ds_read_b128 v[{fx(buf,i)}:{fx(buf,i)+3}], v{vXa[h]} offset:{4*2048}'
        reg = vXm0[h] if k == 0 else vXm2[h]
        return f'ds_read_b128 v[{fx(buf,i)}:{fx(buf,i)+3}], v{reg}'
    def rw(k, t, hp):
        d = fw(buf, k, t) + 2*hp
        return f'ds_read_b64_tr_b16 v[{d}:{d+1}], v{vWa[t]} offset:{(h*3+k)*4096 + hp*512}'
    xs = [rx(i) for i in range(7)]
    ws = [rw(k, t, hp) for k in range(3) for t in range(2) for hp in range(2)]
    while xs or ws:
        if ws: r.append(ws.pop(0))
        if ws: r.append(ws.pop(0))
        if xs: r.append(xs.pop(0))
    return r
def mfmas(buf):
    r = []
    for k in range(3):
        for t in range(2):
            for s in range(4):
                sp = s + k - 1
                if 0 <= sp <= 3:
                    a = acc(s, t)
                    r.append(f'v_mfma_f32_16x16x32_bf16 v[{a}:{a+3}], v[{fw(buf,k,t)}:{fw(buf,k,t)+3}], v[{fx(buf,sp)}:{fx(buf,sp)+3}], v[{a}:{a+3}]')
            a = acc(4, t)
            r.append(f'v_mfma_f32_16x16x32_bf16 v[{a}:{a+3}], v[{fw(buf,k,t)}:{fw(buf,k,t)+3}], v[{fx(buf,4+k)}:{fx(buf,4+k)+3}], v[{a}:{a+3}]')
    return r
def interleave(ms, rs):
    for i, m in enumerate(ms):
        e(m)
        if i < len(rs): e(rs[i])

e(f's_mov_b32 s{sIt}, 0')
e(f's_mov_b32 s{sXi}, 0')
e(f's_mov_b32 s{sWi}, 0')
stamp(1)
e('s_waitcnt lgkmcnt(0)')
e('s_barrier')
stamp(2)
cstamp(5)
for r in reads(0, 0): e(r)
e('L_loop:')
e('s_waitcnt lgkmcnt(0)')
interleave(mfmas(0), reads(1, 1))
e(f's_add_u32 s{sXi}, s{sXi}, 1')
e(f's_cmp_eq_u32 s{sXi}, {NXS}')
e(f's_cselect_b32 s{sXi}, 0, s{sXi}')
e(f's_mov_b32 s{sDX}, {XSLOT}')
e(f's_cselect_b32 s{sDX}, {(-(NXS-1)*XSLOT) & 0xffffffff}, s{sDX}')
e(f's_add_u32 s{sWi}, s{sWi}, 1')
e(f's_cmp_eq_u32 s{sWi}, {NWS}')
e(f's_cselect_b32 s{sWi}, 0, s{sWi}')
e(f's_mov_b32 s{sDW}, {WSLOT}')
e(f's_cselect_b32 s{sDW}, {(-(NWS-1)*WSLOT) & 0xffffffff}, s{sDW}')
for v in vXa + vXm0 + vXm2:
    e(f'v_add_u32 v{v}, s{sDX}, v{v}')
for v in vWa:
    e(f'v_add_u32 v{v}, s{sDW}, v{v}')
e('s_waitcnt lgkmcnt(0)')
e('s_barrier')
interleave(mfmas(1), reads(0, 0))
e(f's_add_u32 s{sIt}, s{sIt}, 1')
e(f's_cmp_lt_u32 s{sIt}, 9')
e('s_cbranch_scc1 L_loop')
stamp(3)
cstamp(6)
e('s_waitcnt lgkmcnt(0)')
e('s_nop 7')
T = F[0]
for tile in range(5):
    P = F[1] + tile*4
    for t in range(2):
        a = acc(tile, t)
        for r in range(4):
            i = t*4 + r
            e(f'v_fma_f32 v{T+r}, v{a+r}, v{SC2+i}, v{SH2+i}')
            e(f'v_fma_f32 v{a+r}, v{a+r}, v{SC+i}, v{SH+i}')
        for r in range(4):
            e(f'v_exp_f32 v{T+r}, v{T+r}')
        for r in range(4):
            e(f'v_add_f32 v{T+r}, 1.0, v{T+r}')
        for r in range(4):
            e(f'v_rcp_f32 v{T+r}, v{T+r}')
        for r in range(4):
            e(f'v_mul_f32 v{a+r}, v{a+r}, v{T+r}')
        e(f'v_cvt_pk_bf16_f32 v{P+2*t}, v{a}, v{a+1}')
        e(f'v_cvt_pk_bf16_f32 v{P+2*t+1}, v{a+2}, v{a+3}')
    e('s_nop 1')
    e(f'v_permlane16_swap_b32 v{P}, v{P+2}')
    e(f'v_permlane16_swap_b32 v{P+1}, v{P+3}')
    if tile < 4:
        e(f'buffer_store_dwordx4 v[{P}:{P+3}], v{vOut}, s[{sOut}:{sOut+3}], 0 offen offset:{tile*1152}')
    else:
        e(f'buffer_store_dwordx4 v[{P}:{P+3}], v{vOutM}, s[{sOut}:{sOut+3}], 0 offen')
stamp(4)
cstamp(7)
stamp_flush([0,1,2,3,4,5,6,7], True)
e('L_end:')
e('s_endpgm')

body = '\n'.join(out)
text = HEADER + f'''; Override launch geometry by editing the next line (default: block=256,
; grid=ceil(out_elems/256), lds=0). Harness parses it; keep it on one line.
; @launch grid=({NWG},1,1) block=(512,1,1) lds={LDS_BYTES}
.amdgcn_target "amdgcn-amd-amdhsa--gfx950"
.text
.globl standalone__batchnorm__sampling_kernel
.p2align 8
.type standalone__batchnorm__sampling_kernel,@function
standalone__batchnorm__sampling_kernel:
{body}
.section .rodata,"a"
.p2align 6
.amdhsa_kernel standalone__batchnorm__sampling_kernel
  .amdhsa_next_free_vgpr 208
  .amdhsa_next_free_sgpr 96
  .amdhsa_accum_offset 208
  .amdhsa_group_segment_fixed_size 0
  .amdhsa_kernarg_size 72
  .amdhsa_user_sgpr_count 2
  .amdhsa_user_sgpr_kernarg_segment_ptr 1
  .amdhsa_system_sgpr_workgroup_id_x 1
.end_amdhsa_kernel
'''
dst = [a for a in sys.argv[1:] if not a.startswith('--')]
open(dst[0] if dst else 'standalone__batchnorm__sampling.s', 'w').write(text)
```

```python
import sys

STAMP = '--stamp' in sys.argv
AMP = None
for a in sys.argv:
    if a.startswith('--amp='):
        AMP = tuple(int(v) for v in a[6:].split(','))
        STAMP = True
out = []
def e(s=''):
    out.append('    ' + s if s and not s.endswith(':') else s)

HEADER = open('standalone__batchnorm__sampling.s.ref').read().split('; Override launch')[0]

NWG = 234
WSLOT = 24576
NWS = 3
XBASE = WSLOT * NWS
XSLOT = 20480 + 256
NXS = 4
LDS_BYTES = XBASE + XSLOT * NXS
X_BYTES = 1024*4*576*2
W_BYTES = 3*576*576*2
TAP = 576*576*2
ROW = 1152

for t in range(NWG):
    assert (t*57) >> 9 == t // 9

sX, sW, sOut = 20, 24, 28
sWave, sBt, sCt, sB0 = 32, 33, 34, 35
sT0, sT1, sT2, sT3 = 36, 37, 38, 39
sXl, sXm, sWl, sK = 40, 41, 42, 43
sIt, sDX, sDW = 44, 45, 46
sXi, sWi = 47, 48
sStamp = 52

NST = 16
def stamp(i):
    if STAMP: e(f's_memrealtime s[{sStamp+2*i}:{sStamp+2*i+1}]')
def cstamp(i):
    if STAMP: e(f's_memtime s[{sStamp+2*i}:{sStamp+2*i+1}]')
def stamp_flush(used, wave_sgpr_is_minus4):
    if not STAMP: return
    e('s_waitcnt vmcnt(0) lgkmcnt(0)')
    stamp(NST-1)
    e(f's_memtime s[{sStamp+26}:{sStamp+27}]')
    e('s_waitcnt lgkmcnt(0)')
    if AMP is not None:
        if wave_sgpr_is_minus4 == (AMP[2] == 1):
            lab = 'L_amp'
            e(f's_sub_u32 s3, s{sStamp+2*AMP[1]}, s{sStamp+2*AMP[0]}')
            e('s_mul_i32 s3, s3, 20')
            e(f's_add_u32 s3, s3, s{sStamp+2*(NST-1)}')
            e(lab + ':')
            e('s_memrealtime s[4:5]')
            e('s_waitcnt lgkmcnt(0)')
            e('s_sub_u32 s6, s4, s3')
            e('s_cmp_lt_i32 s6, 0')
            e(f's_cbranch_scc1 {lab}')
        return
    e(f's_lshl_b32 s3, s2, 3')
    e(f's_add_u32 s3, s3, s{sWave}')
    if wave_sgpr_is_minus4: e('s_add_u32 s3, s3, 4')
    e(f's_mul_i32 s3, s3, {NST*8}')
    e('v_mov_b32 v0, s3')
    e('s_mov_b64 exec, 1')
    for i in used + [12, 13, NST-1]:
        e(f'v_mov_b32 v2, s{sStamp+2*i}')
        e(f'v_mov_b32 v3, s{sStamp+2*i+1}')
        e(f'global_store_dwordx2 v0, v[2:3], s[50:51] offset:{8*i}')
        e('s_nop 1')
e('s_load_dwordx4 s[4:7], s[0:1], 0')
e('s_load_dwordx8 s[8:15], s[0:1], 16')
e('s_load_dwordx4 s[16:19], s[0:1], 48')
if STAMP:
    e('s_load_dwordx2 s[50:51], s[0:1], 64')
    stamp(0)
    e(f's_memtime s[{sStamp+24}:{sStamp+25}]')
e(f's_cmp_ge_u32 s2, {NWG}')
e('s_cbranch_scc1 L_end')
e('v_readfirstlane_b32 s3, v0')
e(f's_and_b32 s{sT0}, s2, 7')
e(f's_lshr_b32 s{sT1}, s2, 3')
e(f's_mul_i32 s{sT2}, s{sT0}, 29')
e(f's_min_u32 s{sT0}, s{sT0}, 2')
e(f's_add_u32 s{sT1}, s{sT1}, s{sT2}')
e(f's_add_u32 s{sT1}, s{sT1}, s{sT0}')
e(f's_mul_i32 s{sBt}, s{sT1}, 57')
e(f's_lshr_b32 s{sBt}, s{sBt}, 9')
e(f's_mul_i32 s{sT0}, s{sBt}, 9')
e(f's_sub_u32 s{sCt}, s{sT1}, s{sT0}')
e(f's_mul_i32 s{sB0}, s{sBt}, 40')
e(f's_lshr_b32 s{sWave}, s3, 6')
e('v_and_b32 v1, 63, v0')
e(f's_mov_b32 s{sX+2}, {X_BYTES}')
e(f's_mov_b32 s{sX+3}, 0x20000')
e(f's_mov_b32 s{sW+2}, {W_BYTES}')
e(f's_mov_b32 s{sW+3}, 0x20000')
e(f's_mov_b32 s{sOut+2}, {X_BYTES}')
e(f's_mov_b32 s{sOut+3}, 0x20000')
e(f's_cmp_ge_u32 s{sWave}, 4')
e('s_cbranch_scc1 L_consumer')

vX = [10, 11, 12, 13, 14]
vW = [15, 16, 17]
e('v_lshrrev_b32 v2, 3, v1')
e('v_and_b32 v3, 7, v1')
e('v_lshrrev_b32 v4, 4, v1')
e('v_xor_b32 v5, v3, v4')
e('v_lshlrev_b32 v5, 4, v5')
e('v_mul_u32_u24 v6, 4608, v2')
e('v_add_u32 v6, v6, v5')
e('v_xor_b32 v7, 64, v6')
e(f's_mul_i32 s{sT0}, s{sB0}, 4608')
e(f's_mul_i32 s{sT1}, s{sWave}, 1152')
e(f's_add_u32 s{sT1}, s{sT1}, s{sT0}')
e(f'v_add_u32 v{vX[0]}, s{sT1}, v6')
e(f's_add_u32 s{sT2}, s{sT1}, {8*4608}')
e(f'v_add_u32 v{vX[1]}, s{sT2}, v7')
e(f's_add_u32 s{sT2}, s{sT1}, {20*4608}')
e(f'v_add_u32 v{vX[2]}, s{sT2}, v6')
e(f's_add_u32 s{sT2}, s{sT1}, {28*4608}')
e(f'v_add_u32 v{vX[3]}, s{sT2}, v7')
e(f's_lshr_b32 s{sT1}, s{sWave}, 1')
e(f's_and_b32 s{sT2}, s{sWave}, 1')
e(f's_mul_i32 s{sT3}, s{sT1}, {20*4608}')
e(f's_add_u32 s{sT0}, s{sT0}, s{sT3}')
e(f's_mul_i32 s{sT3}, s{sT2}, {8*1152}')
e(f's_add_u32 s{sT0}, s{sT0}, s{sT3}')
e(f's_add_u32 s{sT0}, s{sT0}, {16*4608}')
e('v_mul_u32_u24 v8, 1152, v2')
e(f's_lshl_b32 s{sT3}, s{sT2}, 6')
e(f'v_xor_b32 v9, s{sT3}, v5')
e('v_add_u32 v9, v9, v8')
e(f'v_add_u32 v{vX[4]}, s{sT0}, v9')
e(f's_lshl_b32 s{sXl}, s{sWave}, 11')
e(f's_mul_i32 s{sXm}, s{sT1}, {80*128}')
e(f's_lshl_b32 s{sT3}, s{sT2}, 10')
e(f's_add_u32 s{sXm}, s{sXm}, s{sT3}')
e(f's_lshl_b32 s{sWl}, s{sWave}, 10')
e('v_and_b32 v9, 1, v4')
e('v_lshlrev_b32 v9, 1, v9')
e(f's_lshl_b32 s{sT3}, s{sT2}, 2')
e(f'v_or_b32 v9, s{sT3}, v9')
e('v_xor_b32 v9, v9, v3')
e('v_lshlrev_b32 v9, 4, v9')
e('v_add_u32 v9, v9, v8')
e(f's_mul_i32 s{sT0}, s{sWave}, {8*1152}')
e(f's_lshl_b32 s{sT1}, s{sCt}, 7')
e(f's_add_u32 s{sT0}, s{sT0}, s{sT1}')
e(f'v_add_u32 v{vW[0]}, s{sT0}, v9')
e(f'v_add_u32 v{vW[1]}, {TAP}, v{vW[0]}')
e(f'v_add_u32 v{vW[2]}, {2*TAP}, v{vW[0]}')
e('s_waitcnt lgkmcnt(0)')
e(f's_mov_b32 s{sX}, s4')
e(f's_mov_b32 s{sX+1}, s5')
e(f's_mov_b32 s{sW}, s6')
e(f's_mov_b32 s{sW+1}, s7')

def load_x(st):
    slot = XBASE + (st % NXS) * XSLOT
    off = st * 128
    dests = [(sXl, 0), (sXl, 8*128), (sXl, 80*128), (sXl, 88*128), (sXm, 64*128)]
    for i, (sr, c) in enumerate(dests):
        e(f's_add_u32 m0, s{sr}, {slot + c - off}')
        e('s_nop 0')
        e(f'buffer_load_dwordx4 v{vX[i]}, s[{sX}:{sX+3}], 0 offen offset:{off} lds')
def load_w(st):
    slot = (st % NWS) * WSLOT
    for ks in range(2):
        e(f's_mov_b32 s{sK}, {(st*2+ks)*32*ROW}')
        for tap in range(3):
            e(f's_add_u32 m0, s{sWl}, {slot + (ks*3+tap)*4096}')
            e('s_nop 0')
            e(f'buffer_load_dwordx4 v{vW[tap]}, s[{sW}:{sW+3}], s{sK} offen lds')

issued = []
def ix(st):
    load_x(st); issued.extend([('x', st)]*5)
def iw(st):
    load_w(st); issued.extend([('w', st)]*6)
stamp(1)
ix(0); iw(0); ix(1); iw(1); ix(2); iw(2); ix(3)
stamp(2)
for i in range(9):
    last = max(n for n, tg in enumerate(issued) if tg[1] <= i and tg in (('x', i), ('w', i)))
    N = len(issued) - 1 - last
    e(f's_waitcnt vmcnt({N})')
    stamp(3+i)
    e('s_barrier')
    if i >= 1:
        if i + 2 <= 8: iw(i + 2)
        if i + 3 <= 8: ix(i + 3)
stamp_flush(list(range(12)), False)
e('s_endpgm')

e('L_consumer:')
vXa = [2, 3]
vXm0 = [4, 5]
vXm2 = [6, 7]
vWa = [8, 9]
vOut = 10; vOutM = 11
vPar = 12
ACC = 16
F = [56, 108]
PR = 160
def acc(tile, t): return ACC + (tile*2 + t)*4
def fx(buf, i): return F[buf] + i*4
def fw(buf, k, t): return F[buf] + 28 + (k*2 + t)*4

e(f's_sub_u32 s{sWave}, s{sWave}, 4')
e(f's_lshr_b32 s{sT0}, s{sWave}, 1')
e(f's_and_b32 s{sT1}, s{sWave}, 1')
e('v_and_b32 v13, 15, v1')
e('v_lshrrev_b32 v14, 4, v1')
e(f's_lshl_b32 s{sT2}, s{sCt}, 7')
e(f's_lshl_b32 s{sT3}, s{sT1}, 6')
e(f's_add_u32 s{sT2}, s{sT2}, s{sT3}')
e(f'v_lshlrev_b32 v{vPar}, 3, v14')
e(f'v_add_u32 v{vPar}, s{sT2}, v{vPar}')
e('s_waitcnt lgkmcnt(0)')
for p in range(4):
    for t in range(2):
        e(f'global_load_dwordx2 v[{PR+p*4+t*2}:{PR+p*4+t*2+1}], v{vPar}, s[{8+2*p}:{9+2*p}] offset:{32*t}')
e(f's_mov_b32 s{sOut}, s16')
e(f's_mov_b32 s{sOut+1}, s17')
e(f'v_mul_u32_u24 v15, {XSLOT}, v14')
e('v_lshl_add_u32 v15, v13, 4, v15')
e(f'v_add_u32 v15, {XBASE+20480}, v15')
for r in range(40):
    e(f'v_mov_b32 v{ACC+r}, 0')
e(f'ds_write_b128 v15, v[{ACC}:{ACC+3}]')
e(f's_mul_i32 s{sT3}, s{sT0}, {80*128}')
e(f's_add_u32 s{sT3}, s{sT3}, {XBASE}')
e('v_lshrrev_b32 v15, 1, v13')
e('v_xor_b32 v15, v15, v14')
e('v_lshlrev_b32 v15, 4, v15')
e('v_lshl_add_u32 v15, v13, 7, v15')
e(f'v_add_u32 v{vXa[0]}, s{sT3}, v15')
e(f'v_xor_b32 v{vXa[1]}, 64, v{vXa[0]}')
for k, regs in ((0, vXm0), (2, vXm2)):
    e(f'v_add_u32 v15, {k-1 if k==2 else 3}, v13')
    e('v_and_b32 v15, 3, v15')
    e(f'v_and_b32 v{F[0]}, 12, v13')
    e(f'v_or_b32 v15, v15, v{F[0]}')
    e(f'v_lshrrev_b32 v{F[0]}, 1, v15')
    e(f'v_xor_b32 v{F[0]}, v{F[0]}, v14')
    e(f'v_lshlrev_b32 v{F[0]}, 4, v{F[0]}')
    e(f'v_lshl_add_u32 v{F[0]}, v15, 7, v{F[0]}')
    e(f's_add_u32 s{sIt}, s{sT3}, {64*128}')
    e(f'v_add_u32 v{F[0]+1}, s{sIt}, v{F[0]}')
    e(f'v_and_b32 v{F[0]}, 0xff, v{F[0]}')
    e(f'v_add_u32 v{F[0]}, {XBASE+20480}, v{F[0]}')
    e('v_and_b32 v15, 3, v13')
    e(f'v_cmp_eq_u32 vcc, {0 if k==0 else 3}, v15')
    e('s_nop 1')
    e(f'v_cndmask_b32 v{regs[0]}, v{F[0]+1}, v{F[0]}, vcc')
    e(f'v_xor_b32 v{regs[1]}, 64, v{regs[0]}')
e('v_lshrrev_b32 v15, 2, v13')
e(f'v_lshl_add_u32 v{F[0]}, v14, 3, v15')
e(f'v_lshlrev_b32 v{F[0]}, 7, v{F[0]}')
e('v_lshrrev_b32 v15, 1, v15')
e(f'v_and_b32 v{F[0]+1}, 1, v14')
e(f'v_lshl_add_u32 v15, v{F[0]+1}, 1, v15')
e(f's_lshl_b32 s{sIt}, s{sT1}, 1')
e(f'v_xor_b32 v15, s{sIt}, v15')
e(f'v_lshl_add_u32 v{F[0]}, v15, 5, v{F[0]}')
e('v_and_b32 v15, 3, v13')
e(f'v_lshl_add_u32 v{vWa[0]}, v15, 3, v{F[0]}')
e(f'v_xor_b32 v{vWa[1]}, 32, v{vWa[0]}')
e(f's_mul_i32 s{sIt}, s{sT0}, 20')
e(f's_add_u32 s{sIt}, s{sIt}, s{sB0}')
e(f's_mul_i32 s{sIt}, s{sIt}, 4608')
e(f's_add_u32 s{sIt}, s{sIt}, s{sT2}')
e('v_and_b32 v15, 1, v14')
e('v_lshlrev_b32 v15, 5, v15')
e(f'v_lshrrev_b32 v{F[0]}, 1, v14')
e(f'v_lshl_add_u32 v15, v{F[0]}, 4, v15')
e(f'v_add_u32 v15, s{sIt}, v15')
e(f'v_mul_u32_u24 v{vOut}, 4608, v13')
e(f'v_add_u32 v{vOut}, v{vOut}, v15')
e(f'v_mul_u32_u24 v{vOutM}, 1152, v13')
e(f'v_add_u32 v{vOutM}, v{vOutM}, v15')
e(f'v_add_u32 v{vOutM}, {16*4608}, v{vOutM}')
SC = 176; SH = 184; SC2 = 192; SH2 = 200
e('s_waitcnt vmcnt(0)')
e(f's_mov_b32 s{sT0}, 0x3727c5ac')
e(f's_mov_b32 s{sT1}, 0xbfb8aa3b')
def unpack(dst, src, hi):
    if hi: e(f'v_and_b32 v{dst}, 0xffff0000, v{src}')
    else:  e(f'v_lshlrev_b32 v{dst}, 16, v{src}')
for t in range(2):
    for r in range(4):
        i = t*4 + r
        sub = t*2 + (r >> 1)
        a, b_, c, d = F[0], F[0]+1, F[0]+2, F[0]+3
        unpack(a, PR + 4 + sub, r & 1)
        unpack(b_, PR + 8 + sub, r & 1)
        e(f'v_add_f32 v{a}, s{sT0}, v{a}')
        e(f'v_rsq_f32 v{a}, v{a}')
        unpack(c, PR + 0 + sub, r & 1)
        unpack(d, PR + 12 + sub, r & 1)
        e(f'v_mul_f32 v{SC+i}, v{a}, v{b_}')
        e(f'v_fma_f32 v{SH+i}, -v{c}, v{SC+i}, v{d}')
        e(f'v_mul_f32 v{SC2+i}, s{sT1}, v{SC+i}')
        e(f'v_mul_f32 v{SH2+i}, s{sT1}, v{SH+i}')

def reads(buf, h):
    r = []
    for k in range(3):
        pass
    def rx(i):
        if i < 4: return f'ds_read_b128 v[{fx(buf,i)}:{fx(buf,i)+3}], v{vXa[h]} offset:{i*2048}'
        k = i - 4
        if k == 1: return f'ds_read_b128 v[{fx(buf,i)}:{fx(buf,i)+3}], v{vXa[h]} offset:{4*2048}'
        reg = vXm0[h] if k == 0 else vXm2[h]
        return f'ds_read_b128 v[{fx(buf,i)}:{fx(buf,i)+3}], v{reg}'
    def rw(k, t, hp):
        d = fw(buf, k, t) + 2*hp
        return f'ds_read_b64_tr_b16 v[{d}:{d+1}], v{vWa[t]} offset:{(h*3+k)*4096 + hp*512}'
    xs = [rx(i) for i in range(7)]
    ws = [rw(k, t, hp) for k in range(3) for t in range(2) for hp in range(2)]
    while xs or ws:
        if ws: r.append(ws.pop(0))
        if ws: r.append(ws.pop(0))
        if xs: r.append(xs.pop(0))
    return r
def mfmas(buf):
    r = []
    for k in range(3):
        for t in range(2):
            for s in range(4):
                sp = s + k - 1
                if 0 <= sp <= 3:
                    a = acc(s, t)
                    r.append(f'v_mfma_f32_16x16x32_bf16 v[{a}:{a+3}], v[{fw(buf,k,t)}:{fw(buf,k,t)+3}], v[{fx(buf,sp)}:{fx(buf,sp)+3}], v[{a}:{a+3}]')
            a = acc(4, t)
            r.append(f'v_mfma_f32_16x16x32_bf16 v[{a}:{a+3}], v[{fw(buf,k,t)}:{fw(buf,k,t)+3}], v[{fx(buf,4+k)}:{fx(buf,4+k)+3}], v[{a}:{a+3}]')
    return r
def interleave(ms, rs):
    for i, m in enumerate(ms):
        e(m)
        if i < len(rs): e(rs[i])

e(f's_mov_b32 s{sIt}, 0')
e(f's_mov_b32 s{sXi}, 0')
e(f's_mov_b32 s{sWi}, 0')
stamp(1)
e('s_waitcnt lgkmcnt(0)')
e('s_barrier')
stamp(2)
cstamp(5)
for r in reads(0, 0): e(r)
e('L_loop:')
e('s_waitcnt lgkmcnt(0)')
interleave(mfmas(0), reads(1, 1))
e(f's_add_u32 s{sXi}, s{sXi}, 1')
e(f's_cmp_eq_u32 s{sXi}, {NXS}')
e(f's_cselect_b32 s{sXi}, 0, s{sXi}')
e(f's_mov_b32 s{sDX}, {XSLOT}')
e(f's_cselect_b32 s{sDX}, {(-(NXS-1)*XSLOT) & 0xffffffff}, s{sDX}')
e(f's_add_u32 s{sWi}, s{sWi}, 1')
e(f's_cmp_eq_u32 s{sWi}, {NWS}')
e(f's_cselect_b32 s{sWi}, 0, s{sWi}')
e(f's_mov_b32 s{sDW}, {WSLOT}')
e(f's_cselect_b32 s{sDW}, {(-(NWS-1)*WSLOT) & 0xffffffff}, s{sDW}')
for v in vXa + vXm0 + vXm2:
    e(f'v_add_u32 v{v}, s{sDX}, v{v}')
for v in vWa:
    e(f'v_add_u32 v{v}, s{sDW}, v{v}')
e('s_waitcnt lgkmcnt(0)')
e('s_barrier')
interleave(mfmas(1), reads(0, 0))
e(f's_add_u32 s{sIt}, s{sIt}, 1')
e(f's_cmp_lt_u32 s{sIt}, 9')
e('s_cbranch_scc1 L_loop')
stamp(3)
cstamp(6)
e('s_waitcnt lgkmcnt(0)')
e('s_nop 7')
T = F[0]
for tile in range(5):
    P = F[1] + tile*4
    for t in range(2):
        a = acc(tile, t)
        for r in range(4):
            i = t*4 + r
            e(f'v_fma_f32 v{T+r}, v{a+r}, v{SC2+i}, v{SH2+i}')
            e(f'v_fma_f32 v{a+r}, v{a+r}, v{SC+i}, v{SH+i}')
        for r in range(4):
            e(f'v_exp_f32 v{T+r}, v{T+r}')
        for r in range(4):
            e(f'v_add_f32 v{T+r}, 1.0, v{T+r}')
        for r in range(4):
            e(f'v_rcp_f32 v{T+r}, v{T+r}')
        for r in range(4):
            e(f'v_mul_f32 v{a+r}, v{a+r}, v{T+r}')
        e(f'v_cvt_pk_bf16_f32 v{P+2*t}, v{a}, v{a+1}')
        e(f'v_cvt_pk_bf16_f32 v{P+2*t+1}, v{a+2}, v{a+3}')
    e('s_nop 1')
    e(f'v_permlane16_swap_b32 v{P}, v{P+2}')
    e(f'v_permlane16_swap_b32 v{P+1}, v{P+3}')
    if tile < 4:
        e(f'buffer_store_dwordx4 v[{P}:{P+3}], v{vOut}, s[{sOut}:{sOut+3}], 0 offen offset:{tile*1152}')
    else:
        e(f'buffer_store_dwordx4 v[{P}:{P+3}], v{vOutM}, s[{sOut}:{sOut+3}], 0 offen')
stamp(4)
cstamp(7)
stamp_flush([0,1,2,3,4,5,6,7], True)
e('L_end:')
e('s_endpgm')

body = '\n'.join(out)
text = HEADER + f'''; Override launch geometry by editing the next line (default: block=256,
; grid=ceil(out_elems/256), lds=0). Harness parses it; keep it on one line.
; @launch grid=({NWG},1,1) block=(512,1,1) lds={LDS_BYTES}
.amdgcn_target "amdgcn-amd-amdhsa--gfx950"
.text
.globl standalone__batchnorm__sampling_kernel
.p2align 8
.type standalone__batchnorm__sampling_kernel,@function
standalone__batchnorm__sampling_kernel:
{body}
.section .rodata,"a"
.p2align 6
.amdhsa_kernel standalone__batchnorm__sampling_kernel
  .amdhsa_next_free_vgpr 208
  .amdhsa_next_free_sgpr 96
  .amdhsa_accum_offset 208
  .amdhsa_group_segment_fixed_size 0
  .amdhsa_kernarg_size 72
  .amdhsa_user_sgpr_count 2
  .amdhsa_user_sgpr_kernarg_segment_ptr 1
  .amdhsa_system_sgpr_workgroup_id_x 1
.end_amdhsa_kernel
'''
dst = [a for a in sys.argv[1:] if not a.startswith('--')]
open(dst[0] if dst else 'standalone__batchnorm__sampling.s', 'w').write(text)
```

```python
import sys
opt = {}
dst = 'standalone__batchnorm__sampling.s'
for a in sys.argv[1:]:
    if a.startswith('--'):
        k, _, v = a[2:].partition('=')
        opt[k] = v if v else True
    else:
        dst = a
STAMP = 'stamp' in opt
AMP = None
if 'amp' in opt:
    AMP = tuple(int(v) for v in opt['amp'].split(',')); STAMP = True
MAP = opt.get('map', 'p4')
ORDER = opt.get('order', '013246578_120435768_201356487')
XNT = ' nt' if 'xnt' in opt else ''
STF = opt.get('stf', 'sc1').replace('+', ' ')
STL = opt.get('stl', STF).replace('+', ' ').replace('none', '')
PK = int(opt.get('pk', 1))
FLIP = MAP == 'p4' and 'noflip' not in opt
LST = 'lst' in opt

out = []
def e(s=''):
    if 'nodma' in opt and s.startswith('buffer_load_dwordx4') and s.endswith('lds'): return
    out.append('    ' + s if s and not s.endswith(':') else s)

HEADER = open('standalone__batchnorm__sampling.s.ref').read().split('; Override launch')[0]

WSLOT = 24576
XSLOT = 20480 + 256
XBASE = 0
WBASE = XSLOT * 3
FLAGL = WBASE + WSLOT * 3
PARM = FLAGL + 1024
STG = PARM + 512
LDS_BYTES = STG + 4096
X_BYTES = 1024*4*576*2
W_BYTES = 3*576*576*2
TAP = 576*576*2
ROW = 1152

sX, sW, sOut = 20, 24, 28
sWave, sQ, sCt, sB0 = 32, 33, 34, 35
sT0, sT1, sT2, sT3 = 36, 37, 38, 39
sXl, sF, sWl, sK = 40, 41, 42, 43
sIt, sDX, sDW = 44, 45, 46
sSl, sFl = 47, 48
sOrd, sG, sKd, sKf = 16, 17, 18, 19
sNv = sX + 2
sStamp = 52
NST = 16
def stamp(i):
    if STAMP: e(f's_memrealtime s[{sStamp+2*i}:{sStamp+2*i+1}]')
def cstamp(i):
    if STAMP: e(f's_memtime s[{sStamp+2*i}:{sStamp+2*i+1}]')
def stamp_flush(used):
    if not STAMP: return
    e('s_waitcnt vmcnt(0) lgkmcnt(0)')
    stamp(NST-1)
    e(f's_memtime s[{sStamp+26}:{sStamp+27}]')
    e('s_waitcnt lgkmcnt(0)')
    if AMP is not None:
        e(f's_sub_u32 s3, s{sStamp+2*AMP[1]}, s{sStamp+2*AMP[0]}')
        e(f's_mul_i32 s3, s3, {AMP[3] if len(AMP) > 3 else 20}')
        e(f's_add_u32 s3, s3, s{sStamp+2*(NST-1)}')
        e('L_amp:')
        e('s_memrealtime s[4:5]')
        e('s_waitcnt lgkmcnt(0)')
        e('s_sub_u32 s6, s4, s3')
        e('s_cmp_lt_i32 s6, 0')
        e('s_cbranch_scc1 L_amp')
        return
    e(f's_lshl_b32 s3, s2, 3')
    e(f's_add_u32 s3, s3, s{sWave}')
    e('s_add_u32 s3, s3, 4')
    e(f's_mul_i32 s3, s3, {NST*8}')
    e('v_mov_b32 v0, s3')
    e('s_mov_b64 exec, 1')
    for i in used + [12, 13, NST-1]:
        e(f'v_mov_b32 v2, s{sStamp+2*i}')
        e(f'v_mov_b32 v3, s{sStamp+2*i+1}')
        e(f'global_store_dwordx2 v0, v[2:3], s[50:51] offset:{8*i}')
        e('s_nop 1')
def div_small(dstr, src_, d, maxv):
    for sh in range(4, 16):
        m = -(-(1 << sh) // d)
        if m <= 64 and all((t*m) >> sh == t // d for t in range(maxv+1)):
            e(f's_mul_i32 s{dstr}, s{src_}, {m}')
            e(f's_lshr_b32 s{dstr}, s{dstr}, {sh}')
            return
    assert 0
def pack(order): return sum(s << (4*i) for i, s in enumerate(order))
orders = [[int(ch) for ch in o] for o in ORDER.split('_')]
for g, o in enumerate(orders): assert sorted(o) == list(range(9)), o
assert len(orders) == 3
FIRST_IS_G = all(o[0] == g for g, o in enumerate(orders))
FIRST_IS_0 = all(o[0] == 0 for o in orders)
assert FIRST_IS_G or FIRST_IS_0

e(f's_load_dwordx2 s[{sW}:{sW+1}], s[0:1], 8')
e(f's_load_dwordx2 s[{sX}:{sX+1}], s[0:1], 0')
if STAMP:
    stamp(0)
    e(f's_memtime s[{sStamp+24}:{sStamp+25}]')
e(f's_lshr_b32 s{sT1}, s2, 3')
if 'nocpf' not in opt:
    e('s_getpc_b64 s[30:31]')
    e('L_pc:')
    e('v_and_b32 v2, 0x180, v0')
    e(f'v_lshl_add_u32 v2, s{sT1}, 9, v2')
    e('v_min_u32 v2, L_end-L_pc, v2')
    e('global_load_dword v255, v2, s[30:31]')
e('v_readfirstlane_b32 s3, v0')
e(f's_and_b32 s{sT0}, s2, 7')
if MAP == 'p3':
    NWG = 240
    e(f's_mul_i32 s{sT2}, s{sT0}, 27')
    e(f's_mul_i32 s{sT3}, s{sT0}, 3')
    e(f's_addk_i32 s{sT3}, {216-27}')
    e(f's_cmp_ge_u32 s{sT1}, 27')
    e(f's_cselect_b32 s{sT2}, s{sT3}, s{sT2}')
    e(f's_add_u32 s{sT2}, s{sT2}, s{sT1}')
    e(f's_cmp_ge_u32 s{sT1}, 30')
    e(f's_cselect_b32 s{sT2}, -1, s{sT2}')
    e(f's_cmpk_ge_u32 s{sT2}, 234')
    e('s_cbranch_scc1 L_end')
    div_small(sQ, sT2, 9, 233)
    e(f's_mul_i32 s{sT0}, s{sQ}, 9')
    e(f's_sub_u32 s{sCt}, s{sT2}, s{sT0}')
    e(f's_mul_i32 s{sB0}, s{sQ}, 40')
    e(f's_mov_b32 s{sNv}, {X_BYTES}')
else:
    NWG = 256
    def P(M, ncol, lim, c0):
        assert all((j*M) >> 8 == j // ncol for j in range(lim))
        return M | ncol << 8 | lim << 16 | c0 << 24
    e(f's_mul_i32 s{sB0}, s{sT0}, 60')
    e(f's_mul_i32 s{sT2}, s{sT0}, 80')
    e(f's_sub_u32 s{sT2}, s{sT2}, 320')
    e(f's_cmp_lt_u32 s{sT0}, 4')
    e(f's_cselect_b32 s{sB0}, s{sB0}, s{sT2}')
    e(f's_mov_b32 s{sT2}, {P(64, 4, 32, 5)}')
    e(f's_cselect_b32 s{sT2}, {P(52, 5, 30, 0)}, s{sT2}')
    e(f's_cmp_eq_u32 s{sT0}, 7')
    e(f's_cselect_b32 s{sT2}, {P(29, 9, 27, 0)}, s{sT2}')
    e(f's_cselect_b32 s{sT3}, 22, 40')
    e(f's_bfe_u32 s{sT0}, s{sT2}, 0x80010')
    e(f's_cmp_ge_u32 s{sT1}, s{sT0}')
    e('s_cbranch_scc1 L_end')
    e(f's_and_b32 s{sQ}, s{sT2}, 0xff')
    e(f's_mul_i32 s{sQ}, s{sQ}, s{sT1}')
    e(f's_lshr_b32 s{sQ}, s{sQ}, 8')
    e(f's_bfe_u32 s{sT0}, s{sT2}, 0x80008')
    e(f's_mul_i32 s{sT0}, s{sT0}, s{sQ}')
    e(f's_sub_u32 s{sCt}, s{sT1}, s{sT0}')
    e(f's_lshr_b32 s{sT2}, s{sT2}, 24')
    e(f's_add_u32 s{sCt}, s{sCt}, s{sT2}')
    e(f's_mul_i32 s{sT0}, s{sQ}, s{sT3}')
    e(f's_lshl2_add_u32 s{sB0}, s{sB0}, s{sT0}')
    e(f's_add_u32 s{sNv}, s{sB0}, s{sT3}')
    e(f's_min_u32 s{sNv}, s{sNv}, 0x400')
    e(f's_mulk_i32 s{sNv}, 4608')
if FLIP:
    e(f's_lshr_b32 s{sF}, 0x38, s{sQ}')
    e(f's_and_b32 s{sF}, s{sF}, 1')
e(f's_lshr_b32 s{sWave}, s3, 6')
e('v_and_b32 v1, 63, v0')
e(f's_cmp_ge_u32 s{sWave}, 4')
e('s_cbranch_scc1 L_consumer')

vX = [10, 11, 12, 13, 14]
vW = [15, 16, 17]
vOOB = 18
vP = 20
e(f's_add_u32 s{sG}, s{sQ}, s{sCt}')
div_small(sT1, sG, 3, 40)
e('v_lshrrev_b32 v2, 3, v1')
e(f's_mul_i32 s{sT1}, s{sT1}, 3')
e('v_and_b32 v3, 7, v1')
e(f's_sub_u32 s{sG}, s{sG}, s{sT1}')
e('v_and_b32 v9, 2, v2')
e(f's_and_b32 s{sT2}, s{sWave}, 1')
e('v_mul_u32_u24 v8, 1152, v2')
e(f's_lshl_b32 s{sT3}, s{sT2}, 2')
e('v_xor_b32 v9, v9, v3')
e(f's_mul_i32 s{sT0}, s{sWave}, 72')
e(f'v_xor_b32 v9, s{sT3}, v9')
e(f's_add_u32 s{sT0}, s{sT0}, s{sCt}')
e('v_lshl_add_u32 v9, v9, 4, v8')
e(f's_lshl_b32 s{sT0}, s{sT0}, 7')
e(f's_mov_b32 s{sW+2}, {W_BYTES}')
e(f'v_add_u32 v{vW[0]}, s{sT0}, v9')
e(f's_mov_b32 s{sW+3}, 0x20000')
e(f'v_add_u32 v{vW[1]}, {TAP-1024}, v{vW[0]}')
if FIRST_IS_G:
    if FLIP:
        e(f's_lshl1_add_u32 s{sK}, s{sG}, s{sF}')
        e(f's_mul_i32 s{sK}, s{sK}, {32*ROW}')
    else:
        e(f's_mul_i32 s{sK}, s{sG}, {64*ROW}')
else:
    e(f's_mul_i32 s{sK}, s{sF}, {32*ROW}' if FLIP else f's_mov_b32 s{sK}, 0')
e(f'v_add_u32 v{vW[2]}, {2*TAP-2048}, v{vW[0]}')
e(f's_mul_i32 s{sWl}, s{sWave}, 6144')
e('v_lshrrev_b32 v4, 4, v1')
e(f's_add_u32 s{sWl}, s{sWl}, {WBASE}')
e('v_xor_b32 v5, v3, v4')
e(f's_mov_b32 m0, s{sWl}')
e('v_lshlrev_b32 v5, 4, v5')
e(f's_mov_b32 s{sX+3}, s{sW+3}')
e('v_lshl_add_u32 v6, v8, 2, v5')
def lstamp(lane_expr):
    if LST:
        e('s_memrealtime s[92:93]')
        e('s_waitcnt lgkmcnt(0)')
        e(f's_mov_b32 s95, {lane_expr}')
        e('v_mov_b32 v31, s92')
        e('v_cmp_eq_u32 vcc, s95, v1')
        e('s_nop 1')
        e('v_cndmask_b32 v30, v30, v31, vcc')
def dw(tap): e(f'buffer_load_dwordx4 v{vW[tap]}, s[{sW}:{sW+3}], s{sK} offen' + (f' offset:{tap*1024}' if tap else '') + ' lds')
def dx(i): e(f'buffer_load_dwordx4 v{vX[i]}, s[{sX}:{sX+3}], s{sT0} offen' + (f' offset:{i*1024}' if 0 < i < 4 else '') + f'{XNT} lds')
def ld_flag():
    e(f's_mov_b32 m0, s{sFl}')
    e('s_mov_b64 exec, 1')
    e(f'buffer_load_dword v{vOOB}, s[{sW}:{sW+3}], 0 offen lds')
    e('s_mov_b64 exec, -1')
    e(f's_add_u32 s{sFl}, s{sFl}, 16')
e('s_waitcnt lgkmcnt(0)')
if LST:
    e(f'v_mov_b32 v30, s{sStamp}')
    lstamp(2)
dw(0)
e(f's_lshl2_add_u32 s{sT1}, s{sB0}, s{sWave}')
e(f's_mulk_i32 s{sT1}, 1152')
e(f's_lshl_b32 s{sFl}, s{sWave}, 2')
dw(1)
e(f'v_add_u32 v{vX[0]}, s{sT1}, v6')
e(f's_mul_i32 s{sXl}, s{sWave}, 5120')
e(f'v_xor_b32 v{vX[1]}, 64, v{vX[0]}')
e(f's_lshl_b32 s{sT0}, s{sG}, 7' if FIRST_IS_G else f's_mov_b32 s{sT0}, 0')
dw(2)
e(f's_mov_b32 m0, s{sXl}')
e(f'v_add_u32 v{vX[1]}, {8*4608-1024}, v{vX[1]}')
dx(0)
e(f'v_add_u32 v{vX[2]}, {20*4608-2048}, v{vX[0]}')
e(f's_lshr_b32 s{sT1}, s{sWave}, 1')
e(f's_add_u32 s{sFl}, s{sFl}, {FLAGL}')
dx(1)
e(f'v_add_u32 v{vX[3]}, {20*4608-2048}, v{vX[1]}')
e(f's_mul_i32 s{sT1}, s{sT1}, 10')
e(f's_add_u32 s{sT1}, s{sT1}, s{sT2}')
e(f'v_lshl_add_u32 v2, v1, 4, s{sFl}')
e(f'v_bfrev_b32 v{vOOB}, 2')
dx(2)
e(f'ds_write_b32 v2, v{vOOB}')
e(f's_lshl1_add_u32 s{sT1}, s{sT1}, s{sB0}')
e(f's_add_u32 s{sT1}, s{sT1}, 16')
e(f's_mulk_i32 s{sT1}, 4608')
e(f's_lshl_b32 s{sT3}, s{sT2}, 6')
dx(3)
e(f'v_xor_b32 v9, s{sT3}, v5')
e(f's_add_u32 m0, s{sXl}, 4096')
e(f'v_add3_u32 v{vX[4]}, v9, v8, s{sT1}')
dx(4)
e('s_waitcnt lgkmcnt(0)')
ld_flag()
lstamp(4)
if FLIP:
    e(f's_mul_i32 s{sKf}, s{sF}, {32*ROW}')
    e(f's_lshl_b32 s{sKd}, s{sKf}, 1')
    e(f's_sub_u32 s{sKd}, {32*ROW}, s{sKd}')
KD = f's{sKd}' if FLIP else f'{32*ROW}'
e(f's_add_u32 m0, s{sWl}, 3072')
e(f's_add_u32 s{sK}, s{sK}, {KD}')
dw(0); dw(1); dw(2)
ld_flag()
e('s_load_dwordx8 s[8:15], s[0:1], 16')
lstamp(6)
e('s_barrier')
ps = [pack(o[1:]) for o in orders]
e(f's_mov_b32 s{sOrd}, {ps[0]}')
for g in (1, 2):
    e(f's_cmp_eq_u32 s{sG}, {g}')
    e(f's_cselect_b32 s{sOrd}, {ps[g]}, s{sOrd}')
e(f's_cmp_lg_u32 s{sWave}, 3')
e('s_cbranch_scc1 L_lnop')
e(f's_lshl_b32 s{sT1}, s{sCt}, 7')
e(f'v_lshl_add_u32 v{vP+4}, v1, 1, s{sT1}')
e('s_waitcnt lgkmcnt(0)')
for p in range(4):
    e(f'global_load_ushort v{vP+p}, v{vP+4}, s[{8+2*p}:{9+2*p}]')
e('L_lnop:')
e(f's_mov_b32 s{sIt}, 1')
e(f's_mov_b32 s{sSl}, 0')
def advance():
    e(f's_add_u32 s{sSl}, s{sSl}, 1')
    e(f's_cmp_eq_u32 s{sSl}, 3')
    e(f's_cselect_b32 s{sSl}, 0, s{sSl}')
    e(f's_mov_b32 s{sDX}, {XSLOT}')
    e(f's_cselect_b32 s{sDX}, {(-2*XSLOT) & 0xffffffff}, s{sDX}')
    e(f's_mov_b32 s{sDW}, {WSLOT}')
    e(f's_cselect_b32 s{sDW}, {(-2*WSLOT) & 0xffffffff}, s{sDW}')
    e(f's_add_u32 s{sXl}, s{sXl}, s{sDX}')
    e(f's_add_u32 s{sWl}, s{sWl}, s{sDW}')
    e(f's_and_b32 s{sK}, s{sOrd}, 15')
    e(f's_lshl_b32 s{sT0}, s{sK}, 7')
    e(f's_mul_i32 s{sK}, s{sK}, {64*ROW}')
    if FLIP: e(f's_add_u32 s{sK}, s{sK}, s{sKf}')
    e(f's_lshr_b32 s{sOrd}, s{sOrd}, 4')
def issue_x():
    e(f's_mov_b32 m0, s{sXl}')
    e('s_nop 0')
    for i in range(4): dx(i)
    e(f's_add_u32 m0, s{sXl}, 4096')
    e('s_nop 0')
    dx(4)
def issue_w(ks):
    if ks:
        e(f's_add_u32 m0, s{sWl}, 3072')
        e(f's_add_u32 s{sK}, s{sK}, {KD}')
    else:
        e(f's_mov_b32 m0, s{sWl}')
        e('s_nop 0')
    for tap in range(3): dw(tap)
e('L_lloop:')
advance()
e(f's_cmp_lt_u32 s{sIt}, 3')
e('s_cbranch_scc1 L_lfree')
e('s_barrier')
e('L_lfree:')
issue_x(); issue_w(0)
e(f's_cmp_eq_u32 s{sIt}, 8')
e('s_cbranch_scc1 L_llast')
issue_w(1)
ld_flag()
if LST:
    e(f's_lshl_b32 s94, s{sIt}, 1')
    e('s_add_u32 s94, s94, 6')
lstamp('s94')
e(f's_add_u32 s{sIt}, s{sIt}, 1')
e('s_branch L_lloop')
e('L_llast:')
ld_flag()
issue_w(1)
e(f's_cmp_lg_u32 s{sWave}, 3')
e('s_cbranch_scc1 L_lfin')
e('s_waitcnt vmcnt(12)')
for p in range(4):
    e(f'v_lshlrev_b32 v{vP+p}, 16, v{vP+p}')
e(f'v_add_f32 v{vP+1}, 0x3727c5ac, v{vP+1}')
e(f'v_rsq_f32 v{vP+1}, v{vP+1}')
e(f'v_mul_f32 v{vP+2}, 0xbfb8aa3b, v{vP+2}')
e(f'v_mul_f32 v{vP+3}, 0xbfb8aa3b, v{vP+3}')
e(f'v_mul_f32 v{vP+2}, v{vP+1}, v{vP+2}')
e(f'v_fma_f32 v{vP+3}, -v{vP}, v{vP+2}, v{vP+3}')
e('v_lshlrev_b32 v2, 2, v1')
e(f'v_add_u32 v2, {PARM}, v2')
e('s_waitcnt vmcnt(0)')
e(f'ds_write_b32 v2, v{vP+2}')
e(f'ds_write_b32 v2, v{vP+3} offset:256')
e('L_lfin:')
e('s_waitcnt vmcnt(0) lgkmcnt(0)')
e('s_barrier')
if LST:
    lstamp(30)
    e('s_load_dwordx2 s[50:51], s[0:1], 64')
    e(f's_lshl_b32 s3, s2, 3')
    e(f's_add_u32 s3, s3, s{sWave}')
    e(f's_mul_i32 s3, s3, {NST*8}')
    e('v_lshl_add_u32 v0, v1, 2, s3')
    e('v_and_b32 v2, 1, v1')
    e('v_cmp_eq_u32 vcc, 0, v2')
    e('s_nop 1')
    e('v_cndmask_b32 v30, 0, v30, vcc')
    e('s_waitcnt lgkmcnt(0)')
    e('s_mov_b64 exec, 0xffffffff')
    e('global_store_dword v0, v30, s[50:51]')
e('s_endpgm')

e('L_consumer:')
e('s_load_dwordx2 s[28:29], s[0:1], 48')
if STAMP: e('s_load_dwordx2 s[50:51], s[0:1], 64')
e('s_setprio 3')
vXa = [2, 3]; vXm = [[4, 5], [252, 253], [6, 7]]
vWa = [8, 9]
vOut = 10; vOutM = 11
vPar = 12
ACC = 16
F = [56, 108, 160]
SC2 = 212; SH2 = 220
T = 228; P = 236; Qs = [240, 244]
cFl, cPoll, cSw, cSr = 248, 249, 250, 251
def acc(tile, t): return ACC + (tile*2 + t)*4
def fx(buf, i): return F[buf] + i*4
def fw(buf, k, t): return F[buf] + 28 + (k*2 + t)*4
A0, A1, A2 = T, T+1, T+2
e('v_and_b32 v13, 15, v1')
e('v_lshrrev_b32 v14, 4, v1')
for r in range(4):
    e(f'v_mov_b32 v{ACC+r}, 0')
e('v_min_u32 v15, 2, v14')
e(f'v_mul_u32_u24 v15, {XSLOT}, v15')
e('v_lshl_add_u32 v15, v13, 4, v15')
e(f'ds_write_b128 v15, v[{ACC}:{ACC+3}] offset:{XBASE+20480}')
e(f's_sub_u32 s{sWave}, s{sWave}, 4')
e(f's_lshr_b32 s{sT0}, s{sWave}, 1')
e(f's_and_b32 s{sT1}, s{sWave}, 1')
e('v_and_b32 v15, 3, v1')
e('v_lshlrev_b32 v15, 2, v15')
e(f'v_add_u32 v{cFl}, {FLAGL}, v15')
GX = 14
if FLIP:
    GX = A2 + 1
    e(f's_lshl_b32 s{sIt}, s{sF}, 2')
    e(f'v_xor_b32 v{GX}, s{sIt}, v14')
e(f's_lshl_b32 s{sT3}, s{sT0}, 11')
e('v_lshrrev_b32 v15, 1, v13')
e(f'v_xor_b32 v15, v15, v{GX}')
e('v_lshlrev_b32 v15, 4, v15')
e('v_lshl_add_u32 v15, v13, 7, v15')
e(f'v_add_u32 v{vXa[0]}, s{sT3}, v15')
e(f'v_xor_b32 v{vXa[1]}, 64, v{vXa[0]}')
e(f's_mul_i32 s{sIt}, s{sT0}, 10240')
e(f's_add_u32 s{sIt}, s{sIt}, 4096')
e(f'v_lshrrev_b32 v{A2}, 3, v13')
e(f'v_lshl_add_u32 v{A2}, v{A2}, 12, s{sIt}')
e(f'v_add_u32 v{vXm[1][0]}, v{A2}, v15')
e(f'v_xor_b32 v{vXm[1][1]}, 64, v{vXm[1][0]}')
for k in (0, 2):
    regs = vXm[k]
    e(f'v_add_u32 v15, {1 if k==2 else 3}, v13')
    e(f'v_bfi_b32 v15, 3, v15, v13')
    e(f'v_lshrrev_b32 v{A0}, 1, v15')
    e(f'v_xor_b32 v{A0}, v{A0}, v{GX}')
    e(f'v_lshlrev_b32 v{A0}, 4, v{A0}')
    e(f'v_lshl_add_u32 v{A0}, v15, 7, v{A0}')
    e(f'v_add_u32 v{A1}, v{A2}, v{A0}')
    e(f'v_and_b32 v{A0}, 0xff, v{A0}')
    e('v_and_b32 v15, 3, v13')
    e(f'v_cmp_eq_u32 vcc, {0 if k==0 else 3}, v15')
    e(f'v_add_u32 v{A0}, {XBASE+20480}, v{A0}')
    e('s_nop 0')
    e(f'v_cndmask_b32 v{regs[0]}, v{A1}, v{A0}, vcc')
    e(f'v_xor_b32 v{regs[1]}, 64, v{regs[0]}')
e('v_lshrrev_b32 v15, 2, v13')
e(f'v_mul_u32_u24 v{A0}, 6144, v14')
e(f'v_lshl_add_u32 v{A0}, v15, 7, v{A0}')
e('v_lshrrev_b32 v15, 1, v15')
e(f'v_and_b32 v{A1}, 1, v14')
e(f'v_lshl_add_u32 v15, v{A1}, 1, v15')
e(f's_lshl_b32 s{sIt}, s{sT1}, 1')
e(f'v_xor_b32 v15, s{sIt}, v15')
e(f'v_lshl_add_u32 v{A0}, v15, 5, v{A0}')
e('v_and_b32 v15, 3, v13')
e(f'v_lshl_add_u32 v{A0}, v15, 3, v{A0}')
e(f'v_add_u32 v{vWa[0]}, {WBASE}, v{A0}')
e(f'v_xor_b32 v{vWa[1]}, 32, v{vWa[0]}')
assert WBASE % 256 == 0
e('s_waitcnt lgkmcnt(0)')
e('s_barrier')
sNL = 46
deferred = [
 f's_mov_b32 s{sOut+2}, s{sNv}', f's_mov_b32 s{sOut+3}, 0x20000',
 f's_lshl_b32 s{sIt}, s{sT1}, 7', f's_add_u32 s{sIt}, s{sIt}, {PARM}',
 f'v_lshl_add_u32 v{vPar}, v14, 4, s{sIt}',
 f's_lshl_b32 s{sIt}, s{sWave}, 10', f's_add_u32 s{sIt}, s{sIt}, {STG}',
 'v_and_b32 v15, 1, v14', 'v_lshlrev_b32 v15, 1, v15', f'v_lshrrev_b32 v{A0}, 1, v14', f'v_or_b32 v15, v15, v{A0}',
 f'v_bfe_u32 v{A0}, v13, 1, 2', f'v_xor_b32 v15, v15, v{A0}', 'v_lshlrev_b32 v15, 4, v15', 'v_lshl_add_u32 v15, v13, 6, v15',
 f'v_add_u32 v{cSw}, s{sIt}, v15', f'v_lshl_add_u32 v{cSr}, v1, 4, s{sIt}',
 f's_lshl_b32 s{sT2}, s{sCt}, 7', f's_lshl_b32 s{sT3}, s{sT1}, 6', f's_add_u32 s{sT2}, s{sT2}, s{sT3}',
 f's_mul_i32 s{sIt}, s{sT0}, 20', f's_add_u32 s{sIt}, s{sIt}, s{sB0}', f's_mulk_i32 s{sIt}, 4608', f's_add_u32 s{sIt}, s{sIt}, s{sT2}',
 'v_bfe_u32 v15, v1, 3, 2', f'v_and_b32 v{A0}, 3, v1', f'v_xor_b32 v15, v15, v{A0}', f'v_lshl_add_u32 v15, v15, 4, s{sIt}',
 f'v_lshrrev_b32 v{A0}, 2, v1', f'v_mul_u32_u24 v{vOutM}, 1152, v{A0}', f'v_lshl_add_u32 v{vOut}, v{vOutM}, 2, v15',
 f'v_add_u32 v{vOutM}, v{vOutM}, v15', f'v_add_u32 v{vOutM}, {16*4608}, v{vOutM}',
 f's_mov_b32 s{sNL}, 0xbfb8aa3b', f's_mov_b32 s{sNL+1}, 0xbfb8aa3b']

def rx(buf, slot, h, i):
    xo = XBASE + slot*XSLOT
    if i < 4: return f'ds_read_b128 v[{fx(buf,i)}:{fx(buf,i)+3}], v{vXa[h]} offset:{xo + i*5120}'
    return f'ds_read_b128 v[{fx(buf,i)}:{fx(buf,i)+3}], v{vXm[i-4][h]} offset:{xo}'
def rw(buf, slot, h, k, t):
    r = []
    for hp in range(2):
        d = fw(buf, k, t) + 2*hp
        off = slot*WSLOT + (h*3+k)*1024 + hp*512
        r.append(f'ds_read_b64_tr_b16 v[{d}:{d+1}], v{vWa[t]} offset:{off}')
    return r
CHAIN = 'nochain' not in opt
def reads(buf, slot, h):
    X = lambda i: rx(buf, slot, h, i)
    W = lambda k, t: rw(buf, slot, h, k, t)
    if CHAIN:
        early = W(1,0) + [X(0)] + W(2,0) + [X(1)] + W(1,1) + W(2,1) + W(0,0) + [X(2)] + W(0,1)
        late = [X(3), X(4), X(5), X(6)]
        return early, late
    early = W(0,0) + [X(0), X(1), X(2), X(4)] + W(0,1) + W(1,0) + [X(3), X(5)] + W(1,1)
    late = W(2,0) + [X(6)] + W(2,1)
    return early, late
NL = 4 if CHAIN else 5
touched = set()
def mf(a, A, B):
    c = f'v[{a}:{a+3}]' if a in touched else '0'
    touched.add(a)
    return f'v_mfma_f32_16x16x32_bf16 v[{a}:{a+3}], v[{A}:{A+3}], v[{B}:{B+3}], {c}'
def tile_mfmas(tile, buf):
    r = []
    for t in range(2):
        for k in range(3):
            if tile < 4:
                sp = tile + k - 1
                if 0 <= sp <= 3: r.append(mf(acc(tile, t), fw(buf,k,t), fx(buf,sp)))
            else:
                r.append(mf(acc(4, t), fw(buf,k,t), fx(buf,4+k)))
    return r
def mfmas(buf):
    if CHAIN: return [m for tl in range(5) for m in tile_mfmas(tl, buf)]
    r = []
    for k in range(3):
        for t in range(2):
            for s in range(4):
                sp = s + k - 1
                if 0 <= sp <= 3:
                    r.append(mf(acc(s, t), fw(buf,k,t), fx(buf,sp)))
            r.append(mf(acc(4, t), fw(buf,k,t), fx(buf,4+k)))
    return r
def emit_phase(ms, fill, defer=False):
    assert len(fill) <= len(ms), len(fill)
    for i, m in enumerate(ms):
        e(m)
        if i < len(fill) and fill[i]:
            for x in fill[i]: e(x)
        elif defer and deferred:
            e(deferred.pop(0))
def poll(fidx): return f'ds_read_b32 v{cPoll}, v{cFl} offset:{16*fidx}'
spin_sites = []
def check(name, fidx):
    spin_sites.append((name, fidx))
    return [f'v_cmp_ne_u32 vcc, 0, v{cPoll}'], [f's_cbranch_vccnz L_cspin{name}', f'L_cback{name}:']

if STAMP:
    e(f's_mov_b32 s{sStamp+16}, 0')
    e(f's_mov_b32 s{sStamp+17}, 0')
stamp(1)
e('L_cpoll0:')
e(poll(0))
e('s_waitcnt lgkmcnt(0)')
e(f'v_cmp_ne_u32 vcc, 0, v{cPoll}')
e('s_cbranch_vccnz L_cpoll0')
stamp(2)
cstamp(5)
ea, la = reads(0, 0, 0)
for r in ea + la: e(r)
W2 = int(opt.get('w2', 8))
BPOS = [int(v) for v in opt.get('bpos', '4,4,4,4,4,4').split(',')]
def build_fill(pre, seq, wait_at, bar_at):
    fill = list(pre) + [[x] for x in seq]
    wpos = len(pre) + wait_at
    fill.insert(wpos, [f's_waitcnt lgkmcnt({wait_at})'])
    if bar_at is not None:
        while len(fill) <= bar_at: fill.append([])
        fill[bar_at] = fill[bar_at] + ['s_barrier']
    return fill, wpos
for n in range(7):
    u = n % 3
    ea, la = reads(1, u, 1)
    bar = BPOS[n-1] - 26 if (1 <= n <= 6 and BPOS[n-1] >= 26) else None
    if n == 0:
        X = [rx(1, 0, 1, i) for i in range(7)]
        c0, c1 = check('A0', 1)
        if CHAIN:
            e('s_waitcnt lgkmcnt(9)')
            Wr = [x for k, t in ((1,0),(2,0),(1,1),(2,1),(0,0),(0,1)) for x in rw(1, 0, 1, k, t)]
            fill = [[X[0]], [X[1]], [X[2]], [poll(1), 's_waitcnt lgkmcnt(8)'], [X[3]], [X[4]], [X[5]], [X[6], 's_waitcnt lgkmcnt(4)'], c0, c1]
            fill += [[x] for x in Wr[:6]] + [[poll(2)]] + [[x] for x in Wr[6:]]
        else:
            e('s_waitcnt lgkmcnt(13)')
            Wr = [x for k in range(3) for t in range(2) for x in rw(1, 0, 1, k, t)]
            fill = [[X[0]], [X[1]], [X[2]], [poll(1), 's_waitcnt lgkmcnt(9)'], [X[4]], [X[3]], [X[5]], [X[6], 's_waitcnt lgkmcnt(4)'], c0, c1]
            fill += [[x] for x in Wr[:7]] + [[poll(2)]] + [[x] for x in Wr[7:]]
    else:
        e(f's_waitcnt lgkmcnt({NL})')
        fill, _ = build_fill([], ea + [poll(n+2)] + la, W2, bar)
    emit_phase(mfmas(0), fill, defer=True)
    e(f's_waitcnt lgkmcnt({4 if n == 0 else NL})')
    ea, la = reads(0, (u+1) % 3, 0)
    c0, c1 = check(f'B{n}', n+2)
    if 'pst' in opt: c1 = c1 + [f's_memrealtime s[{84+2*n}:{85+2*n}]'] if n < 6 else c1 + ['s_memrealtime s[4:5]']
    bar = BPOS[n] if (n <= 5 and BPOS[n] < 26) else None
    wa = W2 if bar is None else max(0, min(W2, bar - 2))
    if CHAIN and n == 0: wa = min(wa, 1)
    fill, wpos = build_fill([c0, c1], ea + la, wa, bar)
    assert bar is None or bar >= wpos
    emit_phase(mfmas(1), fill, defer=True)
assert not deferred
e(f's_waitcnt lgkmcnt({NL})')
c0, c1 = check('T', 9)
ea, la = reads(1, 1, 1)
r15 = ea + la
ea, la = reads(2, 2, 0)
r16 = ea + la
def group2(rs):
    g = []; i = 0
    while i < len(rs):
        if 'tr_b16' in rs[i] and i+1 < len(rs) and 'tr_b16' in rs[i+1]:
            g.append([rs[i], rs[i+1]]); i += 2
        else:
            g.append([rs[i]]); i += 1
    return g
g15 = group2(r15); g16 = group2(r16)
g15 = [[poll(9)] + g15[0]] + g15[1:]
n_first = sum(len(x) for x in g15[:6])
g15[5] = g15[5] + [f's_waitcnt lgkmcnt({n_first - 1})']
g15[-2] = g15[-2] + c0
g15[-1] = g15[-1] + c1
fill = g15 + g16[:26-len(g15)]
left16 = [x for gg in g16[26-len(g15):] for x in gg]
fill[-1] = fill[-1] + ['s_barrier']
emit_phase(mfmas(0), fill)
stamp(3)
cstamp(6)
X = lambda i: rx(0, 2, 1, i)
W = lambda k, t: rw(0, 2, 1, k, t)
par = [f'ds_read_b128 v[{SC2}:{SC2+3}], v{vPar}', f'ds_read_b128 v[{SC2+4}:{SC2+7}], v{vPar} offset:64',
       f'ds_read_b128 v[{SH2}:{SH2+3}], v{vPar} offset:256', f'ds_read_b128 v[{SH2+4}:{SH2+7}], v{vPar} offset:320']
first17 = W(1,0) + [X(0)] + W(2,0) + [X(1)] + W(1,1) + W(2,1) + par
rest17 = W(0,0) + [X(2), X(3)] + W(0,1) + [X(4), X(5), X(6)]
head = tile_mfmas(0, 1) + tile_mfmas(3, 1) + tile_mfmas(0, 2) + tile_mfmas(3, 2)
n16_issued = len(r16) - len(left16)
e(f's_waitcnt lgkmcnt({min(12, n16_issued)})')
rq = left16 + first17 + rest17
gq = group2(rq)
issued = 0
def pop_reads():
    global issued
    if gq:
        for x in gq.pop(0):
            e(x); issued += 1
for i, m in enumerate(head):
    if i == 8:
        e(f's_waitcnt lgkmcnt({min(12, issued - len(left16))})')
    e(m); pop_reads()
e(f's_waitcnt lgkmcnt({min(12, issued - len(left16) - len(first17))})')
for m in tile_mfmas(0, 0):
    e(m); pop_reads()
assert not gq
e('s_waitcnt lgkmcnt(3)')
rest = tile_mfmas(3, 0) + tile_mfmas(1, 1) + tile_mfmas(1, 2) + tile_mfmas(1, 0) + tile_mfmas(2, 1) + tile_mfmas(2, 2) + tile_mfmas(2, 0) \
     + tile_mfmas(4, 1) + tile_mfmas(4, 2) + ['WAIT0'] + tile_mfmas(4, 0)
done_at = {0: 0, 3: 4, 1: 22, 2: 40, 4: 58}
emitted = 0
since = {0: 1}
def em(m):
    global emitted
    if m == 'WAIT0':
        e('s_waitcnt lgkmcnt(0)'); m = rest.pop(0)
    e(m); emitted += 1
    for k in since: since[k] += 1
    for tl, at in done_at.items():
        if at == emitted: since[tl] = 0
def ev(x):
    e(x)
    for k in since: since[k] += 1
def need(tl):
    while tl not in since: em(rest.pop(0))
    while since[tl] < 8:
        if rest: em(rest.pop(0))
        else:
            e(f's_nop {8 - since[tl] - 1}'); since[tl] = 8
def cost(ins):
    if 'exp' in ins or 'rcp' in ins: return 8
    if 'v_pk' in ins or 'v_fma' in ins: return 5
    return 4
def tile_ops(tile, Q):
    a0 = acc(tile, 0)
    def two(pkf, sf):
        return [('pk', pkf(i), [sf(i), sf(i+1)]) for i in range(0, 8, 2)]
    ops = []
    ops += two(lambda i: f'v_pk_fma_f32 v[{a0+i}:{a0+i+1}], v[{a0+i}:{a0+i+1}], v[{SC2+i}:{SC2+i+1}], v[{SH2+i}:{SH2+i+1}]',
               lambda i: f'v_fma_f32 v{a0+i}, v{a0+i}, v{SC2+i}, v{SH2+i}')
    ops += [('s', f'v_exp_f32 v{T+i}, v{a0+i}') for i in range(8)]
    ops += two(lambda i: f'v_pk_fma_f32 v[{T+i}:{T+i+1}], v[{T+i}:{T+i+1}], s[{sNL}:{sNL+1}], s[{sNL}:{sNL+1}]',
               lambda i: f'v_fma_f32 v{T+i}, v{T+i}, s{sNL}, s{sNL}')
    ops += [('s', f'v_rcp_f32 v{T+i}, v{T+i}') for i in range(8)]
    ops += two(lambda i: f'v_pk_mul_f32 v[{a0+i}:{a0+i+1}], v[{a0+i}:{a0+i+1}], v[{T+i}:{T+i+1}]',
               lambda i: f'v_mul_f32 v{a0+i}, v{a0+i}, v{T+i}')
    ops += [('s', f'v_cvt_pk_bf16_f32 v{P+i//2}, v{a0+i}, v{a0+i+1}') for i in range(0, 8, 2)]
    ops += [('s', 's_nop 1'), ('s', f'v_permlane16_swap_b32 v{P}, v{P+2}'), ('s', f'v_permlane16_swap_b32 v{P+1}, v{P+3}'),
            ('s', f'ds_write_b128 v{cSw}, v[{P}:{P+3}]'), ('s', f'ds_read_b128 v[{Q}:{Q+3}], v{cSr}')]
    return ops
def tile_store(tile, Q):
    if tile < 4:
        return f'buffer_store_dwordx4 v[{Q}:{Q+3}], v{vOut}, s[{sOut}:{sOut+3}], 0 offen offset:{tile*1152} {STF}'
    return f'buffer_store_dwordx4 v[{Q}:{Q+3}], v{vOutM}, s[{sOut}:{sOut+3}], 0 offen {STL}'
pend = None
budget = 0
GAPV = int(opt.get('gapv', 8))
for n, tl in enumerate([0, 3, 1, 2, 4]):
    Q = Qs[n % 2]
    need(tl)
    for i, op in enumerate(tile_ops(tl, Q)):
        if op[0] == 'pk':
            ins = [op[1]] if (PK == 2 or (PK == 1 and not rest)) else op[2]
        else:
            ins = [op[1]]
        for x in ins:
            ev(x); budget += cost(x)
            if rest and budget >= GAPV:
                em(rest.pop(0)); budget = 0
        if pend is not None and i == 12:
            ev('s_waitcnt lgkmcnt(0)')
            ev(tile_store(*pend)); pend = None
    pend = (tl, Q)
e('s_waitcnt lgkmcnt(0)')
e(tile_store(*pend))
stamp(4)
cstamp(7)
if 'pst' in opt:
    e(f's_mov_b32 s{sStamp+18}, s84'); e(f's_mov_b32 s{sStamp+19}, s86')
    e(f's_mov_b32 s{sStamp+20}, s88'); e(f's_mov_b32 s{sStamp+21}, s90')
    e(f's_mov_b32 s{sStamp+22}, s92'); e(f's_mov_b32 s{sStamp+23}, s94')
    e(f's_mov_b32 s{sStamp+28}, s4'); e(f's_mov_b32 s{sStamp+29}, s4')
stamp_flush([0,1,2,3,4,5,6,7,8] + ([9,10,11,14] if 'pst' in opt else []))
e('s_endpgm')
for name, fidx in spin_sites:
    e(f'L_cspin{name}:')
    if STAMP: e(f's_add_u32 s{sStamp+16}, s{sStamp+16}, 1')
    e(poll(fidx))
    e('s_waitcnt lgkmcnt(0)')
    e(f'v_cmp_ne_u32 vcc, 0, v{cPoll}')
    e(f's_cbranch_vccnz L_cspin{name}')
    e(f's_branch L_cback{name}')
e('L_end:')
e('s_endpgm')

body = '\n'.join(out)
text = HEADER + f'''; Override launch geometry by editing the next line (default: block=256,
; grid=ceil(out_elems/256), lds=0). Harness parses it; keep it on one line.
; @launch grid=({NWG},1,1) block=(512,1,1) lds={LDS_BYTES}
.amdgcn_target "amdgcn-amd-amdhsa--gfx950"
.text
.globl standalone__batchnorm__sampling_kernel
.p2align 8
.type standalone__batchnorm__sampling_kernel,@function
standalone__batchnorm__sampling_kernel:
{body}
.section .rodata,"a"
.p2align 6
.amdhsa_kernel standalone__batchnorm__sampling_kernel
  .amdhsa_next_free_vgpr 256
  .amdhsa_next_free_sgpr 96
  .amdhsa_accum_offset 256
  .amdhsa_group_segment_fixed_size 0
  .amdhsa_kernarg_size 72
  .amdhsa_user_sgpr_count 2
  .amdhsa_user_sgpr_kernarg_segment_ptr 1
  .amdhsa_system_sgpr_workgroup_id_x 1
.end_amdhsa_kernel
'''
open(dst, 'w').write(text)
```

```python
import sys
opt = {}
dst = 'standalone__batchnorm__sampling.s'
for a in sys.argv[1:]:
    if a.startswith('--'):
        k, _, v = a[2:].partition('=')
        opt[k] = v if v else True
    else:
        dst = a
STAMP = 'stamp' in opt
AMP = None
if 'amp' in opt:
    AMP = tuple(int(v) for v in opt['amp'].split(',')); STAMP = True
MAP = opt.get('map', 'p4')
ORDER = opt.get('order', '013246578_120435768_201354687')
XNT = ' nt' if 'xnt' in opt else ''
STF = opt.get('stf', 'sc1').replace('+', ' ')
STL = opt.get('stl', STF).replace('+', ' ').replace('none', '')
PK = int(opt.get('pk', 1))
FLIP = MAP == 'p4' and 'noflip' not in opt
LST = 'lst' in opt
NF0 = opt.get('nf0')
PERM = [int(c) for c in opt.get('perm', '012')]
CLS = PERM != [0, 1, 2]
sC = 49
PF = opt.get('ppos', 'mid')

out = []
def e(s=''):
    if 'nodma' in opt and s.startswith('buffer_load_dwordx4') and s.endswith('lds'): return
    out.append('    ' + s if s and not s.endswith(':') else s)

HEADER = open('standalone__batchnorm__sampling.s.ref').read().split('; Override launch')[0]

WSLOT = 24576
XSLOT = 20480 + 256
XBASE = 0
WBASE = XSLOT * 3
FLAGL = WBASE + WSLOT * 3
PARM = FLAGL + 1024
STG = PARM + 512
FULL = 'full' in opt
LDS_BYTES = STG + (20480 if FULL else 4096)
assert LDS_BYTES <= 163840
X_BYTES = 1024*4*576*2
W_BYTES = 3*576*576*2
TAP = 576*576*2
ROW = 1152

sX, sW, sOut = 20, 24, 28
sWave, sQ, sCt, sB0 = 32, 33, 34, 35
sT0, sT1, sT2, sT3 = 36, 37, 38, 39
sXl, sF, sWl, sK = 40, 41, 42, 43
sIt, sDX, sDW = 44, 45, 46
sSl, sFl = 47, 48
sOrd, sG, sKd, sKf = 16, 17, 18, 19
sNv = sX + 2
sStamp = 52
NST = 16
def stamp(i):
    if STAMP: e(f's_memrealtime s[{sStamp+2*i}:{sStamp+2*i+1}]')
def cstamp(i):
    if STAMP: e(f's_memtime s[{sStamp+2*i}:{sStamp+2*i+1}]')
def stamp_flush(used):
    if not STAMP: return
    e('s_waitcnt vmcnt(0) lgkmcnt(0)')
    stamp(NST-1)
    e(f's_memtime s[{sStamp+26}:{sStamp+27}]')
    e('s_waitcnt lgkmcnt(0)')
    if AMP is not None:
        e(f's_sub_u32 s3, s{sStamp+2*AMP[1]}, s{sStamp+2*AMP[0]}')
        e(f's_mul_i32 s3, s3, {AMP[3] if len(AMP) > 3 else 20}')
        e(f's_add_u32 s3, s3, s{sStamp+2*(NST-1)}')
        e('L_amp:')
        e('s_memrealtime s[4:5]')
        e('s_waitcnt lgkmcnt(0)')
        e('s_sub_u32 s6, s4, s3')
        e('s_cmp_lt_i32 s6, 0')
        e('s_cbranch_scc1 L_amp')
        return
    e(f's_lshl_b32 s3, s2, 3')
    e(f's_add_u32 s3, s3, s{sWave}')
    e('s_add_u32 s3, s3, 4')
    e(f's_mul_i32 s3, s3, {NST*8}')
    e('v_mov_b32 v0, s3')
    e('s_mov_b64 exec, 1')
    for i in used + [12, 13, NST-1]:
        e(f'v_mov_b32 v2, s{sStamp+2*i}')
        e(f'v_mov_b32 v3, s{sStamp+2*i+1}')
        e(f'global_store_dwordx2 v0, v[2:3], s[50:51] offset:{8*i}')
        e('s_nop 1')
def div_small(dstr, src_, d, maxv):
    for sh in range(4, 16):
        m = -(-(1 << sh) // d)
        if m <= 64 and all((t*m) >> sh == t // d for t in range(maxv+1)):
            e(f's_mul_i32 s{dstr}, s{src_}, {m}')
            e(f's_lshr_b32 s{dstr}, s{dstr}, {sh}')
            return
    assert 0
def pack(order): return sum(s << (4*i) for i, s in enumerate(order))
orders = [[int(ch) for ch in o] for o in ORDER.split('_')]
for g, o in enumerate(orders): assert sorted(o) == list(range(9)), o
assert len(orders) == 3
FIRST_IS_G = all(o[0] == g for g, o in enumerate(orders))
FIRST_IS_0 = all(o[0] == 0 for o in orders)
assert FIRST_IS_G or FIRST_IS_0

e(f's_load_dwordx2 s[{sW}:{sW+1}], s[0:1], 8')
e(f's_load_dwordx2 s[{sX}:{sX+1}], s[0:1], 0')
if PF == 'front': e('s_load_dwordx8 s[8:15], s[0:1], 16')
if STAMP:
    stamp(0)
    e(f's_memtime s[{sStamp+24}:{sStamp+25}]')
e(f's_lshr_b32 s{sT1}, s2, 3')
if 'nocpf' not in opt:
    e('s_getpc_b64 s[30:31]')
    e('L_pc:')
    e('v_and_b32 v2, 0x180, v0')
    e(f'v_lshl_add_u32 v2, s{sT1}, 9, v2')
    e('v_min_u32 v2, L_end-L_pc, v2')
    e('global_load_dword v255, v2, s[30:31]')
e('v_readfirstlane_b32 s3, v0')
e(f's_and_b32 s{sT0}, s2, 7')
if MAP == 'p3':
    NWG = 240
    e(f's_mul_i32 s{sT2}, s{sT0}, 27')
    e(f's_mul_i32 s{sT3}, s{sT0}, 3')
    e(f's_addk_i32 s{sT3}, {216-27}')
    e(f's_cmp_ge_u32 s{sT1}, 27')
    e(f's_cselect_b32 s{sT2}, s{sT3}, s{sT2}')
    e(f's_add_u32 s{sT2}, s{sT2}, s{sT1}')
    e(f's_cmp_ge_u32 s{sT1}, 30')
    e(f's_cselect_b32 s{sT2}, -1, s{sT2}')
    e(f's_cmpk_ge_u32 s{sT2}, 234')
    e('s_cbranch_scc1 L_end')
    div_small(sQ, sT2, 9, 233)
    e(f's_mul_i32 s{sT0}, s{sQ}, 9')
    e(f's_sub_u32 s{sCt}, s{sT2}, s{sT0}')
    e(f's_mul_i32 s{sB0}, s{sQ}, 40')
    e(f's_mov_b32 s{sNv}, {X_BYTES}')
else:
    NWG = 256
    def P(M, ncol, lim, c0):
        assert all((j*M) >> 8 == j // ncol for j in range(lim))
        return M | ncol << 8 | lim << 16 | c0 << 24
    e(f's_mul_i32 s{sB0}, s{sT0}, 60')
    e(f's_mul_i32 s{sT2}, s{sT0}, 80')
    e(f's_sub_u32 s{sT2}, s{sT2}, 320')
    e(f's_cmp_lt_u32 s{sT0}, 4')
    e(f's_cselect_b32 s{sB0}, s{sB0}, s{sT2}')
    e(f's_mov_b32 s{sT2}, {P(64, 4, 32, 5)}')
    e(f's_cselect_b32 s{sT2}, {P(52, 5, 30, 0)}, s{sT2}')
    e(f's_cmp_eq_u32 s{sT0}, 7')
    e(f's_cselect_b32 s{sT2}, {P(29, 9, 27, 0)}, s{sT2}')
    e(f's_cselect_b32 s{sT3}, 22, 40')
    e(f's_bfe_u32 s{sT0}, s{sT2}, 0x80010')
    e(f's_cmp_ge_u32 s{sT1}, s{sT0}')
    e('s_cbranch_scc1 L_end')
    e(f's_and_b32 s{sQ}, s{sT2}, 0xff')
    e(f's_mul_i32 s{sQ}, s{sQ}, s{sT1}')
    e(f's_lshr_b32 s{sQ}, s{sQ}, 8')
    e(f's_bfe_u32 s{sT0}, s{sT2}, 0x80008')
    e(f's_mul_i32 s{sT0}, s{sT0}, s{sQ}')
    e(f's_sub_u32 s{sCt}, s{sT1}, s{sT0}')
    e(f's_lshr_b32 s{sT2}, s{sT2}, 24')
    e(f's_add_u32 s{sCt}, s{sCt}, s{sT2}')
    e(f's_mul_i32 s{sT0}, s{sQ}, s{sT3}')
    e(f's_lshl2_add_u32 s{sB0}, s{sB0}, s{sT0}')
    e(f's_add_u32 s{sNv}, s{sB0}, s{sT3}')
    e(f's_min_u32 s{sNv}, s{sNv}, 0x400')
    e(f's_mulk_i32 s{sNv}, 4608')
if FLIP:
    e(f's_lshr_b32 s{sF}, 0x38, s{sQ}')
    e(f's_and_b32 s{sF}, s{sF}, 1')
e(f's_lshr_b32 s{sWave}, s3, 6')
e('v_and_b32 v1, 63, v0')
e(f's_cmp_ge_u32 s{sWave}, 4')
e('s_cbranch_scc1 L_consumer')

vX = [10, 11, 12, 13, 14]
vW = [15, 16, 17]
vOOB = 18
vP = 20
e(f's_add_u32 s{sG}, s{sQ}, s{sCt}')
div_small(sT1, sG, 3, 40)
e('v_lshrrev_b32 v2, 3, v1')
e(f's_mul_i32 s{sT1}, s{sT1}, 3')
e('v_and_b32 v3, 7, v1')
e(f's_sub_u32 s{sG}, s{sG}, s{sT1}')
sG0 = sG
if CLS:
    e(f's_and_b32 s{sC}, s2, 7')
    e(f's_cmp_eq_u32 s{sC}, 7')
    e(f's_cselect_b32 s{sC}, 31, 0x1e0')
    e(f's_lshr_b32 s{sC}, s{sC}, s{sCt}')
    e(f's_and_b32 s{sC}, s{sC}, 1')
    if PERM[0]:
        sG0 = sOrd
        e(f's_mul_i32 s{sG0}, s{sC}, {3*PERM[0]}')
        e(f's_add_u32 s{sG0}, s{sG0}, s{sG}')
e('v_and_b32 v9, 2, v2')
e(f's_and_b32 s{sT2}, s{sWave}, 1')
e('v_mul_u32_u24 v8, 1152, v2')
e(f's_lshl_b32 s{sT3}, s{sT2}, 2')
e('v_xor_b32 v9, v9, v3')
e(f's_mul_i32 s{sT0}, s{sWave}, 72')
e(f'v_xor_b32 v9, s{sT3}, v9')
e(f's_add_u32 s{sT0}, s{sT0}, s{sCt}')
e('v_lshl_add_u32 v9, v9, 4, v8')
e(f's_lshl_b32 s{sT0}, s{sT0}, 7')
e(f's_mov_b32 s{sW+2}, {W_BYTES}')
e(f'v_add_u32 v{vW[0]}, s{sT0}, v9')
e(f's_mov_b32 s{sW+3}, 0x20000')
e(f'v_add_u32 v{vW[1]}, {TAP-1024}, v{vW[0]}')
if FIRST_IS_G:
    if FLIP:
        e(f's_lshl1_add_u32 s{sK}, s{sG0}, s{sF}')
        e(f's_mul_i32 s{sK}, s{sK}, {32*ROW}')
    else:
        e(f's_mul_i32 s{sK}, s{sG0}, {64*ROW}')
else:
    e(f's_mul_i32 s{sK}, s{sF}, {32*ROW}' if FLIP else f's_mov_b32 s{sK}, 0')
e(f'v_add_u32 v{vW[2]}, {2*TAP-2048}, v{vW[0]}')
e(f's_mul_i32 s{sWl}, s{sWave}, 6144')
e('v_lshrrev_b32 v4, 4, v1')
e(f's_add_u32 s{sWl}, s{sWl}, {WBASE}')
e('v_xor_b32 v5, v3, v4')
e(f's_mov_b32 m0, s{sWl}')
e('v_lshlrev_b32 v5, 4, v5')
e(f's_mov_b32 s{sX+3}, s{sW+3}')
e('v_lshl_add_u32 v6, v8, 2, v5')
LST_OFF = False
def lstamp(lane_expr):
    if LST and not (LST_OFF and lane_expr != 30):
        e('s_memrealtime s[92:93]')
        e('s_waitcnt lgkmcnt(0)')
        e(f's_mov_b32 s95, {lane_expr}')
        e('v_mov_b32 v31, s92')
        e('v_cmp_eq_u32 vcc, s95, v1')
        e('s_nop 1')
        e('v_cndmask_b32 v30, v30, v31, vcc')
def dw(tap): e(f'buffer_load_dwordx4 v{vW[tap]}, s[{sW}:{sW+3}], s{sK} offen' + (f' offset:{tap*1024}' if tap else '') + ' lds')
def dx(i): e(f'buffer_load_dwordx4 v{vX[i]}, s[{sX}:{sX+3}], s{sT0} offen' + (f' offset:{i*1024}' if 0 < i < 4 else '') + f'{XNT} lds')
def ld_flag():
    e(f's_mov_b32 m0, s{sFl}')
    e('s_mov_b64 exec, 1')
    e(f'buffer_load_dword v{vOOB}, s[{sW}:{sW+3}], 0 offen lds')
    e('s_mov_b64 exec, -1')
    e(f's_add_u32 s{sFl}, s{sFl}, 16')
e('s_waitcnt lgkmcnt(0)')
if LST:
    e(f'v_mov_b32 v30, s{sStamp}')
    lstamp(2)
def par_load(lab):
    e(f's_cmp_lg_u32 s{sWave}, 3')
    e(f's_cbranch_scc1 {lab}')
    e(f's_lshl_b32 s{sT1}, s{sCt}, 7')
    e(f'v_lshl_add_u32 v{vP+4}, v1, 1, s{sT1}')
    if PF != 'front': e('s_waitcnt lgkmcnt(0)')
    for p in range(4):
        e(f'global_load_ushort v{vP+p}, v{vP+4}, s[{8+2*p}:{9+2*p}]')
    e(f'{lab}:')
if PF == 'front': par_load('L_lnop')
dw(0)
e(f's_lshl2_add_u32 s{sT1}, s{sB0}, s{sWave}')
e(f's_mulk_i32 s{sT1}, 1152')
if not NF0: e(f's_lshl_b32 s{sFl}, s{sWave}, 2')
dw(1)
e(f'v_add_u32 v{vX[0]}, s{sT1}, v6')
e(f's_mul_i32 s{sXl}, s{sWave}, 5120')
e(f'v_xor_b32 v{vX[1]}, 64, v{vX[0]}')
e(f's_lshl_b32 s{sT0}, s{sG0}, 7' if FIRST_IS_G else f's_mov_b32 s{sT0}, 0')
dw(2)
e(f's_mov_b32 m0, s{sXl}')
e(f'v_add_u32 v{vX[1]}, {8*4608-1024}, v{vX[1]}')
dx(0)
e(f'v_add_u32 v{vX[2]}, {20*4608-2048}, v{vX[0]}')
e(f's_lshr_b32 s{sT1}, s{sWave}, 1')
if not NF0: e(f's_add_u32 s{sFl}, s{sFl}, {FLAGL}')
dx(1)
e(f'v_add_u32 v{vX[3]}, {20*4608-2048}, v{vX[1]}')
e(f's_mul_i32 s{sT1}, s{sT1}, 10')
e(f's_add_u32 s{sT1}, s{sT1}, s{sT2}')
if not NF0: e(f'v_lshl_add_u32 v2, v1, 4, s{sFl}')
if not NF0: e(f'v_bfrev_b32 v{vOOB}, 2')
dx(2)
if not NF0: e(f'ds_write_b32 v2, v{vOOB}')
e(f's_lshl1_add_u32 s{sT1}, s{sT1}, s{sB0}')
e(f's_add_u32 s{sT1}, s{sT1}, 16')
e(f's_mulk_i32 s{sT1}, 4608')
e(f's_lshl_b32 s{sT3}, s{sT2}, 6')
dx(3)
e(f'v_xor_b32 v9, s{sT3}, v5')
e(f's_add_u32 m0, s{sXl}, 4096')
e(f'v_add3_u32 v{vX[4]}, v9, v8, s{sT1}')
dx(4)
if not NF0:
    e('s_waitcnt lgkmcnt(0)')
    ld_flag()
lstamp(4)
if FLIP:
    e(f's_mul_i32 s{sKf}, s{sF}, {32*ROW}')
    e(f's_lshl_b32 s{sKd}, s{sKf}, 1')
    e(f's_sub_u32 s{sKd}, {32*ROW}, s{sKd}')
KD = f's{sKd}' if FLIP else f'{32*ROW}'
e(f's_add_u32 m0, s{sWl}, 3072')
e(f's_add_u32 s{sK}, s{sK}, {KD}')
dw(0); dw(1); dw(2)
if not NF0: ld_flag()
if PF != 'front': e('s_load_dwordx8 s[8:15], s[0:1], 16')
lstamp(6)
if 'l0' in opt:
    for i, vm in enumerate((13, 12, 10, 8, 5, 1)):
        e(f's_waitcnt vmcnt({vm})')
        lstamp(8 + 2*i)
    LST_OFF = True
if not NF0: e('s_barrier')
if 'sched' not in opt:
    allo = list(orders)
    if CLS:
        allo += [[3*PERM[s//3] + s % 3 for s in o] for o in orders]
        e(f's_mul_i32 s{sC}, s{sC}, 3')
        e(f's_add_u32 s{sG}, s{sG}, s{sC}')
    ps = [pack(o[1:]) for o in allo]
    e(f's_mov_b32 s{sOrd}, {ps[0]}')
    for g in range(1, len(allo)):
        e(f's_cmp_eq_u32 s{sG}, {g}')
        e(f's_cselect_b32 s{sOrd}, {ps[g]}, s{sOrd}')
if PF == 'mid': par_load('L_lnop')
if 'sched' not in opt:
    e(f's_mov_b32 s{sIt}, 1')
    e(f's_mov_b32 s{sSl}, 0')
def advance():
    e(f's_add_u32 s{sSl}, s{sSl}, 1')
    e(f's_cmp_eq_u32 s{sSl}, 3')
    e(f's_cselect_b32 s{sSl}, 0, s{sSl}')
    e(f's_mov_b32 s{sDX}, {XSLOT}')
    e(f's_cselect_b32 s{sDX}, {(-2*XSLOT) & 0xffffffff}, s{sDX}')
    e(f's_mov_b32 s{sDW}, {WSLOT}')
    e(f's_cselect_b32 s{sDW}, {(-2*WSLOT) & 0xffffffff}, s{sDW}')
    e(f's_add_u32 s{sXl}, s{sXl}, s{sDX}')
    e(f's_add_u32 s{sWl}, s{sWl}, s{sDW}')
    e(f's_and_b32 s{sK}, s{sOrd}, 15')
    e(f's_lshl_b32 s{sT0}, s{sK}, 7')
    e(f's_mul_i32 s{sK}, s{sK}, {64*ROW}')
    if FLIP: e(f's_add_u32 s{sK}, s{sK}, s{sKf}')
    e(f's_lshr_b32 s{sOrd}, s{sOrd}, 4')
def issue_x():
    e(f's_mov_b32 m0, s{sXl}')
    e('s_nop 0')
    for i in range(4): dx(i)
    e(f's_add_u32 m0, s{sXl}, 4096')
    e('s_nop 0')
    dx(4)
def issue_w(ks):
    if ks:
        e(f's_add_u32 m0, s{sWl}, 3072')
        e(f's_add_u32 s{sK}, s{sK}, {KD}')
    else:
        e(f's_mov_b32 m0, s{sWl}')
        e('s_nop 0')
    for tap in range(3): dw(tap)
SCHED = opt.get('sched')
NF = 'nf' in opt or SCHED is not None
if SCHED:
    bl = [[int(c, 16) for c in s] for s in SCHED.split('_')]
    if len(bl) == 1: bl = bl*3
    sK2 = sSl
    for g in (1, 2):
        e(f's_cmp_eq_u32 s{sG}, {g}')
        e(f's_cbranch_scc1 L_lg{g}')
    for g in range(3):
        if g: e(f'L_lg{g}:')
        stream = [(p, i) for p in range(1, 9) for i in range(11)]
        cuts = {}
        for n in range(7):
            at = (n + 2 - 1)*11 + 11 - bl[g][n]
            cuts.setdefault(at, []).append(n)
        if NF0: cuts.setdefault(int(NF0), []).append(-1)
        cur_m0 = None
        for si in range(len(stream) + 1):
            pre = []
            if si < len(stream):
                p, i = stream[si]
                st = orders[g][p]; slot = p % 3
                if i == 0: pre.append(f's_movk_i32 s{sT0}, {st*128}')
                if i == 5: pre.append(f's_add_u32 s{sK}, s{sKf}, {st*64*ROW}' if FLIP else f's_mov_b32 s{sK}, {st*64*ROW}')
                if i == 8: pre.append(f's_add_u32 s{sK}, s{sK}, {KD}')
                want = ('x', slot*XSLOT + (4096 if i == 4 else 0)) if i < 5 else ('w', slot*WSLOT + (3072 if i >= 8 else 0))
                if want != cur_m0:
                    pre = [f's_add_u32 m0, s{sXl if want[0] == "x" else sWl}, {want[1]}'] + (pre if pre else ([] if si in cuts else ['s_nop 0']))
                    cur_m0 = want
            for x in pre: e(x)
            for n in cuts.get(si, []):
                e(f's_waitcnt vmcnt({si - (n+1)*11})')
                e('s_barrier')
            if PF == 'late' and si == (g + 1)*11: par_load(f'L_lnop{g}')
            if si < len(stream):
                dx(i) if i < 5 else dw((i - 5) % 3)
        if g < 2: e('s_branch L_lend')
    e('L_lend:')
elif NF:
    e('L_lloop:')
    advance()
    e(f's_mov_b32 m0, s{sXl}')
    e(f's_cmp_lt_u32 s{sIt}, 3')
    e('s_cbranch_scc1 L_lfree')
    e('s_waitcnt vmcnt(11)')
    e('s_barrier')
    e('L_lfree:')
    for i in range(4): dx(i)
    e(f's_add_u32 m0, s{sXl}, 4096')
    e(f's_add_u32 s{sIt}, s{sIt}, 1')
    dx(4)
    issue_w(0); issue_w(1)
    if LST:
        e(f's_lshl_b32 s94, s{sIt}, 1')
        e('s_add_u32 s94, s94, 4')
    lstamp('s94')
    e(f's_cmp_lt_u32 s{sIt}, 9')
    e('s_cbranch_scc1 L_lloop')
else:
    e('L_lloop:')
    advance()
    e(f's_cmp_lt_u32 s{sIt}, 3')
    e('s_cbranch_scc1 L_lfree')
    e('s_barrier')
    e('L_lfree:')
    issue_x(); issue_w(0)
    e(f's_cmp_eq_u32 s{sIt}, 8')
    e('s_cbranch_scc1 L_llast')
    issue_w(1)
    ld_flag()
    if LST:
        e(f's_lshl_b32 s94, s{sIt}, 1')
        e('s_add_u32 s94, s94, 6')
    lstamp('s94')
    e(f's_add_u32 s{sIt}, s{sIt}, 1')
    e('s_branch L_lloop')
    e('L_llast:')
    ld_flag()
    issue_w(1)

def par_compute():
    for p in range(4):
        e(f'v_lshlrev_b32 v{vP+p}, 16, v{vP+p}')
    e(f'v_add_f32 v{vP+1}, 0x3727c5ac, v{vP+1}')
    e(f'v_rsq_f32 v{vP+1}, v{vP+1}')
    e(f'v_mul_f32 v{vP+2}, 0xbfb8aa3b, v{vP+2}')
    e(f'v_mul_f32 v{vP+3}, 0xbfb8aa3b, v{vP+3}')
    e(f'v_mul_f32 v{vP+2}, v{vP+1}, v{vP+2}')
    e(f'v_fma_f32 v{vP+3}, -v{vP}, v{vP+2}, v{vP+3}')
    e('v_lshlrev_b32 v2, 2, v1')
    e(f'v_add_u32 v2, {PARM}, v2')
def par_write():
    e(f'ds_write_b32 v2, v{vP+2}')
    e(f'ds_write_b32 v2, v{vP+3} offset:256')
if NF:
    if not SCHED:
        e('s_waitcnt vmcnt(11)')
        e('s_barrier')
    e(f's_cmp_lg_u32 s{sWave}, 3')
    e('s_cbranch_scc1 L_lfin')
    par_compute()
    e('s_waitcnt vmcnt(3)')
    par_write()
    e('L_lfin:')
    e('s_waitcnt vmcnt(3)')
    e('s_barrier')
else:
    e(f's_cmp_lg_u32 s{sWave}, 3')
    e('s_cbranch_scc1 L_lfin')
    e('s_waitcnt vmcnt(12)')
    par_compute()
    e('s_waitcnt vmcnt(0)')
    par_write()
    e('L_lfin:')
e('s_waitcnt vmcnt(0) lgkmcnt(0)')
e('s_barrier')
if LST:
    lstamp(30)
    e('s_load_dwordx2 s[50:51], s[0:1], 64')
    e(f's_lshl_b32 s3, s2, 3')
    e(f's_add_u32 s3, s3, s{sWave}')
    e(f's_mul_i32 s3, s3, {NST*8}')
    e('v_lshl_add_u32 v0, v1, 2, s3')
    e('v_and_b32 v2, 1, v1')
    e('v_cmp_eq_u32 vcc, 0, v2')
    e('s_nop 1')
    e('v_cndmask_b32 v30, 0, v30, vcc')
    e('s_waitcnt lgkmcnt(0)')
    e('s_mov_b64 exec, 0xffffffff')
    e('global_store_dword v0, v30, s[50:51]')
e('s_endpgm')

e('L_consumer:')
e('s_load_dwordx2 s[28:29], s[0:1], 48')
if STAMP: e('s_load_dwordx2 s[50:51], s[0:1], 64')
e('s_setprio 3')
vXa = [2, 3]; vXm = [[4, 5], [252, 253], [6, 7]]
vWa = [8, 9]
vOut = 10; vOutM = 11
vPar = 12
ACC = 16
F = [56, 108, 160]
SC2 = 212; SH2 = 220
T = 228; P = 236; Qs = [240, 244]
cFl, cPoll, cSw, cSr = 248, 249, 250, 251
def acc(tile, t): return ACC + (tile*2 + t)*4
def fx(buf, i): return F[buf] + i*4
def fw(buf, k, t): return F[buf] + 28 + (k*2 + t)*4
A0, A1, A2 = T, T+1, T+2
e('v_and_b32 v13, 15, v1')
e('v_lshrrev_b32 v14, 4, v1')
for r in range(4):
    e(f'v_mov_b32 v{ACC+r}, 0')
e('v_min_u32 v15, 2, v14')
e(f'v_mul_u32_u24 v15, {XSLOT}, v15')
e('v_lshl_add_u32 v15, v13, 4, v15')
e(f'ds_write_b128 v15, v[{ACC}:{ACC+3}] offset:{XBASE+20480}')
e(f's_sub_u32 s{sWave}, s{sWave}, 4')
e(f's_lshr_b32 s{sT0}, s{sWave}, 1')
e(f's_and_b32 s{sT1}, s{sWave}, 1')
if not NF0:
    e('v_and_b32 v15, 3, v1')
    e('v_lshlrev_b32 v15, 2, v15')
    e(f'v_add_u32 v{cFl}, {FLAGL}, v15')
GX = 14
if FLIP:
    GX = A2 + 1
    e(f's_lshl_b32 s{sIt}, s{sF}, 2')
    e(f'v_xor_b32 v{GX}, s{sIt}, v14')
e(f's_lshl_b32 s{sT3}, s{sT0}, 11')
e('v_lshrrev_b32 v15, 1, v13')
e(f'v_xor_b32 v15, v15, v{GX}')
e('v_lshlrev_b32 v15, 4, v15')
e('v_lshl_add_u32 v15, v13, 7, v15')
e(f'v_add_u32 v{vXa[0]}, s{sT3}, v15')
e(f'v_xor_b32 v{vXa[1]}, 64, v{vXa[0]}')
e(f's_mul_i32 s{sIt}, s{sT0}, 10240')
e(f's_add_u32 s{sIt}, s{sIt}, 4096')
e(f'v_lshrrev_b32 v{A2}, 3, v13')
e(f'v_lshl_add_u32 v{A2}, v{A2}, 12, s{sIt}')
e(f'v_add_u32 v{vXm[1][0]}, v{A2}, v15')
e(f'v_xor_b32 v{vXm[1][1]}, 64, v{vXm[1][0]}')
for k in (0, 2):
    regs = vXm[k]
    e(f'v_add_u32 v15, {1 if k==2 else 3}, v13')
    e(f'v_bfi_b32 v15, 3, v15, v13')
    e(f'v_lshrrev_b32 v{A0}, 1, v15')
    e(f'v_xor_b32 v{A0}, v{A0}, v{GX}')
    e(f'v_lshlrev_b32 v{A0}, 4, v{A0}')
    e(f'v_lshl_add_u32 v{A0}, v15, 7, v{A0}')
    e(f'v_add_u32 v{A1}, v{A2}, v{A0}')
    e(f'v_and_b32 v{A0}, 0xff, v{A0}')
    e('v_and_b32 v15, 3, v13')
    e(f'v_cmp_eq_u32 vcc, {0 if k==0 else 3}, v15')
    e(f'v_add_u32 v{A0}, {XBASE+20480}, v{A0}')
    e('s_nop 0')
    e(f'v_cndmask_b32 v{regs[0]}, v{A1}, v{A0}, vcc')
    e(f'v_xor_b32 v{regs[1]}, 64, v{regs[0]}')
e('v_lshrrev_b32 v15, 2, v13')
e(f'v_mul_u32_u24 v{A0}, 6144, v14')
e(f'v_lshl_add_u32 v{A0}, v15, 7, v{A0}')
e('v_lshrrev_b32 v15, 1, v15')
e(f'v_and_b32 v{A1}, 1, v14')
e(f'v_lshl_add_u32 v15, v{A1}, 1, v15')
e(f's_lshl_b32 s{sIt}, s{sT1}, 1')
e(f'v_xor_b32 v15, s{sIt}, v15')
e(f'v_lshl_add_u32 v{A0}, v15, 5, v{A0}')
e('v_and_b32 v15, 3, v13')
e(f'v_lshl_add_u32 v{A0}, v15, 3, v{A0}')
e(f'v_add_u32 v{vWa[0]}, {WBASE}, v{A0}')
e(f'v_xor_b32 v{vWa[1]}, 32, v{vWa[0]}')
assert WBASE % 256 == 0
if not NF0:
    e('s_waitcnt lgkmcnt(0)')
    e('s_barrier')
sNL = 46
deferred = [
 f's_mov_b32 s{sOut+2}, s{sNv}', f's_mov_b32 s{sOut+3}, 0x20000',
 f's_lshl_b32 s{sIt}, s{sT1}, 7', f's_add_u32 s{sIt}, s{sIt}, {PARM}',
 f'v_lshl_add_u32 v{vPar}, v14, 4, s{sIt}',
 f's_lshl_b32 s{sIt}, s{sWave}, 10', f's_add_u32 s{sIt}, s{sIt}, {STG}',
 'v_and_b32 v15, 1, v14', 'v_lshlrev_b32 v15, 1, v15', f'v_lshrrev_b32 v{A0}, 1, v14', f'v_or_b32 v15, v15, v{A0}',
 f'v_bfe_u32 v{A0}, v13, 1, 2', f'v_xor_b32 v15, v15, v{A0}', 'v_lshlrev_b32 v15, 4, v15', 'v_lshl_add_u32 v15, v13, 6, v15',
 f'v_add_u32 v{cSw}, s{sIt}, v15', f'v_lshl_add_u32 v{cSr}, v1, 4, s{sIt}',
 f's_lshl_b32 s{sT2}, s{sCt}, 7', f's_lshl_b32 s{sT3}, s{sT1}, 6', f's_add_u32 s{sT2}, s{sT2}, s{sT3}',
 f's_mul_i32 s{sIt}, s{sT0}, 20', f's_add_u32 s{sIt}, s{sIt}, s{sB0}', f's_mulk_i32 s{sIt}, 4608', f's_add_u32 s{sIt}, s{sIt}, s{sT2}',
 'v_bfe_u32 v15, v1, 3, 2', f'v_and_b32 v{A0}, 3, v1', f'v_xor_b32 v15, v15, v{A0}', f'v_lshl_add_u32 v15, v15, 4, s{sIt}',
 f'v_lshrrev_b32 v{A0}, 2, v1', f'v_mul_u32_u24 v{vOutM}, 1152, v{A0}', f'v_lshl_add_u32 v{vOut}, v{vOutM}, 2, v15',
 f'v_add_u32 v{vOutM}, v{vOutM}, v15', f'v_add_u32 v{vOutM}, {16*4608}, v{vOutM}',
 f's_mov_b32 s{sNL}, 0xbfb8aa3b', f's_mov_b32 s{sNL+1}, 0xbfb8aa3b']

cSw1 = 254
if FULL:
    deferred = [
     f's_mov_b32 s{sOut+2}, s{sNv}', f's_mov_b32 s{sOut+3}, 0x20000',
     f's_lshl_b32 s{sIt}, s{sT1}, 7', f's_add_u32 s{sIt}, s{sIt}, {PARM}',
     f'v_lshl_add_u32 v{vPar}, v14, 4, s{sIt}',
     f's_lshl_b32 s{sIt}, s{sT0}, 11', f's_add_u32 s{sIt}, s{sIt}, {STG}', f's_lshl_b32 s{sT2}, s{sT1}, 2',
     'v_lshrrev_b32 v15, 1, v14', f'v_or_b32 v15, s{sT2}, v15', f'v_and_b32 v{A0}, 7, v13', f'v_xor_b32 v15, v15, v{A0}',
     'v_lshlrev_b32 v15, 4, v15', 'v_lshl_add_u32 v15, v13, 7, v15', f'v_and_b32 v{A0}, 1, v14', f'v_lshl_add_u32 v15, v{A0}, 3, v15',
     f'v_add_u32 v{cSw}, s{sIt}, v15', f'v_xor_b32 v{cSw1}, 32, v{cSw}',
     f's_lshl_b32 s{sT2}, s{sT1}, 10', f's_add_u32 s{sIt}, s{sIt}, s{sT2}', f'v_lshl_add_u32 v{cSr}, v1, 4, s{sIt}',
     f's_lshl_b32 s{sT2}, s{sCt}, 7',
     f's_mul_i32 s{sIt}, s{sT0}, 20', f's_add_u32 s{sIt}, s{sIt}, s{sB0}', f's_mulk_i32 s{sIt}, 4608', f's_add_u32 s{sIt}, s{sIt}, s{sT2}',
     f'v_lshrrev_b32 v{A0}, 3, v1', 'v_and_b32 v15, 7, v1', f'v_xor_b32 v15, v15, v{A0}', f'v_lshl_add_u32 v15, v15, 4, s{sIt}',
     f's_lshl_b32 s{sT2}, s{sT1}, 3', f'v_add_u32 v{A0}, s{sT2}, v{A0}',
     f'v_mul_u32_u24 v{vOutM}, 1152, v{A0}', f'v_lshl_add_u32 v{vOut}, v{vOutM}, 2, v15',
     f'v_add_u32 v{vOutM}, v{vOutM}, v15', f'v_add_u32 v{vOutM}, {16*4608}, v{vOutM}',
     f's_mov_b32 s{sNL}, 0xbfb8aa3b', f's_mov_b32 s{sNL+1}, 0xbfb8aa3b']
    assert STG % 256 == 0

def rx(buf, slot, h, i):
    xo = XBASE + slot*XSLOT
    if i < 4: return f'ds_read_b128 v[{fx(buf,i)}:{fx(buf,i)+3}], v{vXa[h]} offset:{xo + i*5120}'
    return f'ds_read_b128 v[{fx(buf,i)}:{fx(buf,i)+3}], v{vXm[i-4][h]} offset:{xo}'
def rw(buf, slot, h, k, t):
    r = []
    for hp in range(2):
        d = fw(buf, k, t) + 2*hp
        off = slot*WSLOT + (h*3+k)*1024 + hp*512
        r.append(f'ds_read_b64_tr_b16 v[{d}:{d+1}], v{vWa[t]} offset:{off}')
    return r
CHAIN = 'nochain' not in opt
def reads(buf, slot, h):
    X = lambda i: rx(buf, slot, h, i)
    W = lambda k, t: rw(buf, slot, h, k, t)
    if CHAIN:
        early = W(1,0) + [X(0)] + W(2,0) + [X(1)] + W(1,1) + W(2,1) + W(0,0) + [X(2)] + W(0,1)
        late = [X(3), X(4), X(5), X(6)]
        return early, late
    early = W(0,0) + [X(0), X(1), X(2), X(4)] + W(0,1) + W(1,0) + [X(3), X(5)] + W(1,1)
    late = W(2,0) + [X(6)] + W(2,1)
    return early, late
NL = 4 if CHAIN else 5
touched = set()
def mf(a, A, B):
    c = f'v[{a}:{a+3}]' if a in touched else '0'
    touched.add(a)
    return f'v_mfma_f32_16x16x32_bf16 v[{a}:{a+3}], v[{A}:{A+3}], v[{B}:{B+3}], {c}'
def tile_mfmas(tile, buf):
    r = []
    for t in range(2):
        for k in range(3):
            if tile < 4:
                sp = tile + k - 1
                if 0 <= sp <= 3: r.append(mf(acc(tile, t), fw(buf,k,t), fx(buf,sp)))
            else:
                r.append(mf(acc(4, t), fw(buf,k,t), fx(buf,4+k)))
    return r
def mfmas(buf):
    if CHAIN: return [m for tl in range(5) for m in tile_mfmas(tl, buf)]
    r = []
    for k in range(3):
        for t in range(2):
            for s in range(4):
                sp = s + k - 1
                if 0 <= sp <= 3:
                    r.append(mf(acc(s, t), fw(buf,k,t), fx(buf,sp)))
            r.append(mf(acc(4, t), fw(buf,k,t), fx(buf,4+k)))
    return r
def emit_phase(ms, fill, defer=False):
    assert len(fill) <= len(ms), len(fill)
    for i, m in enumerate(ms):
        e(m)
        if i < len(fill) and fill[i]:
            for x in fill[i]: e(x)
        elif defer and deferred:
            e(deferred.pop(0))
def poll(fidx): return f'ds_read_b32 v{cPoll}, v{cFl} offset:{16*fidx}'
spin_sites = []
def check(name, fidx):
    spin_sites.append((name, fidx))
    return [f'v_cmp_ne_u32 vcc, 0, v{cPoll}'], [f's_cbranch_vccnz L_cspin{name}', f'L_cback{name}:']

if STAMP:
    e(f's_mov_b32 s{sStamp+16}, 0')
    e(f's_mov_b32 s{sStamp+17}, 0')
NPAD = 0 if 'nopad' in opt else int(opt.get('npad', 2))
if NPAD:
    e('s_mov_b64 exec, 0')
    for p in range(NPAD):
        e(f's_branch L_pad{p}')
        e(f'L_ret{p}:')
    e('s_mov_b64 exec, -1')
stamp(1)
e('L_cpoll0:')
if NF0:
    e('s_waitcnt lgkmcnt(0)')
    e('s_barrier')
else:
    e(poll(0))
    e('s_waitcnt lgkmcnt(0)')
    e(f'v_cmp_ne_u32 vcc, 0, v{cPoll}')
    e('s_cbranch_vccnz L_cpoll0')
stamp(2)
cstamp(5)
ea, la = reads(0, 0, 0)
for r in ea + la: e(r)
W2 = int(opt.get('w2', 8))
BPOS = [int(v) for v in opt.get('bpos', '4,4,4,4,4,4').split(',')]
def build_fill(pre, seq, wait_at, bar_at):
    fill = list(pre) + [[x] for x in seq]
    wpos = len(pre) + wait_at
    fill.insert(wpos, [f's_waitcnt lgkmcnt({wait_at})'])
    if bar_at is not None:
        while len(fill) <= bar_at: fill.append([])
        fill[bar_at] = fill[bar_at] + ['s_barrier']
    return fill, wpos
for n in range(7):
    u = n % 3
    ea, la = reads(1, u, 1)
    bar = BPOS[n-1] - 26 if (1 <= n <= 6 and BPOS[n-1] >= 26) else None
    if n == 0 and NF0:
        e('s_waitcnt lgkmcnt(9)')
        fill = [[x] for x in ea + la]
        fill[3] = fill[3] + ['s_waitcnt lgkmcnt(8)']
        fill.insert(W2, [f's_waitcnt lgkmcnt({W2})'])
    elif n == 0:
        X = [rx(1, 0, 1, i) for i in range(7)]
        c0, c1 = check('A0', 1)
        if CHAIN:
            e('s_waitcnt lgkmcnt(9)')
            Wr = [x for k, t in ((1,0),(2,0),(1,1),(2,1),(0,0),(0,1)) for x in rw(1, 0, 1, k, t)]
            fill = [[X[0]], [X[1]], [X[2]], [poll(1), 's_waitcnt lgkmcnt(8)'], [X[3]], [X[4]], [X[5]], [X[6], 's_waitcnt lgkmcnt(4)'], c0, c1]
            fill += [[x] for x in Wr[:6]] + ([] if NF else [[poll(2)]]) + [[x] for x in Wr[6:]]
        else:
            e('s_waitcnt lgkmcnt(13)')
            Wr = [x for k in range(3) for t in range(2) for x in rw(1, 0, 1, k, t)]
            fill = [[X[0]], [X[1]], [X[2]], [poll(1), 's_waitcnt lgkmcnt(9)'], [X[4]], [X[3]], [X[5]], [X[6], 's_waitcnt lgkmcnt(4)'], c0, c1]
            fill += [[x] for x in Wr[:7]] + [[poll(2)]] + [[x] for x in Wr[7:]]
    else:
        e(f's_waitcnt lgkmcnt({NL})')
        fill, _ = build_fill([], ea + ([] if NF else [poll(n+2)]) + la, W2, None if NF else bar)
    emit_phase(mfmas(0), fill, defer=True)
    e(f's_waitcnt lgkmcnt({4 if n == 0 else NL})')
    ea, la = reads(0, (u+1) % 3, 0)
    if NF:
        NB = int(opt.get('nb', 2))
        st = ([f's_memrealtime s[{84+2*n}:{85+2*n}]'] if n < 6 else ['s_memrealtime s[4:5]']) if 'pst' in opt else []
        fill = [[] for _ in range(NB)] + [['s_waitcnt lgkmcnt(0)', 's_barrier'] + st] + [[x] for x in ea + la]
    else:
        c0, c1 = check(f'B{n}', n+2)
        if 'pst' in opt: c1 = c1 + [f's_memrealtime s[{84+2*n}:{85+2*n}]'] if n < 6 else c1 + ['s_memrealtime s[4:5]']
        bar = BPOS[n] if (n <= 5 and BPOS[n] < 26) else None
        wa = W2 if bar is None else max(0, min(W2, bar - 2))
        if CHAIN and n == 0: wa = min(wa, 1)
        fill, wpos = build_fill([c0, c1], ea + la, wa, bar)
        assert bar is None or bar >= wpos
    emit_phase(mfmas(1), fill, defer=True)
assert not deferred
e(f's_waitcnt lgkmcnt({NL})')
if not NF: c0, c1 = check('T', 9)
ea, la = reads(1, 1, 1)
r15 = ea + la
ea, la = reads(2, 2, 0)
r16 = ea + la
def group2(rs):
    g = []; i = 0
    while i < len(rs):
        if 'tr_b16' in rs[i] and i+1 < len(rs) and 'tr_b16' in rs[i+1]:
            g.append([rs[i], rs[i+1]]); i += 2
        else:
            g.append([rs[i]]); i += 1
    return g
g15 = group2(r15); g16 = group2(r16)
if NF:
    n_first = sum(len(x) for x in g15[:6])
    g15[5] = g15[5] + [f's_waitcnt lgkmcnt({n_first})']
    g15[-1] = g15[-1] + ['s_barrier']
else:
    g15 = [[poll(9)] + g15[0]] + g15[1:]
    n_first = sum(len(x) for x in g15[:6])
    g15[5] = g15[5] + [f's_waitcnt lgkmcnt({n_first - 1})']
    g15[-2] = g15[-2] + c0
    g15[-1] = g15[-1] + c1
fill = g15 + g16[:26-len(g15)]
left16 = [x for gg in g16[26-len(g15):] for x in gg]
fill[-1] = fill[-1] + ['s_barrier']
emit_phase(mfmas(0), fill)
stamp(3)
cstamp(6)
X = lambda i: rx(0, 2, 1, i)
W = lambda k, t: rw(0, 2, 1, k, t)
par = [f'ds_read_b128 v[{SC2}:{SC2+3}], v{vPar}', f'ds_read_b128 v[{SC2+4}:{SC2+7}], v{vPar} offset:64',
       f'ds_read_b128 v[{SH2}:{SH2+3}], v{vPar} offset:256', f'ds_read_b128 v[{SH2+4}:{SH2+7}], v{vPar} offset:320']
first17 = W(1,0) + [X(0)] + W(2,0) + [X(1)] + W(1,1) + W(2,1) + par
rest17 = W(0,0) + [X(2), X(3)] + W(0,1) + [X(4), X(5), X(6)]
head = tile_mfmas(0, 1) + tile_mfmas(3, 1) + tile_mfmas(0, 2) + tile_mfmas(3, 2)
n16_issued = len(r16) - len(left16)
e(f's_waitcnt lgkmcnt({min(12, n16_issued)})')
rq = left16 + first17 + rest17
gq = group2(rq)
issued = 0
def pop_reads():
    global issued
    if gq:
        for x in gq.pop(0):
            e(x); issued += 1
for i, m in enumerate(head):
    if i == 8:
        e(f's_waitcnt lgkmcnt({min(12, issued - len(left16))})')
    e(m); pop_reads()
e(f's_waitcnt lgkmcnt({min(12, issued - len(left16) - len(first17))})')
for m in tile_mfmas(0, 0):
    e(m); pop_reads()
assert not gq
e('s_waitcnt lgkmcnt(3)')
rest = tile_mfmas(3, 0) + tile_mfmas(1, 1) + tile_mfmas(1, 2) + tile_mfmas(1, 0) + tile_mfmas(2, 1) + tile_mfmas(2, 2) + tile_mfmas(2, 0) \
     + tile_mfmas(4, 1) + tile_mfmas(4, 2) + ['WAIT0'] + tile_mfmas(4, 0)
done_at = {0: 0, 3: 4, 1: 22, 2: 40, 4: 58}
emitted = 0
since = {0: 1}
def em(m):
    global emitted
    if m == 'WAIT0':
        e('s_waitcnt lgkmcnt(0)'); m = rest.pop(0)
    e(m); emitted += 1
    for k in since: since[k] += 1
    for tl, at in done_at.items():
        if at == emitted: since[tl] = 0
def ev(x):
    e(x)
    for k in since: since[k] += 1
def need(tl):
    while tl not in since: em(rest.pop(0))
    while since[tl] < 8:
        if rest and not (tl == 0 and emitted >= int(opt.get('hz', 99))): em(rest.pop(0))
        else:
            e(f's_nop {8 - since[tl] - 1}'); since[tl] = 8
def cost(ins):
    if 'exp' in ins or 'rcp' in ins: return 8
    if 'v_pk' in ins or 'v_fma' in ins: return 5
    return 4
def tile_ops(tile, Q):
    a0 = acc(tile, 0)
    def two(pkf, sf):
        return [('pk', pkf(i), [sf(i), sf(i+1)]) for i in range(0, 8, 2)]
    ops = []
    ops += two(lambda i: f'v_pk_fma_f32 v[{a0+i}:{a0+i+1}], v[{a0+i}:{a0+i+1}], v[{SC2+i}:{SC2+i+1}], v[{SH2+i}:{SH2+i+1}]',
               lambda i: f'v_fma_f32 v{a0+i}, v{a0+i}, v{SC2+i}, v{SH2+i}')
    ops += [('s', f'v_exp_f32 v{T+i}, v{a0+i}') for i in range(8)]
    ops += two(lambda i: f'v_pk_fma_f32 v[{T+i}:{T+i+1}], v[{T+i}:{T+i+1}], s[{sNL}:{sNL+1}], s[{sNL}:{sNL+1}]',
               lambda i: f'v_fma_f32 v{T+i}, v{T+i}, s{sNL}, s{sNL}')
    ops += [('s', f'v_rcp_f32 v{T+i}, v{T+i}') for i in range(8)]
    ops += two(lambda i: f'v_pk_mul_f32 v[{a0+i}:{a0+i+1}], v[{a0+i}:{a0+i+1}], v[{T+i}:{T+i+1}]',
               lambda i: f'v_mul_f32 v{a0+i}, v{a0+i}, v{T+i}')
    ops += [('s', f'v_cvt_pk_bf16_f32 v{P+i//2}, v{a0+i}, v{a0+i+1}') for i in range(0, 8, 2)]
    if FULL:
        cv = ops[-4:]
        ops = ops[:-4] + [cv[0], cv[1], cv[2], ('s', f'ds_write_b64 v{cSw}, v[{P}:{P+1}] offset:{tile*4096}'), cv[3],
                          ('s', f'ds_write_b64 v{cSw1}, v[{P+2}:{P+3}] offset:{tile*4096}')]
    else:
        ops += [('s', 's_nop 1'), ('s', f'v_permlane16_swap_b32 v{P}, v{P+2}'), ('s', f'v_permlane16_swap_b32 v{P+1}, v{P+3}'),
                ('s', f'ds_write_b128 v{cSw}, v[{P}:{P+3}]'), ('s', f'ds_read_b128 v[{Q}:{Q+3}], v{cSr}')]
    return ops
def tile_store(tile, Q):
    if tile < 4:
        return f'buffer_store_dwordx4 v[{Q}:{Q+3}], v{vOut}, s[{sOut}:{sOut+3}], 0 offen offset:{tile*1152} {STF}'
    return f'buffer_store_dwordx4 v[{Q}:{Q+3}], v{vOutM}, s[{sOut}:{sOut+3}], 0 offen {STL}'
pend = None
budget = 0
GAPV = int(opt.get('gapv', 8))
for n, tl in enumerate([0, 3, 1, 2, 4]):
    Q = Qs[n % 2]
    need(tl)
    if 't2st' in opt: e(f's_memtime s[{84+2*n}:{85+2*n}]')
    for i, op in enumerate(tile_ops(tl, Q)):
        if op[0] == 'pk':
            ins = [op[1]] if (PK == 2 or (PK == 1 and not rest)) else op[2]
        else:
            ins = [op[1]]
        for x in ins:
            ev(x); budget += cost(x)
            if rest and budget >= GAPV:
                em(rest.pop(0)); budget = 0
        if FULL:
            if pend is not None and i == 8:
                ev('s_waitcnt lgkmcnt(0)'); ev('s_barrier')
                ev(f'ds_read_b128 v[{pend[1]}:{pend[1]+3}], v{cSr} offset:{pend[0]*4096}')
            if pend is not None and i == 20:
                ev('s_waitcnt lgkmcnt(0)')
                ev(tile_store(*pend)); pend = None
        elif pend is not None and i == 12:
            ev('s_waitcnt lgkmcnt(0)')
            ev(tile_store(*pend)); pend = None
    pend = (tl, Q)
if 't2st' in opt: e('s_memtime s[94:95]')
if FULL:
    e('s_waitcnt lgkmcnt(0)'); e('s_barrier')
    e(f'ds_read_b128 v[{pend[1]}:{pend[1]+3}], v{cSr} offset:{pend[0]*4096}')
e('s_waitcnt lgkmcnt(0)')
e(tile_store(*pend))
stamp(4)
cstamp(7)
if 'pst' in opt or 't2st' in opt:
    e('s_waitcnt lgkmcnt(0)')
    if 't2st' in opt: e(f's_mov_b32 s4, s{sStamp+14}')
    e(f's_mov_b32 s{sStamp+18}, s84'); e(f's_mov_b32 s{sStamp+19}, s86')
    e(f's_mov_b32 s{sStamp+20}, s88'); e(f's_mov_b32 s{sStamp+21}, s90')
    e(f's_mov_b32 s{sStamp+22}, s92'); e(f's_mov_b32 s{sStamp+23}, s94')
    e(f's_mov_b32 s{sStamp+28}, s4'); e(f's_mov_b32 s{sStamp+29}, s4')
stamp_flush([0,1,2,3,4,5,6,7,8] + ([9,10,11,14] if ('pst' in opt or 't2st' in opt) else []))
e('s_endpgm')
for name, fidx in spin_sites:
    e(f'L_cspin{name}:')
    if STAMP: e(f's_add_u32 s{sStamp+16}, s{sStamp+16}, 1')
    e(poll(fidx))
    e('s_waitcnt lgkmcnt(0)')
    e(f'v_cmp_ne_u32 vcc, 0, v{cPoll}')
    e(f's_cbranch_vccnz L_cspin{name}')
    e(f's_branch L_cback{name}')
e('L_end:')
e('s_endpgm')

def render(lines):
    body = '\n'.join(lines)
    return HEADER + f'''; Override launch geometry by editing the next line (default: block=256,
; grid=ceil(out_elems/256), lds=0). Harness parses it; keep it on one line.
; @launch grid=({NWG},1,1) block=(512,1,1) lds={LDS_BYTES}
.amdgcn_target "amdgcn-amd-amdhsa--gfx950"
.text
.globl standalone__batchnorm__sampling_kernel
{'' if 'noal' in opt else '.p2align 12'}
.p2align 8
.type standalone__batchnorm__sampling_kernel,@function
standalone__batchnorm__sampling_kernel:
{body}
.section .rodata,"a"
.p2align 6
.amdhsa_kernel standalone__batchnorm__sampling_kernel
  .amdhsa_next_free_vgpr 256
  .amdhsa_next_free_sgpr 96
  .amdhsa_accum_offset 256
  .amdhsa_group_segment_fixed_size 0
  .amdhsa_kernarg_size 72
  .amdhsa_user_sgpr_count 2
  .amdhsa_user_sgpr_kernarg_segment_ptr 1
  .amdhsa_system_sgpr_workgroup_id_x 1
.end_amdhsa_kernel
'''
import subprocess, re, os
def offsets(lines):
    open('_g.s', 'w').write(render(lines))
    subprocess.run(['clang', '-x', 'assembler', '-target', 'amdgcn-amd-amdhsa', '-mcpu=gfx950', '-c', '_g.s', '-o', '_g.o'], check=True)
    d = subprocess.run(['llvm-objdump', '-d', '--mcpu=gfx950', '_g.o'], capture_output=True, text=True).stdout
    offs = [int(m.group(1), 16) for m in re.finditer(r'// ([0-9A-F]{12}):', d)]
    idx = [i for i, l in enumerate(lines) if l.startswith('    ')]
    assert len(offs) == len(idx), (len(offs), len(idx))
    return dict(zip(idx, offs))
if NPAD:
    KSTART = 0x300
    lines = out
    i0 = lines.index('L_cpoll0:')
    for p in range(NPAD):
        tmp = lines + [f'L_pad{q}:' for q in range(p, NPAD)] + ['    s_endpgm']
        offs = offsets(tmp)
        first = (offs[i0+1] + KSTART) // 4096
        bnd = 4096*(first + p + 1) - KSTART
        i = min(i for i, o in offs.items() if o >= bnd)
        lines = lines[:i] + [f'L_pad{p}:', f'    s_cbranch_execz L_ret{p}'] + lines[i:]
    out = lines
open(dst, 'w').write(render(out))
```

```python
import sys
opt = {}
dst = 'standalone__batchnorm__sampling.s'
for a in sys.argv[1:]:
    if a.startswith('--'):
        k, _, v = a[2:].partition('=')
        opt[k] = v if v else True
    else:
        dst = a
STAMP = 'stamp' in opt
AMP = None
if 'amp' in opt:
    AMP = tuple(int(v) for v in opt['amp'].split(',')); STAMP = True
MAP = opt.get('map', 'p4')
ORDER = opt.get('order', '013246578_120435768_201354687')
XNT = ' nt' if 'xnt' in opt else ''
STF = opt.get('stf', 'sc1').replace('+', ' ')
STL = opt.get('stl', STF).replace('+', ' ').replace('none', '')
PK = int(opt.get('pk', 1))
FLIP = MAP in ('p4', 'p5') and 'noflip' not in opt
LST = 'lst' in opt
NF0 = opt.get('nf0')
PERM = [int(c) for c in opt.get('perm', '012')]
CLS = PERM != [0, 1, 2]
sC = 49
PF = opt.get('ppos', 'mid')

out = []
def e(s=''):
    if 'nodma' in opt and s.startswith('buffer_load_dwordx4') and s.endswith('lds'): return
    out.append('    ' + s if s and not s.endswith(':') else s)

HEADER = open('standalone__batchnorm__sampling.s.ref').read().split('; Override launch')[0]

WSLOT = 24576
XSLOT = 20480 + 256
XBASE = 0
WBASE = XSLOT * 3
FLAGL = WBASE + WSLOT * 3
PARM = FLAGL + 1024
STG = PARM + 512
FULL = 'full' in opt
LDS_BYTES = STG + (20480 if FULL else 4096)
assert LDS_BYTES <= 163840
X_BYTES = 1024*4*576*2
W_BYTES = 3*576*576*2
TAP = 576*576*2
ROW = 1152

sX, sW, sOut = 20, 24, 28
sWave, sQ, sCt, sB0 = 32, 33, 34, 35
sT0, sT1, sT2, sT3 = 36, 37, 38, 39
sXl, sF, sWl, sK = 40, 41, 42, 43
sIt, sDX, sDW = 44, 45, 46
sSl, sFl = 47, 48
sOrd, sG, sKd, sKf = 16, 17, 18, 19
sNv = sX + 2
sStamp = 52
NST = 16
def stamp(i):
    if STAMP: e(f's_memrealtime s[{sStamp+2*i}:{sStamp+2*i+1}]')
def cstamp(i):
    if STAMP: e(f's_memtime s[{sStamp+2*i}:{sStamp+2*i+1}]')
def stamp_flush(used):
    if not STAMP: return
    e('s_waitcnt vmcnt(0) lgkmcnt(0)')
    stamp(NST-1)
    e(f's_memtime s[{sStamp+26}:{sStamp+27}]')
    e('s_waitcnt lgkmcnt(0)')
    if AMP is not None:
        e(f's_sub_u32 s3, s{sStamp+2*AMP[1]}, s{sStamp+2*AMP[0]}')
        e(f's_mul_i32 s3, s3, {AMP[3] if len(AMP) > 3 else 20}')
        e(f's_add_u32 s3, s3, s{sStamp+2*(NST-1)}')
        e('L_amp:')
        e('s_memrealtime s[4:5]')
        e('s_waitcnt lgkmcnt(0)')
        e('s_sub_u32 s6, s4, s3')
        e('s_cmp_lt_i32 s6, 0')
        e('s_cbranch_scc1 L_amp')
        return
    e(f's_lshl_b32 s3, s2, 3')
    e(f's_add_u32 s3, s3, s{sWave}')
    e('s_add_u32 s3, s3, 4')
    e(f's_mul_i32 s3, s3, {NST*8}')
    e('v_mov_b32 v0, s3')
    e('s_mov_b64 exec, 1')
    for i in used + [12, 13, NST-1]:
        e(f'v_mov_b32 v2, s{sStamp+2*i}')
        e(f'v_mov_b32 v3, s{sStamp+2*i+1}')
        e(f'global_store_dwordx2 v0, v[2:3], s[50:51] offset:{8*i}')
        e('s_nop 1')
def div_small(dstr, src_, d, maxv):
    for sh in range(4, 16):
        m = -(-(1 << sh) // d)
        if m <= 64 and all((t*m) >> sh == t // d for t in range(maxv+1)):
            e(f's_mul_i32 s{dstr}, s{src_}, {m}')
            e(f's_lshr_b32 s{dstr}, s{dstr}, {sh}')
            return
    assert 0
def pack(order): return sum(s << (4*i) for i, s in enumerate(order))
orders = [[int(ch) for ch in o] for o in ORDER.split('_')]
for g, o in enumerate(orders): assert sorted(o) == list(range(9)), o
assert len(orders) == 3
FIRST_IS_G = all(o[0] == g for g, o in enumerate(orders))
FIRST_IS_0 = all(o[0] == 0 for o in orders)
assert FIRST_IS_G or FIRST_IS_0

e(f's_load_dwordx2 s[{sW}:{sW+1}], s[0:1], 8')
e(f's_load_dwordx2 s[{sX}:{sX+1}], s[0:1], 0')
if PF == 'front': e('s_load_dwordx8 s[8:15], s[0:1], 16')
if STAMP:
    stamp(0)
    e(f's_memtime s[{sStamp+24}:{sStamp+25}]')
e(f's_lshr_b32 s{sT1}, s2, 3')
if 'nocpf' not in opt:
    e('s_getpc_b64 s[30:31]')
    e('L_pc:')
    e('v_and_b32 v2, 0x180, v0')
    e(f'v_lshl_add_u32 v2, s{sT1}, 9, v2')
    e('v_min_u32 v2, L_end-L_pc, v2')
    e('global_load_dword v255, v2, s[30:31]')
e('v_readfirstlane_b32 s3, v0')
e(f's_and_b32 s{sT0}, s2, 7')
if MAP == 'p3':
    NWG = 240
    e(f's_mul_i32 s{sT2}, s{sT0}, 27')
    e(f's_mul_i32 s{sT3}, s{sT0}, 3')
    e(f's_addk_i32 s{sT3}, {216-27}')
    e(f's_cmp_ge_u32 s{sT1}, 27')
    e(f's_cselect_b32 s{sT2}, s{sT3}, s{sT2}')
    e(f's_add_u32 s{sT2}, s{sT2}, s{sT1}')
    e(f's_cmp_ge_u32 s{sT1}, 30')
    e(f's_cselect_b32 s{sT2}, -1, s{sT2}')
    e(f's_cmpk_ge_u32 s{sT2}, 234')
    e('s_cbranch_scc1 L_end')
    div_small(sQ, sT2, 9, 233)
    e(f's_mul_i32 s{sT0}, s{sQ}, 9')
    e(f's_sub_u32 s{sCt}, s{sT2}, s{sT0}')
    e(f's_mul_i32 s{sB0}, s{sQ}, 40')
    e(f's_mov_b32 s{sNv}, {X_BYTES}')
elif MAP == 'p5':
    NWG = 256
    nL, nR = (int(v) for v in opt.get('n', '39,37').split(','))
    nBL = -(-(1024 - 24*nL) // 3); nBR = -(-(1024 - 24*nR) // 4)
    assert max(nL, nR, nBL, nBR) <= 40
    def P(M, ncol, c0, n, lim):
        assert all((j*M) >> 8 == j // ncol for j in range(lim))
        return M | ncol << 8 | c0 << 12 | n << 16 | lim << 24
    e(f's_mul_i32 s{sB0}, s{sT0}, {6*nL}')
    e(f's_mul_i32 s{sT2}, s{sT0}, {8*nR}')
    e(f's_sub_u32 s{sT2}, s{sT2}, {32*nR}')
    e(f's_cmp_lt_u32 s{sT0}, 4')
    e(f's_cselect_b32 s{sB0}, s{sB0}, s{sT2}')
    e(f's_mov_b32 s{sT2}, {P(64, 4, 5, nR, 32)}')
    e(f's_cselect_b32 s{sT2}, {P(52, 5, 0, nL, 30)}, s{sT2}')
    e(f's_cmp_lg_u32 s{sT0}, 7')
    e('s_cbranch_scc1 L_mp')
    e(f's_sub_u32 s{sT3}, s{sT1}, 15')
    e(f's_cselect_b32 s{sT1}, s{sT1}, s{sT3}')
    e(f's_cselect_b32 s{sB0}, {24*nL}, s{sB0}')
    e(f's_mov_b32 s{sT2}, {P(64, 4, 5, nBR, 16)}')
    e(f's_cselect_b32 s{sT2}, {P(52, 5, 0, nBL, 15)}, s{sT2}')
    e('L_mp:')
    e(f's_lshr_b32 s{sT0}, s{sT2}, 24')
    e(f's_cmp_ge_u32 s{sT1}, s{sT0}')
    e('s_cbranch_scc1 L_end')
    e(f's_and_b32 s{sQ}, s{sT2}, 0xff')
    e(f's_mul_i32 s{sQ}, s{sQ}, s{sT1}')
    e(f's_lshr_b32 s{sQ}, s{sQ}, 8')
    e(f's_bfe_u32 s{sT0}, s{sT2}, 0x40008')
    e(f's_mul_i32 s{sT0}, s{sT0}, s{sQ}')
    e(f's_sub_u32 s{sCt}, s{sT1}, s{sT0}')
    e(f's_bfe_u32 s{sT0}, s{sT2}, 0x4000c')
    e(f's_add_u32 s{sCt}, s{sCt}, s{sT0}')
    e(f's_bfe_u32 s{sT3}, s{sT2}, 0x80010')
    e(f's_mul_i32 s{sT0}, s{sQ}, s{sT3}')
    e(f's_add_u32 s{sB0}, s{sB0}, s{sT0}')
    e(f's_add_u32 s{sNv}, s{sB0}, s{sT3}')
    e(f's_min_u32 s{sNv}, s{sNv}, 0x400')
    e(f's_mulk_i32 s{sNv}, 4608')
else:
    NWG = 256
    def P(M, ncol, lim, c0):
        assert all((j*M) >> 8 == j // ncol for j in range(lim))
        return M | ncol << 8 | lim << 16 | c0 << 24
    e(f's_mul_i32 s{sB0}, s{sT0}, 60')
    e(f's_mul_i32 s{sT2}, s{sT0}, 80')
    e(f's_sub_u32 s{sT2}, s{sT2}, 320')
    e(f's_cmp_lt_u32 s{sT0}, 4')
    e(f's_cselect_b32 s{sB0}, s{sB0}, s{sT2}')
    e(f's_mov_b32 s{sT2}, {P(64, 4, 32, 5)}')
    e(f's_cselect_b32 s{sT2}, {P(52, 5, 30, 0)}, s{sT2}')
    e(f's_cmp_eq_u32 s{sT0}, 7')
    BR = int(opt.get('br', 3))
    e(f's_cselect_b32 s{sT2}, {P(29, 9, 9*BR, 0)}, s{sT2}')
    e(f's_cselect_b32 s{sT3}, {int(opt.get("bn", -(-64//BR)))}, 40')
    e(f's_bfe_u32 s{sT0}, s{sT2}, 0x80010')
    e(f's_cmp_ge_u32 s{sT1}, s{sT0}')
    e('s_cbranch_scc1 L_help' if 'help' in opt else 's_cbranch_scc1 L_end')
    e(f's_and_b32 s{sQ}, s{sT2}, 0xff')
    e(f's_mul_i32 s{sQ}, s{sQ}, s{sT1}')
    e(f's_lshr_b32 s{sQ}, s{sQ}, 8')
    e(f's_bfe_u32 s{sT0}, s{sT2}, 0x80008')
    e(f's_mul_i32 s{sT0}, s{sT0}, s{sQ}')
    e(f's_sub_u32 s{sCt}, s{sT1}, s{sT0}')
    e(f's_lshr_b32 s{sT2}, s{sT2}, 24')
    e(f's_add_u32 s{sCt}, s{sCt}, s{sT2}')
    e(f's_mul_i32 s{sT0}, s{sQ}, s{sT3}')
    e(f's_lshl2_add_u32 s{sB0}, s{sB0}, s{sT0}')
    e(f's_add_u32 s{sNv}, s{sB0}, s{sT3}')
    e(f's_min_u32 s{sNv}, s{sNv}, 0x400')
    e(f's_mulk_i32 s{sNv}, 4608')
if FLIP:
    e(f's_lshr_b32 s{sF}, 0x38, s{sQ}')
    e(f's_and_b32 s{sF}, s{sF}, 1')
e(f's_lshr_b32 s{sWave}, s3, 6')
e('v_and_b32 v1, 63, v0')
e(f's_cmp_ge_u32 s{sWave}, 4')
e('s_cbranch_scc1 L_consumer')

vX = [10, 11, 12, 13, 14]
vW = [15, 16, 17]
vOOB = 18
vP = 20
e(f's_add_u32 s{sG}, s{sQ}, s{sCt}')
div_small(sT1, sG, 3, 40)
e('v_lshrrev_b32 v2, 3, v1')
e(f's_mul_i32 s{sT1}, s{sT1}, 3')
e('v_and_b32 v3, 7, v1')
e(f's_sub_u32 s{sG}, s{sG}, s{sT1}')
sG0 = sG
if CLS:
    e(f's_and_b32 s{sC}, s2, 7')
    e(f's_cmp_eq_u32 s{sC}, 7')
    e(f's_cselect_b32 s{sC}, 31, 0x1e0')
    e(f's_lshr_b32 s{sC}, s{sC}, s{sCt}')
    e(f's_and_b32 s{sC}, s{sC}, 1')
    if PERM[0]:
        sG0 = sOrd
        e(f's_mul_i32 s{sG0}, s{sC}, {3*PERM[0]}')
        if FIRST_IS_G: e(f's_add_u32 s{sG0}, s{sG0}, s{sG}')
        FIRST_IS_G = True
e('v_and_b32 v9, 2, v2')
e(f's_and_b32 s{sT2}, s{sWave}, 1')
e('v_mul_u32_u24 v8, 1152, v2')
e(f's_lshl_b32 s{sT3}, s{sT2}, 2')
e('v_xor_b32 v9, v9, v3')
e(f's_mul_i32 s{sT0}, s{sWave}, 72')
e(f'v_xor_b32 v9, s{sT3}, v9')
e(f's_add_u32 s{sT0}, s{sT0}, s{sCt}')
e('v_lshl_add_u32 v9, v9, 4, v8')
e(f's_lshl_b32 s{sT0}, s{sT0}, 7')
e(f's_mov_b32 s{sW+2}, {W_BYTES}')
e(f'v_add_u32 v{vW[0]}, s{sT0}, v9')
e(f's_mov_b32 s{sW+3}, 0x20000')
e(f'v_add_u32 v{vW[1]}, {TAP-1024}, v{vW[0]}')
if FIRST_IS_G:
    if FLIP:
        e(f's_lshl1_add_u32 s{sK}, s{sG0}, s{sF}')
        e(f's_mul_i32 s{sK}, s{sK}, {32*ROW}')
    else:
        e(f's_mul_i32 s{sK}, s{sG0}, {64*ROW}')
else:
    e(f's_mul_i32 s{sK}, s{sF}, {32*ROW}' if FLIP else f's_mov_b32 s{sK}, 0')
e(f'v_add_u32 v{vW[2]}, {2*TAP-2048}, v{vW[0]}')
e(f's_mul_i32 s{sWl}, s{sWave}, 6144')
e('v_lshrrev_b32 v4, 4, v1')
e(f's_add_u32 s{sWl}, s{sWl}, {WBASE}')
e('v_xor_b32 v5, v3, v4')
e(f's_mov_b32 m0, s{sWl}')
e('v_lshlrev_b32 v5, 4, v5')
e(f's_mov_b32 s{sX+3}, s{sW+3}')
e('v_lshl_add_u32 v6, v8, 2, v5')
LST_OFF = False
def lstamp(lane_expr):
    if LST and not (LST_OFF and lane_expr != 30):
        e('s_memrealtime s[92:93]')
        e('s_waitcnt lgkmcnt(0)')
        e(f's_mov_b32 s95, {lane_expr}')
        e('v_mov_b32 v31, s92')
        e('v_cmp_eq_u32 vcc, s95, v1')
        e('s_nop 1')
        e('v_cndmask_b32 v30, v30, v31, vcc')
def dw(tap): e(f'buffer_load_dwordx4 v{vW[tap]}, s[{sW}:{sW+3}], s{sK} offen' + (f' offset:{tap*1024}' if tap else '') + ' lds')
def dx(i): e(f'buffer_load_dwordx4 v{vX[i]}, s[{sX}:{sX+3}], s{sT0} offen' + (f' offset:{i*1024}' if 0 < i < 4 else '') + f'{XNT} lds')
def ld_flag():
    e(f's_mov_b32 m0, s{sFl}')
    e('s_mov_b64 exec, 1')
    e(f'buffer_load_dword v{vOOB}, s[{sW}:{sW+3}], 0 offen lds')
    e('s_mov_b64 exec, -1')
    e(f's_add_u32 s{sFl}, s{sFl}, 16')
e('s_waitcnt lgkmcnt(0)')
if LST:
    e(f'v_mov_b32 v30, s{sStamp}')
    lstamp(2)
def par_load(lab):
    e(f's_cmp_lg_u32 s{sWave}, 3')
    e(f's_cbranch_scc1 {lab}')
    e(f's_lshl_b32 s{sT1}, s{sCt}, 7')
    e(f'v_lshl_add_u32 v{vP+4}, v1, 1, s{sT1}')
    if PF != 'front': e('s_waitcnt lgkmcnt(0)')
    for p in range(4):
        e(f'global_load_ushort v{vP+p}, v{vP+4}, s[{8+2*p}:{9+2*p}]')
    e(f'{lab}:')
if PF == 'front': par_load('L_lnop')
dw(0)
e(f's_lshl2_add_u32 s{sT1}, s{sB0}, s{sWave}')
e(f's_mulk_i32 s{sT1}, 1152')
if not NF0: e(f's_lshl_b32 s{sFl}, s{sWave}, 2')
dw(1)
e(f'v_add_u32 v{vX[0]}, s{sT1}, v6')
e(f's_mul_i32 s{sXl}, s{sWave}, 5120')
e(f'v_xor_b32 v{vX[1]}, 64, v{vX[0]}')
e(f's_lshl_b32 s{sT0}, s{sG0}, 7' if FIRST_IS_G else f's_mov_b32 s{sT0}, 0')
dw(2)
e(f's_mov_b32 m0, s{sXl}')
e(f'v_add_u32 v{vX[1]}, {8*4608-1024}, v{vX[1]}')
dx(0)
e(f'v_add_u32 v{vX[2]}, {20*4608-2048}, v{vX[0]}')
e(f's_lshr_b32 s{sT1}, s{sWave}, 1')
if not NF0: e(f's_add_u32 s{sFl}, s{sFl}, {FLAGL}')
dx(1)
e(f'v_add_u32 v{vX[3]}, {20*4608-2048}, v{vX[1]}')
e(f's_mul_i32 s{sT1}, s{sT1}, 10')
e(f's_add_u32 s{sT1}, s{sT1}, s{sT2}')
if not NF0: e(f'v_lshl_add_u32 v2, v1, 4, s{sFl}')
if not NF0: e(f'v_bfrev_b32 v{vOOB}, 2')
dx(2)
if not NF0: e(f'ds_write_b32 v2, v{vOOB}')
e(f's_lshl1_add_u32 s{sT1}, s{sT1}, s{sB0}')
e(f's_add_u32 s{sT1}, s{sT1}, 16')
e(f's_mulk_i32 s{sT1}, 4608')
e(f's_lshl_b32 s{sT3}, s{sT2}, 6')
dx(3)
e(f'v_xor_b32 v9, s{sT3}, v5')
e(f's_add_u32 m0, s{sXl}, 4096')
e(f'v_add3_u32 v{vX[4]}, v9, v8, s{sT1}')
dx(4)
if not NF0:
    e('s_waitcnt lgkmcnt(0)')
    ld_flag()
lstamp(4)
if FLIP:
    e(f's_mul_i32 s{sKf}, s{sF}, {32*ROW}')
    e(f's_lshl_b32 s{sKd}, s{sKf}, 1')
    e(f's_sub_u32 s{sKd}, {32*ROW}, s{sKd}')
KD = f's{sKd}' if FLIP else f'{32*ROW}'
e(f's_add_u32 m0, s{sWl}, 3072')
e(f's_add_u32 s{sK}, s{sK}, {KD}')
dw(0); dw(1); dw(2)
if not NF0: ld_flag()
if PF != 'front': e('s_load_dwordx8 s[8:15], s[0:1], 16')
lstamp(6)
if 'l0' in opt:
    for i, vm in enumerate((13, 12, 10, 8, 5, 1)):
        e(f's_waitcnt vmcnt({vm})')
        lstamp(8 + 2*i)
    LST_OFF = True
if not NF0: e('s_barrier')
if 'sched' not in opt:
    allo = list(orders)
    if CLS:
        allo += [[3*PERM[s//3] + s % 3 for s in o] for o in orders]
        e(f's_mul_i32 s{sC}, s{sC}, 3')
        e(f's_add_u32 s{sG}, s{sG}, s{sC}')
    ps = [pack(o[1:]) for o in allo]
    e(f's_mov_b32 s{sOrd}, {ps[0]}')
    for g in range(1, len(allo)):
        e(f's_cmp_eq_u32 s{sG}, {g}')
        e(f's_cselect_b32 s{sOrd}, {ps[g]}, s{sOrd}')
if PF == 'mid': par_load('L_lnop')
if 'sched' not in opt:
    e(f's_mov_b32 s{sIt}, 1')
    e(f's_mov_b32 s{sSl}, 0')
def advance():
    e(f's_add_u32 s{sSl}, s{sSl}, 1')
    e(f's_cmp_eq_u32 s{sSl}, 3')
    e(f's_cselect_b32 s{sSl}, 0, s{sSl}')
    e(f's_mov_b32 s{sDX}, {XSLOT}')
    e(f's_cselect_b32 s{sDX}, {(-2*XSLOT) & 0xffffffff}, s{sDX}')
    e(f's_mov_b32 s{sDW}, {WSLOT}')
    e(f's_cselect_b32 s{sDW}, {(-2*WSLOT) & 0xffffffff}, s{sDW}')
    e(f's_add_u32 s{sXl}, s{sXl}, s{sDX}')
    e(f's_add_u32 s{sWl}, s{sWl}, s{sDW}')
    e(f's_and_b32 s{sK}, s{sOrd}, 15')
    e(f's_lshl_b32 s{sT0}, s{sK}, 7')
    e(f's_mul_i32 s{sK}, s{sK}, {64*ROW}')
    if FLIP: e(f's_add_u32 s{sK}, s{sK}, s{sKf}')
    e(f's_lshr_b32 s{sOrd}, s{sOrd}, 4')
def issue_x():
    e(f's_mov_b32 m0, s{sXl}')
    e('s_nop 0')
    for i in range(4): dx(i)
    e(f's_add_u32 m0, s{sXl}, 4096')
    e('s_nop 0')
    dx(4)
def issue_w(ks):
    if ks:
        e(f's_add_u32 m0, s{sWl}, 3072')
        e(f's_add_u32 s{sK}, s{sK}, {KD}')
    else:
        e(f's_mov_b32 m0, s{sWl}')
        e('s_nop 0')
    for tap in range(3): dw(tap)
SCHED = opt.get('sched')
NF = 'nf' in opt or SCHED is not None
if SCHED:
    bl = [[int(c, 16) for c in s] for s in SCHED.split('_')]
    if len(bl) == 1: bl = bl*3
    sK2 = sSl
    for g in (1, 2):
        e(f's_cmp_eq_u32 s{sG}, {g}')
        e(f's_cbranch_scc1 L_lg{g}')
    for g in range(3):
        if g: e(f'L_lg{g}:')
        stream = [(p, i) for p in range(1, 9) for i in range(11)]
        cuts = {}
        for n in range(7):
            at = (n + 2 - 1)*11 + 11 - bl[g][n]
            cuts.setdefault(at, []).append(n)
        if NF0: cuts.setdefault(int(NF0), []).append(-1)
        cur_m0 = None
        for si in range(len(stream) + 1):
            pre = []
            if si < len(stream):
                p, i = stream[si]
                st = orders[g][p]; slot = p % 3
                if i == 0: pre.append(f's_movk_i32 s{sT0}, {st*128}')
                if i == 5: pre.append(f's_add_u32 s{sK}, s{sKf}, {st*64*ROW}' if FLIP else f's_mov_b32 s{sK}, {st*64*ROW}')
                if i == 8: pre.append(f's_add_u32 s{sK}, s{sK}, {KD}')
                want = ('x', slot*XSLOT + (4096 if i == 4 else 0)) if i < 5 else ('w', slot*WSLOT + (3072 if i >= 8 else 0))
                if want != cur_m0:
                    pre = [f's_add_u32 m0, s{sXl if want[0] == "x" else sWl}, {want[1]}'] + (pre if pre else ([] if si in cuts else ['s_nop 0']))
                    cur_m0 = want
            for x in pre: e(x)
            for n in cuts.get(si, []):
                e(f's_waitcnt vmcnt({si - (n+1)*11})')
                e('s_barrier')
            if PF == 'late' and si == (g + 1)*11: par_load(f'L_lnop{g}')
            if si < len(stream):
                dx(i) if i < 5 else dw((i - 5) % 3)
        if g < 2: e('s_branch L_lend')
    e('L_lend:')
elif NF:
    e('L_lloop:')
    advance()
    e(f's_mov_b32 m0, s{sXl}')
    e(f's_cmp_lt_u32 s{sIt}, 3')
    e('s_cbranch_scc1 L_lfree')
    e('s_waitcnt vmcnt(11)')
    e('s_barrier')
    e('L_lfree:')
    for i in range(4): dx(i)
    e(f's_add_u32 m0, s{sXl}, 4096')
    e(f's_add_u32 s{sIt}, s{sIt}, 1')
    dx(4)
    issue_w(0); issue_w(1)
    if LST:
        e(f's_lshl_b32 s94, s{sIt}, 1')
        e('s_add_u32 s94, s94, 4')
    lstamp('s94')
    e(f's_cmp_lt_u32 s{sIt}, 9')
    e('s_cbranch_scc1 L_lloop')
else:
    e('L_lloop:')
    advance()
    e(f's_cmp_lt_u32 s{sIt}, 3')
    e('s_cbranch_scc1 L_lfree')
    e('s_barrier')
    e('L_lfree:')
    issue_x(); issue_w(0)
    e(f's_cmp_eq_u32 s{sIt}, 8')
    e('s_cbranch_scc1 L_llast')
    issue_w(1)
    ld_flag()
    if LST:
        e(f's_lshl_b32 s94, s{sIt}, 1')
        e('s_add_u32 s94, s94, 6')
    lstamp('s94')
    e(f's_add_u32 s{sIt}, s{sIt}, 1')
    e('s_branch L_lloop')
    e('L_llast:')
    ld_flag()
    issue_w(1)

def par_compute():
    for p in range(4):
        e(f'v_lshlrev_b32 v{vP+p}, 16, v{vP+p}')
    e(f'v_add_f32 v{vP+1}, 0x3727c5ac, v{vP+1}')
    e(f'v_rsq_f32 v{vP+1}, v{vP+1}')
    e(f'v_mul_f32 v{vP+2}, 0xbfb8aa3b, v{vP+2}')
    e(f'v_mul_f32 v{vP+3}, 0xbfb8aa3b, v{vP+3}')
    e(f'v_mul_f32 v{vP+2}, v{vP+1}, v{vP+2}')
    e(f'v_fma_f32 v{vP+3}, -v{vP}, v{vP+2}, v{vP+3}')
    e('v_lshlrev_b32 v2, 2, v1')
    e(f'v_add_u32 v2, {PARM}, v2')
def par_write():
    e(f'ds_write_b32 v2, v{vP+2}')
    e(f'ds_write_b32 v2, v{vP+3} offset:256')
if NF:
    if not SCHED:
        e('s_waitcnt vmcnt(11)')
        e('s_barrier')
    e(f's_cmp_lg_u32 s{sWave}, 3')
    e('s_cbranch_scc1 L_lfin')
    par_compute()
    e('s_waitcnt vmcnt(3)')
    par_write()
    e('L_lfin:')
    e('s_waitcnt vmcnt(3)')
    e('s_barrier')
else:
    e(f's_cmp_lg_u32 s{sWave}, 3')
    e('s_cbranch_scc1 L_lfin')
    e('s_waitcnt vmcnt(12)')
    par_compute()
    e('s_waitcnt vmcnt(0)')
    par_write()
    e('L_lfin:')
e('s_waitcnt vmcnt(0) lgkmcnt(0)')
e('s_barrier')
if LST:
    lstamp(30)
    e('s_load_dwordx2 s[50:51], s[0:1], 64')
    e(f's_lshl_b32 s3, s2, 3')
    e(f's_add_u32 s3, s3, s{sWave}')
    e(f's_mul_i32 s3, s3, {NST*8}')
    e('v_lshl_add_u32 v0, v1, 2, s3')
    e('v_and_b32 v2, 1, v1')
    e('v_cmp_eq_u32 vcc, 0, v2')
    e('s_nop 1')
    e('v_cndmask_b32 v30, 0, v30, vcc')
    e('s_waitcnt lgkmcnt(0)')
    e('s_mov_b64 exec, 0xffffffff')
    e('global_store_dword v0, v30, s[50:51]')
e('s_endpgm')

if 'help' in opt:
    HS = [int(c) for c in str(opt['help'])]
    e('L_help:')
    e(f's_cmp_ge_u32 s{sT1}, 32')
    e('s_cbranch_scc1 L_end')
    e(f's_sub_u32 s{sT1}, s{sT1}, s{sT0}')
    e(f's_and_b32 s{sT0}, s2, 7')
    e(f's_min_u32 s{sT0}, s{sT0}, 4')
    e(f's_lshl1_add_u32 s{sT1}, s{sT0}, s{sT1}')
    e(f's_lshr_b32 s{sWave}, s3, 6')
    e(f's_lshl3_add_u32 s{sT1}, s{sT1}, s{sWave}')
    e('v_and_b32 v1, 63, v0')
    e(f's_mov_b32 s{sX+2}, {X_BYTES}')
    e(f's_mov_b32 s{sX+3}, 0x20000')
    e(f's_movk_i32 s{sK}, 128')
    e(f'v_lshl_add_u32 v2, s{sT1}, 6, v1')
    e('v_mul_u32_u24 v2, 1152, v2')
    e(f's_cmp_lt_u32 s{sT1}, 64')
    e('s_waitcnt lgkmcnt(0)')
    e('s_cbranch_scc1 L_hgo')
    e(f's_sub_u32 s{sT1}, s{sT1}, 64')
    div_small(sT0, sT1, 9, 40)
    e(f's_mul_i32 s{sT2}, s{sT0}, {TAP//128 - 576}')
    e(f's_lshl_b32 s{sT1}, s{sT1}, 6')
    e(f's_add_u32 s{sT1}, s{sT1}, s{sT2}')
    e(f'v_add_u32 v2, s{sT1}, v1')
    e('v_lshlrev_b32 v2, 7, v2')
    e(f's_mov_b32 s{sX}, s{sW}')
    e(f's_mov_b32 s{sX+1}, s{sW+1}')
    e(f's_mov_b32 s{sX+2}, {W_BYTES}')
    e(f's_mov_b32 s{sK}, {64*ROW}')
    e('L_hgo:')
    for i, st in enumerate(HS):
        e(f's_mul_i32 s{sT0}, s{sK}, {st}')
        e(f'buffer_load_dword v{4+i}, v2, s[{sX}:{sX+3}], s{sT0} offen')
        if i + 1 < len(HS): e('s_barrier')
    e('s_waitcnt vmcnt(0)')
    e('s_endpgm')

e('L_consumer:')
e('s_load_dwordx2 s[28:29], s[0:1], 48')
if STAMP: e('s_load_dwordx2 s[50:51], s[0:1], 64')
e('s_setprio 3')
vXa = [2, 3]; vXm = [[4, 5], [252, 253], [6, 7]]
vWa = [8, 9]
vOut = 10; vOutM = 11
vPar = 12
ACC = 16
F = [56, 108, 160]
SC2 = 212; SH2 = 220
T = 228; P = 236; Qs = [240, 244]
cFl, cPoll, cSw, cSr = 248, 249, 250, 251
def acc(tile, t): return ACC + (tile*2 + t)*4
def fx(buf, i): return F[buf] + i*4
def fw(buf, k, t): return F[buf] + 28 + (k*2 + t)*4
A0, A1, A2 = T, T+1, T+2
e('v_and_b32 v13, 15, v1')
e('v_lshrrev_b32 v14, 4, v1')
for r in range(4):
    e(f'v_mov_b32 v{ACC+r}, 0')
e('v_min_u32 v15, 2, v14')
e(f'v_mul_u32_u24 v15, {XSLOT}, v15')
e('v_lshl_add_u32 v15, v13, 4, v15')
e(f'ds_write_b128 v15, v[{ACC}:{ACC+3}] offset:{XBASE+20480}')
e(f's_sub_u32 s{sWave}, s{sWave}, 4')
e(f's_lshr_b32 s{sT0}, s{sWave}, 1')
e(f's_and_b32 s{sT1}, s{sWave}, 1')
if not NF0:
    e('v_and_b32 v15, 3, v1')
    e('v_lshlrev_b32 v15, 2, v15')
    e(f'v_add_u32 v{cFl}, {FLAGL}, v15')
GX = 14
if FLIP:
    GX = A2 + 1
    e(f's_lshl_b32 s{sIt}, s{sF}, 2')
    e(f'v_xor_b32 v{GX}, s{sIt}, v14')
e(f's_lshl_b32 s{sT3}, s{sT0}, 11')
e('v_lshrrev_b32 v15, 1, v13')
e(f'v_xor_b32 v15, v15, v{GX}')
e('v_lshlrev_b32 v15, 4, v15')
e('v_lshl_add_u32 v15, v13, 7, v15')
e(f'v_add_u32 v{vXa[0]}, s{sT3}, v15')
e(f'v_xor_b32 v{vXa[1]}, 64, v{vXa[0]}')
e(f's_mul_i32 s{sIt}, s{sT0}, 10240')
e(f's_add_u32 s{sIt}, s{sIt}, 4096')
e(f'v_lshrrev_b32 v{A2}, 3, v13')
e(f'v_lshl_add_u32 v{A2}, v{A2}, 12, s{sIt}')
e(f'v_add_u32 v{vXm[1][0]}, v{A2}, v15')
e(f'v_xor_b32 v{vXm[1][1]}, 64, v{vXm[1][0]}')
for k in (0, 2):
    regs = vXm[k]
    e(f'v_add_u32 v15, {1 if k==2 else 3}, v13')
    e(f'v_bfi_b32 v15, 3, v15, v13')
    e(f'v_lshrrev_b32 v{A0}, 1, v15')
    e(f'v_xor_b32 v{A0}, v{A0}, v{GX}')
    e(f'v_lshlrev_b32 v{A0}, 4, v{A0}')
    e(f'v_lshl_add_u32 v{A0}, v15, 7, v{A0}')
    e(f'v_add_u32 v{A1}, v{A2}, v{A0}')
    e(f'v_and_b32 v{A0}, 0xff, v{A0}')
    e('v_and_b32 v15, 3, v13')
    e(f'v_cmp_eq_u32 vcc, {0 if k==0 else 3}, v15')
    e(f'v_add_u32 v{A0}, {XBASE+20480}, v{A0}')
    e('s_nop 0')
    e(f'v_cndmask_b32 v{regs[0]}, v{A1}, v{A0}, vcc')
    e(f'v_xor_b32 v{regs[1]}, 64, v{regs[0]}')
e('v_lshrrev_b32 v15, 2, v13')
e(f'v_mul_u32_u24 v{A0}, 6144, v14')
e(f'v_lshl_add_u32 v{A0}, v15, 7, v{A0}')
e('v_lshrrev_b32 v15, 1, v15')
e(f'v_and_b32 v{A1}, 1, v14')
e(f'v_lshl_add_u32 v15, v{A1}, 1, v15')
e(f's_lshl_b32 s{sIt}, s{sT1}, 1')
e(f'v_xor_b32 v15, s{sIt}, v15')
e(f'v_lshl_add_u32 v{A0}, v15, 5, v{A0}')
e('v_and_b32 v15, 3, v13')
e(f'v_lshl_add_u32 v{A0}, v15, 3, v{A0}')
e(f'v_add_u32 v{vWa[0]}, {WBASE}, v{A0}')
e(f'v_xor_b32 v{vWa[1]}, 32, v{vWa[0]}')
assert WBASE % 256 == 0
if not NF0:
    e('s_waitcnt lgkmcnt(0)')
    e('s_barrier')
sNL = 46
deferred = [
 f's_mov_b32 s{sOut+2}, s{sNv}', f's_mov_b32 s{sOut+3}, 0x20000',
 f's_lshl_b32 s{sIt}, s{sT1}, 7', f's_add_u32 s{sIt}, s{sIt}, {PARM}',
 f'v_lshl_add_u32 v{vPar}, v14, 4, s{sIt}',
 f's_lshl_b32 s{sIt}, s{sWave}, 10', f's_add_u32 s{sIt}, s{sIt}, {STG}',
 'v_and_b32 v15, 1, v14', 'v_lshlrev_b32 v15, 1, v15', f'v_lshrrev_b32 v{A0}, 1, v14', f'v_or_b32 v15, v15, v{A0}',
 f'v_bfe_u32 v{A0}, v13, 1, 2', f'v_xor_b32 v15, v15, v{A0}', 'v_lshlrev_b32 v15, 4, v15', 'v_lshl_add_u32 v15, v13, 6, v15',
 f'v_add_u32 v{cSw}, s{sIt}, v15', f'v_lshl_add_u32 v{cSr}, v1, 4, s{sIt}',
 f's_lshl_b32 s{sT2}, s{sCt}, 7', f's_lshl_b32 s{sT3}, s{sT1}, 6', f's_add_u32 s{sT2}, s{sT2}, s{sT3}',
 f's_mul_i32 s{sIt}, s{sT0}, 20', f's_add_u32 s{sIt}, s{sIt}, s{sB0}', f's_mulk_i32 s{sIt}, 4608', f's_add_u32 s{sIt}, s{sIt}, s{sT2}',
 'v_bfe_u32 v15, v1, 3, 2', f'v_and_b32 v{A0}, 3, v1', f'v_xor_b32 v15, v15, v{A0}', f'v_lshl_add_u32 v15, v15, 4, s{sIt}',
 f'v_lshrrev_b32 v{A0}, 2, v1', f'v_mul_u32_u24 v{vOutM}, 1152, v{A0}', f'v_lshl_add_u32 v{vOut}, v{vOutM}, 2, v15',
 f'v_add_u32 v{vOutM}, v{vOutM}, v15', f'v_add_u32 v{vOutM}, {16*4608}, v{vOutM}',
 f's_mov_b32 s{sNL}, 0xbfb8aa3b', f's_mov_b32 s{sNL+1}, 0xbfb8aa3b']

cSw1 = 254
if FULL:
    deferred = [
     f's_mov_b32 s{sOut+2}, s{sNv}', f's_mov_b32 s{sOut+3}, 0x20000',
     f's_lshl_b32 s{sIt}, s{sT1}, 7', f's_add_u32 s{sIt}, s{sIt}, {PARM}',
     f'v_lshl_add_u32 v{vPar}, v14, 4, s{sIt}',
     f's_lshl_b32 s{sIt}, s{sT0}, 11', f's_add_u32 s{sIt}, s{sIt}, {STG}', f's_lshl_b32 s{sT2}, s{sT1}, 2',
     'v_lshrrev_b32 v15, 1, v14', f'v_or_b32 v15, s{sT2}, v15', f'v_and_b32 v{A0}, 7, v13', f'v_xor_b32 v15, v15, v{A0}',
     'v_lshlrev_b32 v15, 4, v15', 'v_lshl_add_u32 v15, v13, 7, v15', f'v_and_b32 v{A0}, 1, v14', f'v_lshl_add_u32 v15, v{A0}, 3, v15',
     f'v_add_u32 v{cSw}, s{sIt}, v15', f'v_xor_b32 v{cSw1}, 32, v{cSw}',
     f's_lshl_b32 s{sT2}, s{sT1}, 10', f's_add_u32 s{sIt}, s{sIt}, s{sT2}', f'v_lshl_add_u32 v{cSr}, v1, 4, s{sIt}',
     f's_lshl_b32 s{sT2}, s{sCt}, 7',
     f's_mul_i32 s{sIt}, s{sT0}, 20', f's_add_u32 s{sIt}, s{sIt}, s{sB0}', f's_mulk_i32 s{sIt}, 4608', f's_add_u32 s{sIt}, s{sIt}, s{sT2}',
     f'v_lshrrev_b32 v{A0}, 3, v1', 'v_and_b32 v15, 7, v1', f'v_xor_b32 v15, v15, v{A0}', f'v_lshl_add_u32 v15, v15, 4, s{sIt}',
     f's_lshl_b32 s{sT2}, s{sT1}, 3', f'v_add_u32 v{A0}, s{sT2}, v{A0}',
     f'v_mul_u32_u24 v{vOutM}, 1152, v{A0}', f'v_lshl_add_u32 v{vOut}, v{vOutM}, 2, v15',
     f'v_add_u32 v{vOutM}, v{vOutM}, v15', f'v_add_u32 v{vOutM}, {16*4608}, v{vOutM}',
     f's_mov_b32 s{sNL}, 0xbfb8aa3b', f's_mov_b32 s{sNL+1}, 0xbfb8aa3b']
    assert STG % 256 == 0

def rx(buf, slot, h, i):
    xo = XBASE + slot*XSLOT
    if i < 4: return f'ds_read_b128 v[{fx(buf,i)}:{fx(buf,i)+3}], v{vXa[h]} offset:{xo + i*5120}'
    return f'ds_read_b128 v[{fx(buf,i)}:{fx(buf,i)+3}], v{vXm[i-4][h]} offset:{xo}'
def rw(buf, slot, h, k, t):
    r = []
    for hp in range(2):
        d = fw(buf, k, t) + 2*hp
        off = slot*WSLOT + (h*3+k)*1024 + hp*512
        r.append(f'ds_read_b64_tr_b16 v[{d}:{d+1}], v{vWa[t]} offset:{off}')
    return r
CHAIN = 'nochain' not in opt
def reads(buf, slot, h):
    X = lambda i: rx(buf, slot, h, i)
    W = lambda k, t: rw(buf, slot, h, k, t)
    if CHAIN:
        early = W(1,0) + [X(0)] + W(2,0) + [X(1)] + W(1,1) + W(2,1) + W(0,0) + [X(2)] + W(0,1)
        late = [X(3), X(4), X(5), X(6)]
        return early, late
    early = W(0,0) + [X(0), X(1), X(2), X(4)] + W(0,1) + W(1,0) + [X(3), X(5)] + W(1,1)
    late = W(2,0) + [X(6)] + W(2,1)
    return early, late
NL = 4 if CHAIN else 5
touched = set()
def mf(a, A, B):
    c = f'v[{a}:{a+3}]' if a in touched else '0'
    touched.add(a)
    return f'v_mfma_f32_16x16x32_bf16 v[{a}:{a+3}], v[{A}:{A+3}], v[{B}:{B+3}], {c}'
def tile_mfmas(tile, buf):
    r = []
    for t in range(2):
        for k in range(3):
            if tile < 4:
                sp = tile + k - 1
                if 0 <= sp <= 3: r.append(mf(acc(tile, t), fw(buf,k,t), fx(buf,sp)))
            else:
                r.append(mf(acc(4, t), fw(buf,k,t), fx(buf,4+k)))
    return r
def mfmas(buf):
    if CHAIN: return [m for tl in range(5) for m in tile_mfmas(tl, buf)]
    r = []
    for k in range(3):
        for t in range(2):
            for s in range(4):
                sp = s + k - 1
                if 0 <= sp <= 3:
                    r.append(mf(acc(s, t), fw(buf,k,t), fx(buf,sp)))
            r.append(mf(acc(4, t), fw(buf,k,t), fx(buf,4+k)))
    return r
def emit_phase(ms, fill, defer=False):
    assert len(fill) <= len(ms), len(fill)
    for i, m in enumerate(ms):
        e(m)
        if i < len(fill) and fill[i]:
            for x in fill[i]: e(x)
        elif defer and deferred:
            e(deferred.pop(0))
def poll(fidx): return f'ds_read_b32 v{cPoll}, v{cFl} offset:{16*fidx}'
spin_sites = []
def check(name, fidx):
    spin_sites.append((name, fidx))
    return [f'v_cmp_ne_u32 vcc, 0, v{cPoll}'], [f's_cbranch_vccnz L_cspin{name}', f'L_cback{name}:']

if STAMP:
    e(f's_mov_b32 s{sStamp+16}, 0')
    e(f's_mov_b32 s{sStamp+17}, 0')
NPAD = 0 if 'nopad' in opt else int(opt.get('npad', 2))
if NPAD:
    e('s_mov_b64 exec, 0')
    for p in range(NPAD):
        e(f's_branch L_pad{p}')
        e(f'L_ret{p}:')
    e('s_mov_b64 exec, -1')
stamp(1)
e('L_cpoll0:')
if NF0:
    e('s_waitcnt lgkmcnt(0)')
    e('s_barrier')
else:
    e(poll(0))
    e('s_waitcnt lgkmcnt(0)')
    e(f'v_cmp_ne_u32 vcc, 0, v{cPoll}')
    e('s_cbranch_vccnz L_cpoll0')
stamp(2)
cstamp(5)
ea, la = reads(0, 0, 0)
for r in ea + la: e(r)
W2 = int(opt.get('w2', 8))
BPOS = [int(v) for v in opt.get('bpos', '4,4,4,4,4,4').split(',')]
def build_fill(pre, seq, wait_at, bar_at):
    fill = list(pre) + [[x] for x in seq]
    wpos = len(pre) + wait_at
    fill.insert(wpos, [f's_waitcnt lgkmcnt({wait_at})'])
    if bar_at is not None:
        while len(fill) <= bar_at: fill.append([])
        fill[bar_at] = fill[bar_at] + ['s_barrier']
    return fill, wpos
for n in range(7):
    u = n % 3
    ea, la = reads(1, u, 1)
    bar = BPOS[n-1] - 26 if (1 <= n <= 6 and BPOS[n-1] >= 26) else None
    if n == 0 and NF0:
        e('s_waitcnt lgkmcnt(9)')
        fill = [[x] for x in ea + la]
        fill[3] = fill[3] + ['s_waitcnt lgkmcnt(8)']
        fill.insert(W2, [f's_waitcnt lgkmcnt({W2})'])
    elif n == 0:
        X = [rx(1, 0, 1, i) for i in range(7)]
        c0, c1 = check('A0', 1)
        if CHAIN:
            e('s_waitcnt lgkmcnt(9)')
            Wr = [x for k, t in ((1,0),(2,0),(1,1),(2,1),(0,0),(0,1)) for x in rw(1, 0, 1, k, t)]
            fill = [[X[0]], [X[1]], [X[2]], [poll(1), 's_waitcnt lgkmcnt(8)'], [X[3]], [X[4]], [X[5]], [X[6], 's_waitcnt lgkmcnt(4)'], c0, c1]
            fill += [[x] for x in Wr[:6]] + ([] if NF else [[poll(2)]]) + [[x] for x in Wr[6:]]
        else:
            e('s_waitcnt lgkmcnt(13)')
            Wr = [x for k in range(3) for t in range(2) for x in rw(1, 0, 1, k, t)]
            fill = [[X[0]], [X[1]], [X[2]], [poll(1), 's_waitcnt lgkmcnt(9)'], [X[4]], [X[3]], [X[5]], [X[6], 's_waitcnt lgkmcnt(4)'], c0, c1]
            fill += [[x] for x in Wr[:7]] + [[poll(2)]] + [[x] for x in Wr[7:]]
    else:
        e(f's_waitcnt lgkmcnt({NL})')
        fill, _ = build_fill([], ea + ([] if NF else [poll(n+2)]) + la, W2, None if NF else bar)
    emit_phase(mfmas(0), fill, defer=True)
    e(f's_waitcnt lgkmcnt({4 if n == 0 else NL})')
    ea, la = reads(0, (u+1) % 3, 0)
    if NF:
        NB = int(opt.get('nb', 2))
        st = ([f's_memrealtime s[{84+2*n}:{85+2*n}]'] if n < 6 else ['s_memrealtime s[4:5]']) if 'pst' in opt else []
        fill = [[] for _ in range(NB)] + [['s_waitcnt lgkmcnt(0)', 's_barrier'] + st] + [[x] for x in ea + la]
    else:
        c0, c1 = check(f'B{n}', n+2)
        if 'pst' in opt: c1 = c1 + [f's_memrealtime s[{84+2*n}:{85+2*n}]'] if n < 6 else c1 + ['s_memrealtime s[4:5]']
        bar = BPOS[n] if (n <= 5 and BPOS[n] < 26) else None
        wa = W2 if bar is None else max(0, min(W2, bar - 2))
        if CHAIN and n == 0: wa = min(wa, 1)
        fill, wpos = build_fill([c0, c1], ea + la, wa, bar)
        assert bar is None or bar >= wpos
    emit_phase(mfmas(1), fill, defer=True)
assert not deferred
e(f's_waitcnt lgkmcnt({NL})')
if not NF: c0, c1 = check('T', 9)
ea, la = reads(1, 1, 1)
r15 = ea + la
ea, la = reads(2, 2, 0)
r16 = ea + la
def group2(rs):
    g = []; i = 0
    while i < len(rs):
        if 'tr_b16' in rs[i] and i+1 < len(rs) and 'tr_b16' in rs[i+1]:
            g.append([rs[i], rs[i+1]]); i += 2
        else:
            g.append([rs[i]]); i += 1
    return g
g15 = group2(r15); g16 = group2(r16)
if NF:
    n_first = sum(len(x) for x in g15[:6])
    g15[5] = g15[5] + [f's_waitcnt lgkmcnt({n_first})']
    g15[-1] = g15[-1] + ['s_barrier']
else:
    g15 = [[poll(9)] + g15[0]] + g15[1:]
    n_first = sum(len(x) for x in g15[:6])
    g15[5] = g15[5] + [f's_waitcnt lgkmcnt({n_first - 1})']
    g15[-2] = g15[-2] + c0
    g15[-1] = g15[-1] + c1
fill = g15 + g16[:26-len(g15)]
left16 = [x for gg in g16[26-len(g15):] for x in gg]
fill[-1] = fill[-1] + ['s_barrier']
emit_phase(mfmas(0), fill)
stamp(3)
cstamp(6)
X = lambda i: rx(0, 2, 1, i)
W = lambda k, t: rw(0, 2, 1, k, t)
par = [f'ds_read_b128 v[{SC2}:{SC2+3}], v{vPar}', f'ds_read_b128 v[{SC2+4}:{SC2+7}], v{vPar} offset:64',
       f'ds_read_b128 v[{SH2}:{SH2+3}], v{vPar} offset:256', f'ds_read_b128 v[{SH2+4}:{SH2+7}], v{vPar} offset:320']
first17 = W(1,0) + [X(0)] + W(2,0) + [X(1)] + W(1,1) + W(2,1) + par
rest17 = W(0,0) + [X(2), X(3)] + W(0,1) + [X(4), X(5), X(6)]
head = tile_mfmas(0, 1) + tile_mfmas(3, 1) + tile_mfmas(0, 2) + tile_mfmas(3, 2)
n16_issued = len(r16) - len(left16)
e(f's_waitcnt lgkmcnt({min(12, n16_issued)})')
rq = left16 + first17 + rest17
gq = group2(rq)
issued = 0
def pop_reads():
    global issued
    if gq:
        for x in gq.pop(0):
            e(x); issued += 1
for i, m in enumerate(head):
    if i == 8:
        e(f's_waitcnt lgkmcnt({min(12, issued - len(left16))})')
    e(m); pop_reads()
e(f's_waitcnt lgkmcnt({min(12, issued - len(left16) - len(first17))})')
for m in tile_mfmas(0, 0):
    e(m); pop_reads()
assert not gq
e('s_waitcnt lgkmcnt(3)')
rest = tile_mfmas(3, 0) + tile_mfmas(1, 1) + tile_mfmas(1, 2) + tile_mfmas(1, 0) + tile_mfmas(2, 1) + tile_mfmas(2, 2) + tile_mfmas(2, 0) \
     + tile_mfmas(4, 1) + tile_mfmas(4, 2) + ['WAIT0'] + tile_mfmas(4, 0)
done_at = {0: 0, 3: 4, 1: 22, 2: 40, 4: 58}
emitted = 0
since = {0: 1}
def em(m):
    global emitted
    if m == 'WAIT0':
        e('s_waitcnt lgkmcnt(0)'); m = rest.pop(0)
    e(m); emitted += 1
    for k in since: since[k] += 1
    for tl, at in done_at.items():
        if at == emitted: since[tl] = 0
def ev(x):
    e(x)
    for k in since: since[k] += 1
def need(tl):
    while tl not in since: em(rest.pop(0))
    while since[tl] < 8:
        if rest and not (tl == 0 and emitted >= int(opt.get('hz', 99))): em(rest.pop(0))
        else:
            e(f's_nop {8 - since[tl] - 1}'); since[tl] = 8
def cost(ins):
    if 'exp' in ins or 'rcp' in ins: return 8
    if 'v_pk' in ins or 'v_fma' in ins: return 5
    return 4
def tile_ops(tile, Q):
    a0 = acc(tile, 0)
    def two(pkf, sf):
        return [('pk', pkf(i), [sf(i), sf(i+1)]) for i in range(0, 8, 2)]
    ops = []
    ops += two(lambda i: f'v_pk_fma_f32 v[{a0+i}:{a0+i+1}], v[{a0+i}:{a0+i+1}], v[{SC2+i}:{SC2+i+1}], v[{SH2+i}:{SH2+i+1}]',
               lambda i: f'v_fma_f32 v{a0+i}, v{a0+i}, v{SC2+i}, v{SH2+i}')
    ops += [('s', f'v_exp_f32 v{T+i}, v{a0+i}') for i in range(8)]
    ops += two(lambda i: f'v_pk_fma_f32 v[{T+i}:{T+i+1}], v[{T+i}:{T+i+1}], s[{sNL}:{sNL+1}], s[{sNL}:{sNL+1}]',
               lambda i: f'v_fma_f32 v{T+i}, v{T+i}, s{sNL}, s{sNL}')
    ops += [('s', f'v_rcp_f32 v{T+i}, v{T+i}') for i in range(8)]
    ops += two(lambda i: f'v_pk_mul_f32 v[{a0+i}:{a0+i+1}], v[{a0+i}:{a0+i+1}], v[{T+i}:{T+i+1}]',
               lambda i: f'v_mul_f32 v{a0+i}, v{a0+i}, v{T+i}')
    ops += [('s', f'v_cvt_pk_bf16_f32 v{P+i//2}, v{a0+i}, v{a0+i+1}') for i in range(0, 8, 2)]
    if FULL:
        cv = ops[-4:]
        ops = ops[:-4] + [cv[0], cv[1], cv[2], ('s', f'ds_write_b64 v{cSw}, v[{P}:{P+1}] offset:{tile*4096}'), cv[3],
                          ('s', f'ds_write_b64 v{cSw1}, v[{P+2}:{P+3}] offset:{tile*4096}')]
    else:
        ops += [('s', 's_nop 1'), ('s', f'v_permlane16_swap_b32 v{P}, v{P+2}'), ('s', f'v_permlane16_swap_b32 v{P+1}, v{P+3}'),
                ('s', f'ds_write_b128 v{cSw}, v[{P}:{P+3}]'), ('s', f'ds_read_b128 v[{Q}:{Q+3}], v{cSr}')]
    return ops
def tile_store(tile, Q):
    if tile < 4:
        return f'buffer_store_dwordx4 v[{Q}:{Q+3}], v{vOut}, s[{sOut}:{sOut+3}], 0 offen offset:{tile*1152} {STF}'
    return f'buffer_store_dwordx4 v[{Q}:{Q+3}], v{vOutM}, s[{sOut}:{sOut+3}], 0 offen {STL}'
pend = None
budget = 0
GAPV = int(opt.get('gapv', 8))
for n, tl in enumerate([0, 3, 1, 2, 4]):
    Q = Qs[n % 2]
    need(tl)
    if 't2st' in opt: e(f's_memtime s[{84+2*n}:{85+2*n}]')
    for i, op in enumerate(tile_ops(tl, Q)):
        if op[0] == 'pk':
            ins = [op[1]] if (PK == 2 or (PK == 1 and not rest)) else op[2]
        else:
            ins = [op[1]]
        for x in ins:
            ev(x); budget += cost(x)
            if rest and budget >= GAPV:
                em(rest.pop(0)); budget = 0
        if FULL:
            if pend is not None and i == 8:
                ev('s_waitcnt lgkmcnt(0)'); ev('s_barrier')
                ev(f'ds_read_b128 v[{pend[1]}:{pend[1]+3}], v{cSr} offset:{pend[0]*4096}')
            if pend is not None and i == 20:
                ev('s_waitcnt lgkmcnt(0)')
                ev(tile_store(*pend)); pend = None
        elif pend is not None and i == 12:
            ev('s_waitcnt lgkmcnt(0)')
            ev(tile_store(*pend)); pend = None
    pend = (tl, Q)
if 't2st' in opt: e('s_memtime s[94:95]')
if FULL:
    e('s_waitcnt lgkmcnt(0)'); e('s_barrier')
    e(f'ds_read_b128 v[{pend[1]}:{pend[1]+3}], v{cSr} offset:{pend[0]*4096}')
e('s_waitcnt lgkmcnt(0)')
e(tile_store(*pend))
stamp(4)
cstamp(7)
if 'pst' in opt or 't2st' in opt:
    e('s_waitcnt lgkmcnt(0)')
    if 't2st' in opt: e(f's_mov_b32 s4, s{sStamp+14}')
    e(f's_mov_b32 s{sStamp+18}, s84'); e(f's_mov_b32 s{sStamp+19}, s86')
    e(f's_mov_b32 s{sStamp+20}, s88'); e(f's_mov_b32 s{sStamp+21}, s90')
    e(f's_mov_b32 s{sStamp+22}, s92'); e(f's_mov_b32 s{sStamp+23}, s94')
    e(f's_mov_b32 s{sStamp+28}, s4'); e(f's_mov_b32 s{sStamp+29}, s4')
stamp_flush([0,1,2,3,4,5,6,7,8] + ([9,10,11,14] if ('pst' in opt or 't2st' in opt) else []))
e('s_endpgm')
for name, fidx in spin_sites:
    e(f'L_cspin{name}:')
    if STAMP: e(f's_add_u32 s{sStamp+16}, s{sStamp+16}, 1')
    e(poll(fidx))
    e('s_waitcnt lgkmcnt(0)')
    e(f'v_cmp_ne_u32 vcc, 0, v{cPoll}')
    e(f's_cbranch_vccnz L_cspin{name}')
    e(f's_branch L_cback{name}')
e('L_end:')
e('s_endpgm')

def render(lines):
    body = '\n'.join(lines)
    return HEADER + f'''; Override launch geometry by editing the next line (default: block=256,
; grid=ceil(out_elems/256), lds=0). Harness parses it; keep it on one line.
; @launch grid=({NWG},1,1) block=(512,1,1) lds={LDS_BYTES}
.amdgcn_target "amdgcn-amd-amdhsa--gfx950"
.text
.globl standalone__batchnorm__sampling_kernel
{'' if 'noal' in opt else '.p2align 12'}
.p2align 8
.type standalone__batchnorm__sampling_kernel,@function
standalone__batchnorm__sampling_kernel:
{body}
.section .rodata,"a"
.p2align 6
.amdhsa_kernel standalone__batchnorm__sampling_kernel
  .amdhsa_next_free_vgpr 256
  .amdhsa_next_free_sgpr 96
  .amdhsa_accum_offset 256
  .amdhsa_group_segment_fixed_size 0
  .amdhsa_kernarg_size 72
  .amdhsa_user_sgpr_count 2
  .amdhsa_user_sgpr_kernarg_segment_ptr 1
  .amdhsa_system_sgpr_workgroup_id_x 1
.end_amdhsa_kernel
'''
import subprocess, re, os
def offsets(lines):
    open('_g.s', 'w').write(render(lines))
    subprocess.run(['clang', '-x', 'assembler', '-target', 'amdgcn-amd-amdhsa', '-mcpu=gfx950', '-c', '_g.s', '-o', '_g.o'], check=True)
    d = subprocess.run(['llvm-objdump', '-d', '--mcpu=gfx950', '_g.o'], capture_output=True, text=True).stdout
    offs = [int(m.group(1), 16) for m in re.finditer(r'// ([0-9A-F]{12}):', d)]
    idx = [i for i, l in enumerate(lines) if l.startswith('    ')]
    assert len(offs) == len(idx), (len(offs), len(idx))
    return dict(zip(idx, offs))
if NPAD:
    KSTART = 0x300
    lines = out
    i0 = lines.index('L_cpoll0:')
    for p in range(NPAD):
        tmp = lines + [f'L_pad{q}:' for q in range(p, NPAD)] + ['    s_endpgm']
        offs = offsets(tmp)
        first = (offs[i0+1] + KSTART) // 4096
        bnd = 4096*(first + p + 1) - KSTART
        i = min(i for i, o in offs.items() if o >= bnd)
        lines = lines[:i] + [f'L_pad{p}:', f'    s_cbranch_execz L_ret{p}'] + lines[i:]
    out = lines
open(dst, 'w').write(render(out))
```

```python
import sys
opt = {}
dst = 'standalone__batchnorm__sampling.s'
for a in sys.argv[1:]:
    if a.startswith('--'):
        k, _, v = a[2:].partition('=')
        opt[k] = v if v else True
    else:
        dst = a
STAMP = 'stamp' in opt
AMP = None
if 'amp' in opt:
    AMP = tuple(int(v) for v in opt['amp'].split(',')); STAMP = True
MAP = opt.get('map', 'p4')
ORDER = opt.get('order', '013246578_120435768_201354687')
XNT = ' nt' if 'xnt' in opt else ''
STF = opt.get('stf', 'sc1').replace('+', ' ')
STL = opt.get('stl', STF).replace('+', ' ').replace('none', '')
PK = int(opt.get('pk', 1))
FLIP = MAP in ('p4', 'p5') and 'noflip' not in opt
LST = 'lst' in opt
NF0 = opt.get('nf0')
PERM = [int(c) for c in opt.get('perm', '012')]
CLS = PERM != [0, 1, 2]
sC = 49
PF = opt.get('ppos', 'mid')

out = []
def e(s=''):
    if 'nodma' in opt and s.startswith('buffer_load_dwordx4') and s.endswith('lds'): return
    out.append('    ' + s if s and not s.endswith(':') else s)

HEADER = open('standalone__batchnorm__sampling.s.ref').read().split('; Override launch')[0]

WSLOT = 24576
XSLOT = 20480 + 256
XBASE = 0
WBASE = XSLOT * 3
FLAGL = WBASE + WSLOT * 3
PARM = FLAGL + 1024
STG = PARM + 512
FULL = 'full' in opt
LDS_BYTES = STG + (20480 if FULL else 4096)
assert LDS_BYTES <= 163840
X_BYTES = 1024*4*576*2
W_BYTES = 3*576*576*2
TAP = 576*576*2
ROW = 1152

sX, sW, sOut = 20, 24, 28
sWave, sQ, sCt, sB0 = 32, 33, 34, 35
sT0, sT1, sT2, sT3 = 36, 37, 38, 39
sXl, sF, sWl, sK = 40, 41, 42, 43
sIt, sDX, sDW = 44, 45, 46
sSl, sFl = 47, 48
sOrd, sG, sKd, sKf = 16, 17, 18, 19
sNv = sX + 2
sStamp = 52
NST = 16
def stamp(i):
    if STAMP: e(f's_memrealtime s[{sStamp+2*i}:{sStamp+2*i+1}]')
def cstamp(i):
    if STAMP: e(f's_memtime s[{sStamp+2*i}:{sStamp+2*i+1}]')
def stamp_flush(used):
    if not STAMP: return
    e('s_waitcnt vmcnt(0) lgkmcnt(0)')
    stamp(NST-1)
    e(f's_memtime s[{sStamp+26}:{sStamp+27}]')
    e('s_waitcnt lgkmcnt(0)')
    if AMP is not None:
        e(f's_sub_u32 s3, s{sStamp+2*AMP[1]}, s{sStamp+2*AMP[0]}')
        e(f's_mul_i32 s3, s3, {AMP[3] if len(AMP) > 3 else 20}')
        e(f's_add_u32 s3, s3, s{sStamp+2*(NST-1)}')
        e('L_amp:')
        e('s_memrealtime s[4:5]')
        e('s_waitcnt lgkmcnt(0)')
        e('s_sub_u32 s6, s4, s3')
        e('s_cmp_lt_i32 s6, 0')
        e('s_cbranch_scc1 L_amp')
        return
    e(f's_lshl_b32 s3, s2, 3')
    e(f's_add_u32 s3, s3, s{sWave}')
    e('s_add_u32 s3, s3, 4')
    e(f's_mul_i32 s3, s3, {NST*8}')
    e('v_mov_b32 v0, s3')
    e('s_mov_b64 exec, 1')
    for i in used + [12, 13, NST-1]:
        e(f'v_mov_b32 v2, s{sStamp+2*i}')
        e(f'v_mov_b32 v3, s{sStamp+2*i+1}')
        e(f'global_store_dwordx2 v0, v[2:3], s[50:51] offset:{8*i}')
        e('s_nop 1')
def div_small(dstr, src_, d, maxv):
    for sh in range(4, 16):
        m = -(-(1 << sh) // d)
        if m <= 64 and all((t*m) >> sh == t // d for t in range(maxv+1)):
            e(f's_mul_i32 s{dstr}, s{src_}, {m}')
            e(f's_lshr_b32 s{dstr}, s{dstr}, {sh}')
            return
    assert 0
def pack(order): return sum(s << (4*i) for i, s in enumerate(order))
orders = [[int(ch) for ch in o] for o in ORDER.split('_')]
for g, o in enumerate(orders): assert sorted(o) == list(range(9)), o
assert len(orders) == 3
FIRST_IS_G = all(o[0] == g for g, o in enumerate(orders))
FIRST_IS_0 = all(o[0] == 0 for o in orders)
assert FIRST_IS_G or FIRST_IS_0

e(f's_load_dwordx2 s[{sW}:{sW+1}], s[0:1], 8')
e(f's_load_dwordx2 s[{sX}:{sX+1}], s[0:1], 0')
if PF == 'front': e('s_load_dwordx8 s[8:15], s[0:1], 16')
if STAMP:
    stamp(0)
    e(f's_memtime s[{sStamp+24}:{sStamp+25}]')
e(f's_lshr_b32 s{sT1}, s2, 3')
if 'nocpf' not in opt:
    e('s_getpc_b64 s[30:31]')
    e('L_pc:')
    e('v_and_b32 v2, 0x180, v0')
    e(f'v_lshl_add_u32 v2, s{sT1}, 9, v2')
    e('v_min_u32 v2, L_end-L_pc, v2')
    e('global_load_dword v255, v2, s[30:31]')
e('v_readfirstlane_b32 s3, v0')
e(f's_and_b32 s{sT0}, s2, 7')
if MAP == 'p3':
    NWG = 240
    e(f's_mul_i32 s{sT2}, s{sT0}, 27')
    e(f's_mul_i32 s{sT3}, s{sT0}, 3')
    e(f's_addk_i32 s{sT3}, {216-27}')
    e(f's_cmp_ge_u32 s{sT1}, 27')
    e(f's_cselect_b32 s{sT2}, s{sT3}, s{sT2}')
    e(f's_add_u32 s{sT2}, s{sT2}, s{sT1}')
    e(f's_cmp_ge_u32 s{sT1}, 30')
    e(f's_cselect_b32 s{sT2}, -1, s{sT2}')
    e(f's_cmpk_ge_u32 s{sT2}, 234')
    e('s_cbranch_scc1 L_end')
    div_small(sQ, sT2, 9, 233)
    e(f's_mul_i32 s{sT0}, s{sQ}, 9')
    e(f's_sub_u32 s{sCt}, s{sT2}, s{sT0}')
    e(f's_mul_i32 s{sB0}, s{sQ}, 40')
    e(f's_mov_b32 s{sNv}, {X_BYTES}')
elif MAP == 'p5':
    NWG = 256
    nL, nR = (int(v) for v in opt.get('n', '39,37').split(','))
    nBL = -(-(1024 - 24*nL) // 3); nBR = -(-(1024 - 24*nR) // 4)
    assert max(nL, nR, nBL, nBR) <= 40
    def P(M, ncol, c0, n, lim):
        assert all((j*M) >> 8 == j // ncol for j in range(lim))
        return M | ncol << 8 | c0 << 12 | n << 16 | lim << 24
    e(f's_mul_i32 s{sB0}, s{sT0}, {6*nL}')
    e(f's_mul_i32 s{sT2}, s{sT0}, {8*nR}')
    e(f's_sub_u32 s{sT2}, s{sT2}, {32*nR}')
    e(f's_cmp_lt_u32 s{sT0}, 4')
    e(f's_cselect_b32 s{sB0}, s{sB0}, s{sT2}')
    e(f's_mov_b32 s{sT2}, {P(64, 4, 5, nR, 32)}')
    e(f's_cselect_b32 s{sT2}, {P(52, 5, 0, nL, 30)}, s{sT2}')
    e(f's_cmp_lg_u32 s{sT0}, 7')
    e('s_cbranch_scc1 L_mp')
    e(f's_sub_u32 s{sT3}, s{sT1}, 15')
    e(f's_cselect_b32 s{sT1}, s{sT1}, s{sT3}')
    e(f's_cselect_b32 s{sB0}, {24*nL}, s{sB0}')
    e(f's_mov_b32 s{sT2}, {P(64, 4, 5, nBR, 16)}')
    e(f's_cselect_b32 s{sT2}, {P(52, 5, 0, nBL, 15)}, s{sT2}')
    e('L_mp:')
    e(f's_lshr_b32 s{sT0}, s{sT2}, 24')
    e(f's_cmp_ge_u32 s{sT1}, s{sT0}')
    e('s_cbranch_scc1 L_end')
    e(f's_and_b32 s{sQ}, s{sT2}, 0xff')
    e(f's_mul_i32 s{sQ}, s{sQ}, s{sT1}')
    e(f's_lshr_b32 s{sQ}, s{sQ}, 8')
    e(f's_bfe_u32 s{sT0}, s{sT2}, 0x40008')
    e(f's_mul_i32 s{sT0}, s{sT0}, s{sQ}')
    e(f's_sub_u32 s{sCt}, s{sT1}, s{sT0}')
    e(f's_bfe_u32 s{sT0}, s{sT2}, 0x4000c')
    e(f's_add_u32 s{sCt}, s{sCt}, s{sT0}')
    e(f's_bfe_u32 s{sT3}, s{sT2}, 0x80010')
    e(f's_mul_i32 s{sT0}, s{sQ}, s{sT3}')
    e(f's_add_u32 s{sB0}, s{sB0}, s{sT0}')
    e(f's_add_u32 s{sNv}, s{sB0}, s{sT3}')
    e(f's_min_u32 s{sNv}, s{sNv}, 0x400')
    e(f's_mulk_i32 s{sNv}, 4608')
else:
    NWG = 256
    def P(M, ncol, lim, c0):
        assert all((j*M) >> 8 == j // ncol for j in range(lim))
        return M | ncol << 8 | lim << 16 | c0 << 24
    e(f's_mul_i32 s{sB0}, s{sT0}, 60')
    e(f's_mul_i32 s{sT2}, s{sT0}, 80')
    e(f's_sub_u32 s{sT2}, s{sT2}, 320')
    e(f's_cmp_lt_u32 s{sT0}, 4')
    e(f's_cselect_b32 s{sB0}, s{sB0}, s{sT2}')
    e(f's_mov_b32 s{sT2}, {P(64, 4, 32, 5)}')
    e(f's_cselect_b32 s{sT2}, {P(52, 5, 30, 0)}, s{sT2}')
    e(f's_cmp_eq_u32 s{sT0}, 7')
    BR = int(opt.get('br', 3))
    e(f's_cselect_b32 s{sT2}, {P(29, 9, 9*BR, 0)}, s{sT2}')
    e(f's_cselect_b32 s{sT3}, {int(opt.get("bn", -(-64//BR)))}, 40')
    e(f's_bfe_u32 s{sT0}, s{sT2}, 0x80010')
    e(f's_cmp_ge_u32 s{sT1}, s{sT0}')
    e('s_cbranch_scc1 L_help' if 'help' in opt else 's_cbranch_scc1 L_end')
    e(f's_and_b32 s{sQ}, s{sT2}, 0xff')
    e(f's_mul_i32 s{sQ}, s{sQ}, s{sT1}')
    e(f's_lshr_b32 s{sQ}, s{sQ}, 8')
    e(f's_bfe_u32 s{sT0}, s{sT2}, 0x80008')
    e(f's_mul_i32 s{sT0}, s{sT0}, s{sQ}')
    e(f's_sub_u32 s{sCt}, s{sT1}, s{sT0}')
    e(f's_lshr_b32 s{sT2}, s{sT2}, 24')
    e(f's_add_u32 s{sCt}, s{sCt}, s{sT2}')
    e(f's_mul_i32 s{sT0}, s{sQ}, s{sT3}')
    e(f's_lshl2_add_u32 s{sB0}, s{sB0}, s{sT0}')
    e(f's_add_u32 s{sNv}, s{sB0}, s{sT3}')
    e(f's_min_u32 s{sNv}, s{sNv}, 0x400')
    e(f's_mulk_i32 s{sNv}, 4608')
if FLIP:
    e(f's_lshr_b32 s{sF}, 0x38, s{sQ}')
    e(f's_and_b32 s{sF}, s{sF}, 1')
e(f's_lshr_b32 s{sWave}, s3, 6')
e('v_and_b32 v1, 63, v0')
e(f's_cmp_ge_u32 s{sWave}, 4')
e('s_cbranch_scc1 L_consumer')

vX = [10, 11, 12, 13, 14]
vW = [15, 16, 17]
vOOB = 18
vP = 20
e(f's_add_u32 s{sG}, s{sQ}, s{sCt}')
div_small(sT1, sG, 3, 40)
e('v_lshrrev_b32 v2, 3, v1')
e(f's_mul_i32 s{sT1}, s{sT1}, 3')
e('v_and_b32 v3, 7, v1')
e(f's_sub_u32 s{sG}, s{sG}, s{sT1}')
sG0 = sG
if CLS:
    e(f's_and_b32 s{sC}, s2, 7')
    e(f's_cmp_eq_u32 s{sC}, 7')
    e(f's_cselect_b32 s{sC}, 31, 0x1e0')
    e(f's_lshr_b32 s{sC}, s{sC}, s{sCt}')
    e(f's_and_b32 s{sC}, s{sC}, 1')
    if PERM[0]:
        sG0 = sOrd
        e(f's_mul_i32 s{sG0}, s{sC}, {3*PERM[0]}')
        if FIRST_IS_G: e(f's_add_u32 s{sG0}, s{sG0}, s{sG}')
        FIRST_IS_G = True
e('v_and_b32 v9, 2, v2')
e(f's_and_b32 s{sT2}, s{sWave}, 1')
e('v_mul_u32_u24 v8, 1152, v2')
e(f's_lshl_b32 s{sT3}, s{sT2}, 2')
e('v_xor_b32 v9, v9, v3')
e(f's_mul_i32 s{sT0}, s{sWave}, 72')
e(f'v_xor_b32 v9, s{sT3}, v9')
e(f's_add_u32 s{sT0}, s{sT0}, s{sCt}')
e('v_lshl_add_u32 v9, v9, 4, v8')
e(f's_lshl_b32 s{sT0}, s{sT0}, 7')
e(f's_mov_b32 s{sW+2}, {W_BYTES}')
e(f'v_add_u32 v{vW[0]}, s{sT0}, v9')
e(f's_mov_b32 s{sW+3}, 0x20000')
e(f'v_add_u32 v{vW[1]}, {TAP-1024}, v{vW[0]}')
if FIRST_IS_G:
    if FLIP:
        e(f's_lshl1_add_u32 s{sK}, s{sG0}, s{sF}')
        e(f's_mul_i32 s{sK}, s{sK}, {32*ROW}')
    else:
        e(f's_mul_i32 s{sK}, s{sG0}, {64*ROW}')
else:
    e(f's_mul_i32 s{sK}, s{sF}, {32*ROW}' if FLIP else f's_mov_b32 s{sK}, 0')
e(f'v_add_u32 v{vW[2]}, {2*TAP-2048}, v{vW[0]}')
e(f's_mul_i32 s{sWl}, s{sWave}, 6144')
e('v_lshrrev_b32 v4, 4, v1')
e(f's_add_u32 s{sWl}, s{sWl}, {WBASE}')
e('v_xor_b32 v5, v3, v4')
e(f's_mov_b32 m0, s{sWl}')
e('v_lshlrev_b32 v5, 4, v5')
e(f's_mov_b32 s{sX+3}, s{sW+3}')
e('v_lshl_add_u32 v6, v8, 2, v5')
LST_OFF = False
def lstamp(lane_expr):
    if LST and not (LST_OFF and lane_expr != 30):
        e('s_memrealtime s[92:93]')
        e('s_waitcnt lgkmcnt(0)')
        e(f's_mov_b32 s95, {lane_expr}')
        e('v_mov_b32 v31, s92')
        e('v_cmp_eq_u32 vcc, s95, v1')
        e('s_nop 1')
        e('v_cndmask_b32 v30, v30, v31, vcc')
def dw(tap): e(f'buffer_load_dwordx4 v{vW[tap]}, s[{sW}:{sW+3}], s{sK} offen' + (f' offset:{tap*1024}' if tap else '') + ' lds')
def dx(i): e(f'buffer_load_dwordx4 v{vX[i]}, s[{sX}:{sX+3}], s{sT0} offen' + (f' offset:{i*1024}' if 0 < i < 4 else '') + f'{XNT} lds')
def ld_flag():
    e(f's_mov_b32 m0, s{sFl}')
    e('s_mov_b64 exec, 1')
    e(f'buffer_load_dword v{vOOB}, s[{sW}:{sW+3}], 0 offen lds')
    e('s_mov_b64 exec, -1')
    e(f's_add_u32 s{sFl}, s{sFl}, 16')
e('s_waitcnt lgkmcnt(0)')
if LST:
    e(f'v_mov_b32 v30, s{sStamp}')
    lstamp(2)
def par_load(lab):
    e(f's_cmp_lg_u32 s{sWave}, 3')
    e(f's_cbranch_scc1 {lab}')
    e(f's_lshl_b32 s{sT1}, s{sCt}, 7')
    e(f'v_lshl_add_u32 v{vP+4}, v1, 1, s{sT1}')
    if PF != 'front': e('s_waitcnt lgkmcnt(0)')
    for p in range(4):
        e(f'global_load_ushort v{vP+p}, v{vP+4}, s[{8+2*p}:{9+2*p}]')
    e(f'{lab}:')
if PF == 'front': par_load('L_lnop')
dw(0)
e(f's_lshl2_add_u32 s{sT1}, s{sB0}, s{sWave}')
e(f's_mulk_i32 s{sT1}, 1152')
if not NF0: e(f's_lshl_b32 s{sFl}, s{sWave}, 2')
dw(1)
e(f'v_add_u32 v{vX[0]}, s{sT1}, v6')
e(f's_mul_i32 s{sXl}, s{sWave}, 5120')
e(f'v_xor_b32 v{vX[1]}, 64, v{vX[0]}')
e(f's_lshl_b32 s{sT0}, s{sG0}, 7' if FIRST_IS_G else f's_mov_b32 s{sT0}, 0')
dw(2)
e(f's_mov_b32 m0, s{sXl}')
e(f'v_add_u32 v{vX[1]}, {8*4608-1024}, v{vX[1]}')
dx(0)
e(f'v_add_u32 v{vX[2]}, {20*4608-2048}, v{vX[0]}')
e(f's_lshr_b32 s{sT1}, s{sWave}, 1')
if not NF0: e(f's_add_u32 s{sFl}, s{sFl}, {FLAGL}')
dx(1)
e(f'v_add_u32 v{vX[3]}, {20*4608-2048}, v{vX[1]}')
e(f's_mul_i32 s{sT1}, s{sT1}, 10')
e(f's_add_u32 s{sT1}, s{sT1}, s{sT2}')
if not NF0: e(f'v_lshl_add_u32 v2, v1, 4, s{sFl}')
if not NF0: e(f'v_bfrev_b32 v{vOOB}, 2')
dx(2)
if not NF0: e(f'ds_write_b32 v2, v{vOOB}')
e(f's_lshl1_add_u32 s{sT1}, s{sT1}, s{sB0}')
e(f's_add_u32 s{sT1}, s{sT1}, 16')
e(f's_mulk_i32 s{sT1}, 4608')
e(f's_lshl_b32 s{sT3}, s{sT2}, 6')
dx(3)
e(f'v_xor_b32 v9, s{sT3}, v5')
e(f's_add_u32 m0, s{sXl}, 4096')
e(f'v_add3_u32 v{vX[4]}, v9, v8, s{sT1}')
dx(4)
if not NF0:
    e('s_waitcnt lgkmcnt(0)')
    ld_flag()
lstamp(4)
if FLIP:
    e(f's_mul_i32 s{sKf}, s{sF}, {32*ROW}')
    e(f's_lshl_b32 s{sKd}, s{sKf}, 1')
    e(f's_sub_u32 s{sKd}, {32*ROW}, s{sKd}')
KD = f's{sKd}' if FLIP else f'{32*ROW}'
e(f's_add_u32 m0, s{sWl}, 3072')
e(f's_add_u32 s{sK}, s{sK}, {KD}')
dw(0); dw(1); dw(2)
if not NF0: ld_flag()
if PF != 'front': e('s_load_dwordx8 s[8:15], s[0:1], 16')
lstamp(6)
if 'l0' in opt:
    for i, vm in enumerate((13, 12, 10, 8, 5, 1)):
        e(f's_waitcnt vmcnt({vm})')
        lstamp(8 + 2*i)
    LST_OFF = True
if not NF0: e('s_barrier')
if 'sched' not in opt:
    allo = list(orders)
    if CLS:
        allo += [[3*PERM[s//3] + s % 3 for s in o] for o in orders]
        e(f's_mul_i32 s{sC}, s{sC}, 3')
        e(f's_add_u32 s{sG}, s{sG}, s{sC}')
    ps = [pack(o[1:]) for o in allo]
    e(f's_mov_b32 s{sOrd}, {ps[0]}')
    for g in range(1, len(allo)):
        e(f's_cmp_eq_u32 s{sG}, {g}')
        e(f's_cselect_b32 s{sOrd}, {ps[g]}, s{sOrd}')
if PF == 'mid': par_load('L_lnop')
if 'sched' not in opt:
    e(f's_mov_b32 s{sIt}, 1')
    e(f's_mov_b32 s{sSl}, 0')
def advance():
    e(f's_add_u32 s{sSl}, s{sSl}, 1')
    e(f's_cmp_eq_u32 s{sSl}, 3')
    e(f's_cselect_b32 s{sSl}, 0, s{sSl}')
    e(f's_mov_b32 s{sDX}, {XSLOT}')
    e(f's_cselect_b32 s{sDX}, {(-2*XSLOT) & 0xffffffff}, s{sDX}')
    e(f's_mov_b32 s{sDW}, {WSLOT}')
    e(f's_cselect_b32 s{sDW}, {(-2*WSLOT) & 0xffffffff}, s{sDW}')
    e(f's_add_u32 s{sXl}, s{sXl}, s{sDX}')
    e(f's_add_u32 s{sWl}, s{sWl}, s{sDW}')
    e(f's_and_b32 s{sK}, s{sOrd}, 15')
    e(f's_lshl_b32 s{sT0}, s{sK}, 7')
    e(f's_mul_i32 s{sK}, s{sK}, {64*ROW}')
    if FLIP: e(f's_add_u32 s{sK}, s{sK}, s{sKf}')
    e(f's_lshr_b32 s{sOrd}, s{sOrd}, 4')
def issue_x():
    e(f's_mov_b32 m0, s{sXl}')
    e('s_nop 0')
    for i in range(4): dx(i)
    e(f's_add_u32 m0, s{sXl}, 4096')
    e('s_nop 0')
    dx(4)
def issue_w(ks):
    if ks:
        e(f's_add_u32 m0, s{sWl}, 3072')
        e(f's_add_u32 s{sK}, s{sK}, {KD}')
    else:
        e(f's_mov_b32 m0, s{sWl}')
        e('s_nop 0')
    for tap in range(3): dw(tap)
SCHED = opt.get('sched')
NF = 'nf' in opt or SCHED is not None
if SCHED:
    bl = [[int(c, 16) for c in s] for s in SCHED.split('_')]
    if len(bl) == 1: bl = bl*3
    sK2 = sSl
    for g in (1, 2):
        e(f's_cmp_eq_u32 s{sG}, {g}')
        e(f's_cbranch_scc1 L_lg{g}')
    for g in range(3):
        if g: e(f'L_lg{g}:')
        stream = [(p, i) for p in range(1, 9) for i in range(11)]
        cuts = {}
        for n in range(7):
            at = (n + 2 - 1)*11 + 11 - bl[g][n]
            cuts.setdefault(at, []).append(n)
        if NF0: cuts.setdefault(int(NF0), []).append(-1)
        cur_m0 = None
        for si in range(len(stream) + 1):
            pre = []
            if si < len(stream):
                p, i = stream[si]
                st = orders[g][p]; slot = p % 3
                if i == 0: pre.append(f's_movk_i32 s{sT0}, {st*128}')
                if i == 5: pre.append(f's_add_u32 s{sK}, s{sKf}, {st*64*ROW}' if FLIP else f's_mov_b32 s{sK}, {st*64*ROW}')
                if i == 8: pre.append(f's_add_u32 s{sK}, s{sK}, {KD}')
                want = ('x', slot*XSLOT + (4096 if i == 4 else 0)) if i < 5 else ('w', slot*WSLOT + (3072 if i >= 8 else 0))
                if want != cur_m0:
                    pre = [f's_add_u32 m0, s{sXl if want[0] == "x" else sWl}, {want[1]}'] + (pre if pre else ([] if si in cuts else ['s_nop 0']))
                    cur_m0 = want
            for x in pre: e(x)
            for n in cuts.get(si, []):
                e(f's_waitcnt vmcnt({si - (n+1)*11})')
                e('s_barrier')
            if PF == 'late' and si == (g + 1)*11: par_load(f'L_lnop{g}')
            if si < len(stream):
                dx(i) if i < 5 else dw((i - 5) % 3)
        if g < 2: e('s_branch L_lend')
    e('L_lend:')
elif NF:
    e('L_lloop:')
    advance()
    e(f's_mov_b32 m0, s{sXl}')
    E0 = int(opt.get('e0', 0))
    e(f's_cmp_lt_u32 s{sIt}, {3 + E0}')
    e('s_cbranch_scc1 L_lfree')
    e('s_waitcnt vmcnt(11)')
    e('s_barrier')
    e('L_lfree:')
    for i in range(4): dx(i)
    e(f's_add_u32 m0, s{sXl}, 4096')
    e(f's_add_u32 s{sIt}, s{sIt}, 1')
    dx(4)
    issue_w(0)
    if E0:
        e(f's_sub_u32 s{sDX}, s{sIt}, 3')
        e(f's_cmp_ge_u32 s{sDX}, {E0}')
        e('s_cbranch_scc1 L_lnb')
        e('s_waitcnt vmcnt(8)')
        e('s_barrier')
        e('L_lnb:')
    issue_w(1)
    if LST:
        e(f's_lshl_b32 s94, s{sIt}, 1')
        e('s_add_u32 s94, s94, 4')
    lstamp('s94')
    e(f's_cmp_lt_u32 s{sIt}, 9')
    e('s_cbranch_scc1 L_lloop')
else:
    e('L_lloop:')
    advance()
    e(f's_cmp_lt_u32 s{sIt}, 3')
    e('s_cbranch_scc1 L_lfree')
    e('s_barrier')
    e('L_lfree:')
    issue_x(); issue_w(0)
    e(f's_cmp_eq_u32 s{sIt}, 8')
    e('s_cbranch_scc1 L_llast')
    issue_w(1)
    ld_flag()
    if LST:
        e(f's_lshl_b32 s94, s{sIt}, 1')
        e('s_add_u32 s94, s94, 6')
    lstamp('s94')
    e(f's_add_u32 s{sIt}, s{sIt}, 1')
    e('s_branch L_lloop')
    e('L_llast:')
    ld_flag()
    issue_w(1)

def par_compute():
    for p in range(4):
        e(f'v_lshlrev_b32 v{vP+p}, 16, v{vP+p}')
    e(f'v_add_f32 v{vP+1}, 0x3727c5ac, v{vP+1}')
    e(f'v_rsq_f32 v{vP+1}, v{vP+1}')
    e(f'v_mul_f32 v{vP+2}, 0xbfb8aa3b, v{vP+2}')
    e(f'v_mul_f32 v{vP+3}, 0xbfb8aa3b, v{vP+3}')
    e(f'v_mul_f32 v{vP+2}, v{vP+1}, v{vP+2}')
    e(f'v_fma_f32 v{vP+3}, -v{vP}, v{vP+2}, v{vP+3}')
    e('v_lshlrev_b32 v2, 2, v1')
    e(f'v_add_u32 v2, {PARM}, v2')
def par_write():
    e(f'ds_write_b32 v2, v{vP+2}')
    e(f'ds_write_b32 v2, v{vP+3} offset:256')
if NF:
    if not SCHED:
        e('s_waitcnt vmcnt(11)')
        e('s_barrier')
    e(f's_cmp_lg_u32 s{sWave}, 3')
    e('s_cbranch_scc1 L_lfin')
    par_compute()
    e('s_waitcnt vmcnt(3)')
    par_write()
    e('L_lfin:')
    e('s_waitcnt vmcnt(3)')
    e('s_barrier')
else:
    e(f's_cmp_lg_u32 s{sWave}, 3')
    e('s_cbranch_scc1 L_lfin')
    e('s_waitcnt vmcnt(12)')
    par_compute()
    e('s_waitcnt vmcnt(0)')
    par_write()
    e('L_lfin:')
e('s_waitcnt vmcnt(0) lgkmcnt(0)')
e('s_barrier')
if LST:
    lstamp(30)
    e('s_load_dwordx2 s[50:51], s[0:1], 64')
    e(f's_lshl_b32 s3, s2, 3')
    e(f's_add_u32 s3, s3, s{sWave}')
    e(f's_mul_i32 s3, s3, {NST*8}')
    e('v_lshl_add_u32 v0, v1, 2, s3')
    e('v_and_b32 v2, 1, v1')
    e('v_cmp_eq_u32 vcc, 0, v2')
    e('s_nop 1')
    e('v_cndmask_b32 v30, 0, v30, vcc')
    e('s_waitcnt lgkmcnt(0)')
    e('s_mov_b64 exec, 0xffffffff')
    e('global_store_dword v0, v30, s[50:51]')
e('s_endpgm')

if 'help' in opt:
    HS = [int(c) for c in str(opt['help'])]
    e('L_help:')
    e(f's_cmp_ge_u32 s{sT1}, 32')
    e('s_cbranch_scc1 L_end')
    e(f's_sub_u32 s{sT1}, s{sT1}, s{sT0}')
    e(f's_and_b32 s{sT0}, s2, 7')
    e(f's_min_u32 s{sT0}, s{sT0}, 4')
    e(f's_lshl1_add_u32 s{sT1}, s{sT0}, s{sT1}')
    e(f's_lshr_b32 s{sWave}, s3, 6')
    HW = int(opt.get('hw', 8))
    if HW == 8:
        e(f's_lshl3_add_u32 s{sT1}, s{sT1}, s{sWave}')
    else:
        e(f's_cmp_ge_u32 s{sWave}, {HW}')
        e('s_cbranch_scc1 L_end')
        e(f's_mul_i32 s{sT1}, s{sT1}, {HW}')
        e(f's_add_u32 s{sT1}, s{sT1}, s{sWave}')
    e('v_and_b32 v1, 63, v0')
    e(f's_mov_b32 s{sX+2}, {X_BYTES}')
    e(f's_mov_b32 s{sX+3}, 0x20000')
    e(f's_movk_i32 s{sK}, 128')
    e(f'v_lshl_add_u32 v2, s{sT1}, 6, v1')
    e('v_mul_u32_u24 v2, 1152, v2')
    e(f's_cmp_lt_u32 s{sT1}, 64')
    e('s_waitcnt lgkmcnt(0)')
    e('s_cbranch_scc1 L_hgo')
    e(f's_sub_u32 s{sT1}, s{sT1}, 64')
    e(f's_cmp_ge_u32 s{sT1}, 27')
    e('s_cbranch_scc1 L_end')
    div_small(sT0, sT1, 9, 40)
    e(f's_mul_i32 s{sT2}, s{sT0}, {TAP//128 - 576}')
    e(f's_lshl_b32 s{sT1}, s{sT1}, 6')
    e(f's_add_u32 s{sT1}, s{sT1}, s{sT2}')
    e(f'v_add_u32 v2, s{sT1}, v1')
    e('v_lshlrev_b32 v2, 7, v2')
    e(f's_mov_b32 s{sX}, s{sW}')
    e(f's_mov_b32 s{sX+1}, s{sW+1}')
    e(f's_mov_b32 s{sX+2}, {W_BYTES}')
    e(f's_mov_b32 s{sK}, {64*ROW}')
    e('L_hgo:')
    for i in range(int(opt.get('hdel', 0))):
        e('s_mov_b64 exec, 1')
        e(f's_mul_i32 s{sT0}, s{sK}, {HS[i]}')
        e(f'buffer_load_dword v3, v2, s[{sX}:{sX+3}], s{sT0} offen')
        e('s_waitcnt vmcnt(0)')
        e('s_mov_b64 exec, -1')
    for i, st in enumerate(HS):
        e(f's_mul_i32 s{sT0}, s{sK}, {st}')
        e(f'buffer_load_dword v{4+i}, v2, s[{sX}:{sX+3}], s{sT0} offen')
        if i + 1 < len(HS): e('s_barrier')
    e('s_waitcnt vmcnt(0)')
    e('s_endpgm')

e('L_consumer:')
e('s_load_dwordx2 s[28:29], s[0:1], 48')
if STAMP: e('s_load_dwordx2 s[50:51], s[0:1], 64')
e('s_setprio 3')
vXa = [2, 3]; vXm = [[4, 5], [252, 253], [6, 7]]
vWa = [8, 9]
vOut = 10; vOutM = 11
vPar = 12
ACC = 16
F = [56, 108, 160]
SC2 = 212; SH2 = 220
T = 228; P = 236; Qs = [240, 244]
cFl, cPoll, cSw, cSr = 248, 249, 250, 251
def acc(tile, t): return ACC + (tile*2 + t)*4
def fx(buf, i): return F[buf] + i*4
def fw(buf, k, t): return F[buf] + 28 + (k*2 + t)*4
A0, A1, A2 = T, T+1, T+2
e('v_and_b32 v13, 15, v1')
e('v_lshrrev_b32 v14, 4, v1')
for r in range(4):
    e(f'v_mov_b32 v{ACC+r}, 0')
e('v_min_u32 v15, 2, v14')
e(f'v_mul_u32_u24 v15, {XSLOT}, v15')
e('v_lshl_add_u32 v15, v13, 4, v15')
e(f'ds_write_b128 v15, v[{ACC}:{ACC+3}] offset:{XBASE+20480}')
e(f's_sub_u32 s{sWave}, s{sWave}, 4')
e(f's_lshr_b32 s{sT0}, s{sWave}, 1')
e(f's_and_b32 s{sT1}, s{sWave}, 1')
if not NF0:
    e('v_and_b32 v15, 3, v1')
    e('v_lshlrev_b32 v15, 2, v15')
    e(f'v_add_u32 v{cFl}, {FLAGL}, v15')
GX = 14
if FLIP:
    GX = A2 + 1
    e(f's_lshl_b32 s{sIt}, s{sF}, 2')
    e(f'v_xor_b32 v{GX}, s{sIt}, v14')
e(f's_lshl_b32 s{sT3}, s{sT0}, 11')
e('v_lshrrev_b32 v15, 1, v13')
e(f'v_xor_b32 v15, v15, v{GX}')
e('v_lshlrev_b32 v15, 4, v15')
e('v_lshl_add_u32 v15, v13, 7, v15')
e(f'v_add_u32 v{vXa[0]}, s{sT3}, v15')
e(f'v_xor_b32 v{vXa[1]}, 64, v{vXa[0]}')
e(f's_mul_i32 s{sIt}, s{sT0}, 10240')
e(f's_add_u32 s{sIt}, s{sIt}, 4096')
e(f'v_lshrrev_b32 v{A2}, 3, v13')
e(f'v_lshl_add_u32 v{A2}, v{A2}, 12, s{sIt}')
e(f'v_add_u32 v{vXm[1][0]}, v{A2}, v15')
e(f'v_xor_b32 v{vXm[1][1]}, 64, v{vXm[1][0]}')
for k in (0, 2):
    regs = vXm[k]
    e(f'v_add_u32 v15, {1 if k==2 else 3}, v13')
    e(f'v_bfi_b32 v15, 3, v15, v13')
    e(f'v_lshrrev_b32 v{A0}, 1, v15')
    e(f'v_xor_b32 v{A0}, v{A0}, v{GX}')
    e(f'v_lshlrev_b32 v{A0}, 4, v{A0}')
    e(f'v_lshl_add_u32 v{A0}, v15, 7, v{A0}')
    e(f'v_add_u32 v{A1}, v{A2}, v{A0}')
    e(f'v_and_b32 v{A0}, 0xff, v{A0}')
    e('v_and_b32 v15, 3, v13')
    e(f'v_cmp_eq_u32 vcc, {0 if k==0 else 3}, v15')
    e(f'v_add_u32 v{A0}, {XBASE+20480}, v{A0}')
    e('s_nop 0')
    e(f'v_cndmask_b32 v{regs[0]}, v{A1}, v{A0}, vcc')
    e(f'v_xor_b32 v{regs[1]}, 64, v{regs[0]}')
e('v_lshrrev_b32 v15, 2, v13')
e(f'v_mul_u32_u24 v{A0}, 6144, v14')
e(f'v_lshl_add_u32 v{A0}, v15, 7, v{A0}')
e('v_lshrrev_b32 v15, 1, v15')
e(f'v_and_b32 v{A1}, 1, v14')
e(f'v_lshl_add_u32 v15, v{A1}, 1, v15')
e(f's_lshl_b32 s{sIt}, s{sT1}, 1')
e(f'v_xor_b32 v15, s{sIt}, v15')
e(f'v_lshl_add_u32 v{A0}, v15, 5, v{A0}')
e('v_and_b32 v15, 3, v13')
e(f'v_lshl_add_u32 v{A0}, v15, 3, v{A0}')
e(f'v_add_u32 v{vWa[0]}, {WBASE}, v{A0}')
e(f'v_xor_b32 v{vWa[1]}, 32, v{vWa[0]}')
assert WBASE % 256 == 0
if not NF0:
    e('s_waitcnt lgkmcnt(0)')
    e('s_barrier')
sNL = 46
deferred = [
 f's_mov_b32 s{sOut+2}, s{sNv}', f's_mov_b32 s{sOut+3}, 0x20000',
 f's_lshl_b32 s{sIt}, s{sT1}, 7', f's_add_u32 s{sIt}, s{sIt}, {PARM}',
 f'v_lshl_add_u32 v{vPar}, v14, 4, s{sIt}',
 f's_lshl_b32 s{sIt}, s{sWave}, 10', f's_add_u32 s{sIt}, s{sIt}, {STG}',
 'v_and_b32 v15, 1, v14', 'v_lshlrev_b32 v15, 1, v15', f'v_lshrrev_b32 v{A0}, 1, v14', f'v_or_b32 v15, v15, v{A0}',
 f'v_bfe_u32 v{A0}, v13, 1, 2', f'v_xor_b32 v15, v15, v{A0}', 'v_lshlrev_b32 v15, 4, v15', 'v_lshl_add_u32 v15, v13, 6, v15',
 f'v_add_u32 v{cSw}, s{sIt}, v15', f'v_lshl_add_u32 v{cSr}, v1, 4, s{sIt}',
 f's_lshl_b32 s{sT2}, s{sCt}, 7', f's_lshl_b32 s{sT3}, s{sT1}, 6', f's_add_u32 s{sT2}, s{sT2}, s{sT3}',
 f's_mul_i32 s{sIt}, s{sT0}, 20', f's_add_u32 s{sIt}, s{sIt}, s{sB0}', f's_mulk_i32 s{sIt}, 4608', f's_add_u32 s{sIt}, s{sIt}, s{sT2}',
 'v_bfe_u32 v15, v1, 3, 2', f'v_and_b32 v{A0}, 3, v1', f'v_xor_b32 v15, v15, v{A0}', f'v_lshl_add_u32 v15, v15, 4, s{sIt}',
 f'v_lshrrev_b32 v{A0}, 2, v1', f'v_mul_u32_u24 v{vOutM}, 1152, v{A0}', f'v_lshl_add_u32 v{vOut}, v{vOutM}, 2, v15',
 f'v_add_u32 v{vOutM}, v{vOutM}, v15', f'v_add_u32 v{vOutM}, {16*4608}, v{vOutM}',
 f's_mov_b32 s{sNL}, 0xbfb8aa3b', f's_mov_b32 s{sNL+1}, 0xbfb8aa3b']

cSw1 = 254
if FULL:
    deferred = [
     f's_mov_b32 s{sOut+2}, s{sNv}', f's_mov_b32 s{sOut+3}, 0x20000',
     f's_lshl_b32 s{sIt}, s{sT1}, 7', f's_add_u32 s{sIt}, s{sIt}, {PARM}',
     f'v_lshl_add_u32 v{vPar}, v14, 4, s{sIt}',
     f's_lshl_b32 s{sIt}, s{sT0}, 11', f's_add_u32 s{sIt}, s{sIt}, {STG}', f's_lshl_b32 s{sT2}, s{sT1}, 2',
     'v_lshrrev_b32 v15, 1, v14', f'v_or_b32 v15, s{sT2}, v15', f'v_and_b32 v{A0}, 7, v13', f'v_xor_b32 v15, v15, v{A0}',
     'v_lshlrev_b32 v15, 4, v15', 'v_lshl_add_u32 v15, v13, 7, v15', f'v_and_b32 v{A0}, 1, v14', f'v_lshl_add_u32 v15, v{A0}, 3, v15',
     f'v_add_u32 v{cSw}, s{sIt}, v15', f'v_xor_b32 v{cSw1}, 32, v{cSw}',
     f's_lshl_b32 s{sT2}, s{sT1}, 10', f's_add_u32 s{sIt}, s{sIt}, s{sT2}', f'v_lshl_add_u32 v{cSr}, v1, 4, s{sIt}',
     f's_lshl_b32 s{sT2}, s{sCt}, 7',
     f's_mul_i32 s{sIt}, s{sT0}, 20', f's_add_u32 s{sIt}, s{sIt}, s{sB0}', f's_mulk_i32 s{sIt}, 4608', f's_add_u32 s{sIt}, s{sIt}, s{sT2}',
     f'v_lshrrev_b32 v{A0}, 3, v1', 'v_and_b32 v15, 7, v1', f'v_xor_b32 v15, v15, v{A0}', f'v_lshl_add_u32 v15, v15, 4, s{sIt}',
     f's_lshl_b32 s{sT2}, s{sT1}, 3', f'v_add_u32 v{A0}, s{sT2}, v{A0}',
     f'v_mul_u32_u24 v{vOutM}, 1152, v{A0}', f'v_lshl_add_u32 v{vOut}, v{vOutM}, 2, v15',
     f'v_add_u32 v{vOutM}, v{vOutM}, v15', f'v_add_u32 v{vOutM}, {16*4608}, v{vOutM}',
     f's_mov_b32 s{sNL}, 0xbfb8aa3b', f's_mov_b32 s{sNL+1}, 0xbfb8aa3b']
    assert STG % 256 == 0

def rx(buf, slot, h, i):
    xo = XBASE + slot*XSLOT
    if i < 4: return f'ds_read_b128 v[{fx(buf,i)}:{fx(buf,i)+3}], v{vXa[h]} offset:{xo + i*5120}'
    return f'ds_read_b128 v[{fx(buf,i)}:{fx(buf,i)+3}], v{vXm[i-4][h]} offset:{xo}'
def rw(buf, slot, h, k, t):
    r = []
    for hp in range(2):
        d = fw(buf, k, t) + 2*hp
        off = slot*WSLOT + (h*3+k)*1024 + hp*512
        r.append(f'ds_read_b64_tr_b16 v[{d}:{d+1}], v{vWa[t]} offset:{off}')
    return r
CHAIN = 'nochain' not in opt
def reads(buf, slot, h):
    X = lambda i: rx(buf, slot, h, i)
    W = lambda k, t: rw(buf, slot, h, k, t)
    if CHAIN:
        early = W(1,0) + [X(0)] + W(2,0) + [X(1)] + W(1,1) + W(2,1) + W(0,0) + [X(2)] + W(0,1)
        late = [X(3), X(4), X(5), X(6)]
        return early, late
    early = W(0,0) + [X(0), X(1), X(2), X(4)] + W(0,1) + W(1,0) + [X(3), X(5)] + W(1,1)
    late = W(2,0) + [X(6)] + W(2,1)
    return early, late
NL = 4 if CHAIN else 5
touched = set()
def mf(a, A, B):
    c = f'v[{a}:{a+3}]' if a in touched else '0'
    touched.add(a)
    return f'v_mfma_f32_16x16x32_bf16 v[{a}:{a+3}], v[{A}:{A+3}], v[{B}:{B+3}], {c}'
def tile_mfmas(tile, buf):
    r = []
    for t in range(2):
        for k in range(3):
            if tile < 4:
                sp = tile + k - 1
                if 0 <= sp <= 3: r.append(mf(acc(tile, t), fw(buf,k,t), fx(buf,sp)))
            else:
                r.append(mf(acc(4, t), fw(buf,k,t), fx(buf,4+k)))
    return r
def mfmas(buf):
    if CHAIN: return [m for tl in range(5) for m in tile_mfmas(tl, buf)]
    r = []
    for k in range(3):
        for t in range(2):
            for s in range(4):
                sp = s + k - 1
                if 0 <= sp <= 3:
                    r.append(mf(acc(s, t), fw(buf,k,t), fx(buf,sp)))
            r.append(mf(acc(4, t), fw(buf,k,t), fx(buf,4+k)))
    return r
def emit_phase(ms, fill, defer=False):
    assert len(fill) <= len(ms), len(fill)
    for i, m in enumerate(ms):
        e(m)
        if i < len(fill) and fill[i]:
            for x in fill[i]: e(x)
        elif defer and deferred:
            e(deferred.pop(0))
def poll(fidx): return f'ds_read_b32 v{cPoll}, v{cFl} offset:{16*fidx}'
spin_sites = []
def check(name, fidx):
    spin_sites.append((name, fidx))
    return [f'v_cmp_ne_u32 vcc, 0, v{cPoll}'], [f's_cbranch_vccnz L_cspin{name}', f'L_cback{name}:']

if STAMP:
    e(f's_mov_b32 s{sStamp+16}, 0')
    e(f's_mov_b32 s{sStamp+17}, 0')
NPAD = 0 if 'nopad' in opt else int(opt.get('npad', 2))
if NPAD:
    e('s_mov_b64 exec, 0')
    for p in range(NPAD):
        e(f's_branch L_pad{p}')
        e(f'L_ret{p}:')
    e('s_mov_b64 exec, -1')
stamp(1)
e('L_cpoll0:')
if NF0:
    e('s_waitcnt lgkmcnt(0)')
    e('s_barrier')
else:
    e(poll(0))
    e('s_waitcnt lgkmcnt(0)')
    e(f'v_cmp_ne_u32 vcc, 0, v{cPoll}')
    e('s_cbranch_vccnz L_cpoll0')
stamp(2)
cstamp(5)
ea, la = reads(0, 0, 0)
for r in ea + la: e(r)
W2 = int(opt.get('w2', 8))
BPOS = [int(v) for v in opt.get('bpos', '4,4,4,4,4,4').split(',')]
def build_fill(pre, seq, wait_at, bar_at):
    fill = list(pre) + [[x] for x in seq]
    wpos = len(pre) + wait_at
    fill.insert(wpos, [f's_waitcnt lgkmcnt({wait_at})'])
    if bar_at is not None:
        while len(fill) <= bar_at: fill.append([])
        fill[bar_at] = fill[bar_at] + ['s_barrier']
    return fill, wpos
for n in range(7):
    u = n % 3
    ea, la = reads(1, u, 1)
    bar = BPOS[n-1] - 26 if (1 <= n <= 6 and BPOS[n-1] >= 26) else None
    if n == 0 and NF0:
        e('s_waitcnt lgkmcnt(9)')
        fill = [[x] for x in ea + la]
        fill[3] = fill[3] + ['s_waitcnt lgkmcnt(8)']
        fill.insert(W2, [f's_waitcnt lgkmcnt({W2})'])
    elif n == 0:
        X = [rx(1, 0, 1, i) for i in range(7)]
        c0, c1 = check('A0', 1)
        if CHAIN:
            e('s_waitcnt lgkmcnt(9)')
            Wr = [x for k, t in ((1,0),(2,0),(1,1),(2,1),(0,0),(0,1)) for x in rw(1, 0, 1, k, t)]
            fill = [[X[0]], [X[1]], [X[2]], [poll(1), 's_waitcnt lgkmcnt(8)'], [X[3]], [X[4]], [X[5]], [X[6], 's_waitcnt lgkmcnt(4)'], c0, c1]
            fill += [[x] for x in Wr[:6]] + ([] if NF else [[poll(2)]]) + [[x] for x in Wr[6:]]
        else:
            e('s_waitcnt lgkmcnt(13)')
            Wr = [x for k in range(3) for t in range(2) for x in rw(1, 0, 1, k, t)]
            fill = [[X[0]], [X[1]], [X[2]], [poll(1), 's_waitcnt lgkmcnt(9)'], [X[4]], [X[3]], [X[5]], [X[6], 's_waitcnt lgkmcnt(4)'], c0, c1]
            fill += [[x] for x in Wr[:7]] + [[poll(2)]] + [[x] for x in Wr[7:]]
    else:
        e(f's_waitcnt lgkmcnt({NL})')
        fill, _ = build_fill([], ea + ([] if NF else [poll(n+2)]) + la, W2, None if NF else bar)
    emit_phase(mfmas(0), fill, defer=True)
    e(f's_waitcnt lgkmcnt({4 if n == 0 else NL})')
    ea, la = reads(0, (u+1) % 3, 0)
    if NF:
        NB = int(opt.get('nb', 2))
        st = ([f's_memrealtime s[{84+2*n}:{85+2*n}]'] if n < 6 else ['s_memrealtime s[4:5]']) if 'pst' in opt else []
        fill = [[] for _ in range(NB)] + [['s_waitcnt lgkmcnt(0)', 's_barrier'] + st] + [[x] for x in ea + la]
    else:
        c0, c1 = check(f'B{n}', n+2)
        if 'pst' in opt: c1 = c1 + [f's_memrealtime s[{84+2*n}:{85+2*n}]'] if n < 6 else c1 + ['s_memrealtime s[4:5]']
        bar = BPOS[n] if (n <= 5 and BPOS[n] < 26) else None
        wa = W2 if bar is None else max(0, min(W2, bar - 2))
        if CHAIN and n == 0: wa = min(wa, 1)
        fill, wpos = build_fill([c0, c1], ea + la, wa, bar)
        assert bar is None or bar >= wpos
    emit_phase(mfmas(1), fill, defer=True)
assert not deferred
e(f's_waitcnt lgkmcnt({NL})')
if not NF: c0, c1 = check('T', 9)
ea, la = reads(1, 1, 1)
r15 = ea + la
ea, la = reads(2, 2, 0)
r16 = ea + la
def group2(rs):
    g = []; i = 0
    while i < len(rs):
        if 'tr_b16' in rs[i] and i+1 < len(rs) and 'tr_b16' in rs[i+1]:
            g.append([rs[i], rs[i+1]]); i += 2
        else:
            g.append([rs[i]]); i += 1
    return g
g15 = group2(r15); g16 = group2(r16)
if NF:
    n_first = sum(len(x) for x in g15[:6])
    g15[5] = g15[5] + [f's_waitcnt lgkmcnt({n_first})']
    g15[-1] = g15[-1] + ['s_barrier']
else:
    g15 = [[poll(9)] + g15[0]] + g15[1:]
    n_first = sum(len(x) for x in g15[:6])
    g15[5] = g15[5] + [f's_waitcnt lgkmcnt({n_first - 1})']
    g15[-2] = g15[-2] + c0
    g15[-1] = g15[-1] + c1
fill = g15 + g16[:26-len(g15)]
left16 = [x for gg in g16[26-len(g15):] for x in gg]
fill[-1] = fill[-1] + ['s_barrier']
emit_phase(mfmas(0), fill)
stamp(3)
cstamp(6)
X = lambda i: rx(0, 2, 1, i)
W = lambda k, t: rw(0, 2, 1, k, t)
par = [f'ds_read_b128 v[{SC2}:{SC2+3}], v{vPar}', f'ds_read_b128 v[{SC2+4}:{SC2+7}], v{vPar} offset:64',
       f'ds_read_b128 v[{SH2}:{SH2+3}], v{vPar} offset:256', f'ds_read_b128 v[{SH2+4}:{SH2+7}], v{vPar} offset:320']
first17 = W(1,0) + [X(0)] + W(2,0) + [X(1)] + W(1,1) + W(2,1) + par
rest17 = W(0,0) + [X(2), X(3)] + W(0,1) + [X(4), X(5), X(6)]
head = tile_mfmas(0, 1) + tile_mfmas(3, 1) + tile_mfmas(0, 2) + tile_mfmas(3, 2)
n16_issued = len(r16) - len(left16)
e(f's_waitcnt lgkmcnt({min(12, n16_issued)})')
rq = left16 + first17 + rest17
gq = group2(rq)
issued = 0
def pop_reads():
    global issued
    if gq:
        for x in gq.pop(0):
            e(x); issued += 1
for i, m in enumerate(head):
    if i == 8:
        e(f's_waitcnt lgkmcnt({min(12, issued - len(left16))})')
    e(m); pop_reads()
e(f's_waitcnt lgkmcnt({min(12, issued - len(left16) - len(first17))})')
for m in tile_mfmas(0, 0):
    e(m); pop_reads()
assert not gq
e('s_waitcnt lgkmcnt(3)')
rest = tile_mfmas(3, 0) + tile_mfmas(1, 1) + tile_mfmas(1, 2) + tile_mfmas(1, 0) + tile_mfmas(2, 1) + tile_mfmas(2, 2) + tile_mfmas(2, 0) \
     + tile_mfmas(4, 1) + tile_mfmas(4, 2) + ['WAIT0'] + tile_mfmas(4, 0)
done_at = {0: 0, 3: 4, 1: 22, 2: 40, 4: 58}
emitted = 0
since = {0: 1}
def em(m):
    global emitted
    if m == 'WAIT0':
        e('s_waitcnt lgkmcnt(0)'); m = rest.pop(0)
    e(m); emitted += 1
    for k in since: since[k] += 1
    for tl, at in done_at.items():
        if at == emitted: since[tl] = 0
def ev(x):
    e(x)
    for k in since: since[k] += 1
def need(tl):
    while tl not in since: em(rest.pop(0))
    while since[tl] < 8:
        if rest and not (tl == 0 and emitted >= int(opt.get('hz', 99))): em(rest.pop(0))
        else:
            e(f's_nop {8 - since[tl] - 1}'); since[tl] = 8
def cost(ins):
    if 'exp' in ins or 'rcp' in ins: return 8
    if 'v_pk' in ins or 'v_fma' in ins: return 5
    return 4
def tile_ops(tile, Q):
    a0 = acc(tile, 0)
    def two(pkf, sf):
        return [('pk', pkf(i), [sf(i), sf(i+1)]) for i in range(0, 8, 2)]
    ops = []
    ops += two(lambda i: f'v_pk_fma_f32 v[{a0+i}:{a0+i+1}], v[{a0+i}:{a0+i+1}], v[{SC2+i}:{SC2+i+1}], v[{SH2+i}:{SH2+i+1}]',
               lambda i: f'v_fma_f32 v{a0+i}, v{a0+i}, v{SC2+i}, v{SH2+i}')
    ops += [('s', f'v_exp_f32 v{T+i}, v{a0+i}') for i in range(8)]
    ops += two(lambda i: f'v_pk_fma_f32 v[{T+i}:{T+i+1}], v[{T+i}:{T+i+1}], s[{sNL}:{sNL+1}], s[{sNL}:{sNL+1}]',
               lambda i: f'v_fma_f32 v{T+i}, v{T+i}, s{sNL}, s{sNL}')
    ops += [('s', f'v_rcp_f32 v{T+i}, v{T+i}') for i in range(8)]
    ops += two(lambda i: f'v_pk_mul_f32 v[{a0+i}:{a0+i+1}], v[{a0+i}:{a0+i+1}], v[{T+i}:{T+i+1}]',
               lambda i: f'v_mul_f32 v{a0+i}, v{a0+i}, v{T+i}')
    ops += [('s', f'v_cvt_pk_bf16_f32 v{P+i//2}, v{a0+i}, v{a0+i+1}') for i in range(0, 8, 2)]
    if FULL:
        cv = ops[-4:]
        ops = ops[:-4] + [cv[0], cv[1], cv[2], ('s', f'ds_write_b64 v{cSw}, v[{P}:{P+1}] offset:{tile*4096}'), cv[3],
                          ('s', f'ds_write_b64 v{cSw1}, v[{P+2}:{P+3}] offset:{tile*4096}')]
    else:
        ops += [('s', 's_nop 1'), ('s', f'v_permlane16_swap_b32 v{P}, v{P+2}'), ('s', f'v_permlane16_swap_b32 v{P+1}, v{P+3}'),
                ('s', f'ds_write_b128 v{cSw}, v[{P}:{P+3}]'), ('s', f'ds_read_b128 v[{Q}:{Q+3}], v{cSr}')]
    return ops
def tile_store(tile, Q):
    if tile < 4:
        return f'buffer_store_dwordx4 v[{Q}:{Q+3}], v{vOut}, s[{sOut}:{sOut+3}], 0 offen offset:{tile*1152} {STF}'
    return f'buffer_store_dwordx4 v[{Q}:{Q+3}], v{vOutM}, s[{sOut}:{sOut+3}], 0 offen {STL}'
pend = None
budget = 0
GAPV = int(opt.get('gapv', 8))
for n, tl in enumerate([0, 3, 1, 2, 4]):
    Q = Qs[n % 2]
    need(tl)
    if 't2st' in opt: e(f's_memtime s[{84+2*n}:{85+2*n}]')
    for i, op in enumerate(tile_ops(tl, Q)):
        if op[0] == 'pk':
            ins = [op[1]] if (PK == 2 or (PK == 1 and not rest)) else op[2]
        else:
            ins = [op[1]]
        for x in ins:
            ev(x); budget += cost(x)
            if rest and budget >= GAPV:
                em(rest.pop(0)); budget = 0
        if FULL:
            if pend is not None and i == 8:
                ev('s_waitcnt lgkmcnt(0)'); ev('s_barrier')
                ev(f'ds_read_b128 v[{pend[1]}:{pend[1]+3}], v{cSr} offset:{pend[0]*4096}')
            if pend is not None and i == 20:
                ev('s_waitcnt lgkmcnt(0)')
                ev(tile_store(*pend)); pend = None
        elif pend is not None and i == 12:
            ev('s_waitcnt lgkmcnt(0)')
            ev(tile_store(*pend)); pend = None
    pend = (tl, Q)
if 't2st' in opt: e('s_memtime s[94:95]')
if FULL:
    e('s_waitcnt lgkmcnt(0)'); e('s_barrier')
    e(f'ds_read_b128 v[{pend[1]}:{pend[1]+3}], v{cSr} offset:{pend[0]*4096}')
e('s_waitcnt lgkmcnt(0)')
e(tile_store(*pend))
stamp(4)
cstamp(7)
if 'pst' in opt or 't2st' in opt:
    e('s_waitcnt lgkmcnt(0)')
    if 't2st' in opt: e(f's_mov_b32 s4, s{sStamp+14}')
    e(f's_mov_b32 s{sStamp+18}, s84'); e(f's_mov_b32 s{sStamp+19}, s86')
    e(f's_mov_b32 s{sStamp+20}, s88'); e(f's_mov_b32 s{sStamp+21}, s90')
    e(f's_mov_b32 s{sStamp+22}, s92'); e(f's_mov_b32 s{sStamp+23}, s94')
    e(f's_mov_b32 s{sStamp+28}, s4'); e(f's_mov_b32 s{sStamp+29}, s4')
stamp_flush([0,1,2,3,4,5,6,7,8] + ([9,10,11,14] if ('pst' in opt or 't2st' in opt) else []))
e('s_endpgm')
for name, fidx in spin_sites:
    e(f'L_cspin{name}:')
    if STAMP: e(f's_add_u32 s{sStamp+16}, s{sStamp+16}, 1')
    e(poll(fidx))
    e('s_waitcnt lgkmcnt(0)')
    e(f'v_cmp_ne_u32 vcc, 0, v{cPoll}')
    e(f's_cbranch_vccnz L_cspin{name}')
    e(f's_branch L_cback{name}')
e('L_end:')
e('s_endpgm')

def render(lines):
    body = '\n'.join(lines)
    return HEADER + f'''; Override launch geometry by editing the next line (default: block=256,
; grid=ceil(out_elems/256), lds=0). Harness parses it; keep it on one line.
; @launch grid=({NWG},1,1) block=(512,1,1) lds={LDS_BYTES}
.amdgcn_target "amdgcn-amd-amdhsa--gfx950"
.text
.globl standalone__batchnorm__sampling_kernel
{'' if 'noal' in opt else '.p2align 12'}
.p2align 8
.type standalone__batchnorm__sampling_kernel,@function
standalone__batchnorm__sampling_kernel:
{body}
.section .rodata,"a"
.p2align 6
.amdhsa_kernel standalone__batchnorm__sampling_kernel
  .amdhsa_next_free_vgpr 256
  .amdhsa_next_free_sgpr 96
  .amdhsa_accum_offset 256
  .amdhsa_group_segment_fixed_size 0
  .amdhsa_kernarg_size 72
  .amdhsa_user_sgpr_count 2
  .amdhsa_user_sgpr_kernarg_segment_ptr 1
  .amdhsa_system_sgpr_workgroup_id_x 1
.end_amdhsa_kernel
'''
import subprocess, re, os
def offsets(lines):
    open('_g.s', 'w').write(render(lines))
    subprocess.run(['clang', '-x', 'assembler', '-target', 'amdgcn-amd-amdhsa', '-mcpu=gfx950', '-c', '_g.s', '-o', '_g.o'], check=True)
    d = subprocess.run(['llvm-objdump', '-d', '--mcpu=gfx950', '_g.o'], capture_output=True, text=True).stdout
    offs = [int(m.group(1), 16) for m in re.finditer(r'// ([0-9A-F]{12}):', d)]
    idx = [i for i, l in enumerate(lines) if l.startswith('    ')]
    assert len(offs) == len(idx), (len(offs), len(idx))
    return dict(zip(idx, offs))
if NPAD:
    KSTART = 0x300
    lines = out
    i0 = lines.index('L_cpoll0:')
    for p in range(NPAD):
        tmp = lines + [f'L_pad{q}:' for q in range(p, NPAD)] + ['    s_endpgm']
        offs = offsets(tmp)
        first = (offs[i0+1] + KSTART) // 4096
        bnd = 4096*(first + p + 1) - KSTART
        i = min(i for i, o in offs.items() if o >= bnd)
        lines = lines[:i] + [f'L_pad{p}:', f'    s_cbranch_execz L_ret{p}'] + lines[i:]
    out = lines
open(dst, 'w').write(render(out))
```

```python
import sys
opt = {}
dst = 'standalone__batchnorm__sampling.s'
for a in sys.argv[1:]:
    if a.startswith('--'):
        k, _, v = a[2:].partition('=')
        opt[k] = v if v else True
    else:
        dst = a
STAMP = 'stamp' in opt
AMP = None
if 'amp' in opt:
    AMP = tuple(int(v) for v in opt['amp'].split(',')); STAMP = True
MAP = opt.get('map', 'p4')
ORDER = opt.get('order', '013246578_120435768_201354687')
XNT = ' nt' if 'xnt' in opt else ''
STF = opt.get('stf', 'sc1').replace('+', ' ')
STL = opt.get('stl', STF).replace('+', ' ').replace('none', '')
PK = int(opt.get('pk', 1))
FLIP = MAP in ('p4', 'p5') and 'noflip' not in opt
LST = 'lst' in opt
NF0 = opt.get('nf0')
PERM = [int(c) for c in opt.get('perm', '012')]
CLS = PERM != [0, 1, 2]
sC = 49
PF = opt.get('ppos', 'mid')

out = []
def e(s=''):
    if 'nodma' in opt and s.startswith('buffer_load_dwordx4') and s.endswith('lds'): return
    out.append('    ' + s if s and not s.endswith(':') else s)

HEADER = open('standalone__batchnorm__sampling.s.ref').read().split('; Override launch')[0]

WSLOT = 24576
XSLOT = 20480 + 256
XBASE = 0
WBASE = XSLOT * 3
FLAGL = WBASE + WSLOT * 3
PARM = FLAGL + 1024
STG = PARM + 512
FULL = 'full' in opt
LDS_BYTES = STG + (20480 if FULL else 4096)
assert LDS_BYTES <= 163840
X_BYTES = 1024*4*576*2
W_BYTES = 3*576*576*2
TAP = 576*576*2
ROW = 1152

sX, sW, sOut = 20, 24, 28
sWave, sQ, sCt, sB0 = 32, 33, 34, 35
sT0, sT1, sT2, sT3 = 36, 37, 38, 39
sXl, sF, sWl, sK = 40, 41, 42, 43
sIt, sDX, sDW = 44, 45, 46
sSl, sFl = 47, 48
sOrd, sG, sKd, sKf = 16, 17, 18, 19
sNv = sX + 2
sStamp = 52
NST = 16
def stamp(i):
    if STAMP: e(f's_memrealtime s[{sStamp+2*i}:{sStamp+2*i+1}]')
def cstamp(i):
    if STAMP: e(f's_memtime s[{sStamp+2*i}:{sStamp+2*i+1}]')
def stamp_flush(used):
    if not STAMP: return
    e('s_waitcnt vmcnt(0) lgkmcnt(0)')
    stamp(NST-1)
    e(f's_memtime s[{sStamp+26}:{sStamp+27}]')
    e('s_waitcnt lgkmcnt(0)')
    if AMP is not None:
        e(f's_sub_u32 s3, s{sStamp+2*AMP[1]}, s{sStamp+2*AMP[0]}')
        e(f's_mul_i32 s3, s3, {AMP[3] if len(AMP) > 3 else 20}')
        e(f's_add_u32 s3, s3, s{sStamp+2*(NST-1)}')
        e('L_amp:')
        e('s_memrealtime s[4:5]')
        e('s_waitcnt lgkmcnt(0)')
        e('s_sub_u32 s6, s4, s3')
        e('s_cmp_lt_i32 s6, 0')
        e('s_cbranch_scc1 L_amp')
        return
    e(f's_lshl_b32 s3, s2, 3')
    e(f's_add_u32 s3, s3, s{sWave}')
    e('s_add_u32 s3, s3, 4')
    e(f's_mul_i32 s3, s3, {NST*8}')
    e('v_mov_b32 v0, s3')
    e('s_mov_b64 exec, 1')
    for i in used + [12, 13, NST-1]:
        e(f'v_mov_b32 v2, s{sStamp+2*i}')
        e(f'v_mov_b32 v3, s{sStamp+2*i+1}')
        e(f'global_store_dwordx2 v0, v[2:3], s[50:51] offset:{8*i}')
        e('s_nop 1')
def div_small(dstr, src_, d, maxv):
    for sh in range(4, 16):
        m = -(-(1 << sh) // d)
        if m <= 64 and all((t*m) >> sh == t // d for t in range(maxv+1)):
            e(f's_mul_i32 s{dstr}, s{src_}, {m}')
            e(f's_lshr_b32 s{dstr}, s{dstr}, {sh}')
            return
    assert 0
def pack(order): return sum(s << (4*i) for i, s in enumerate(order))
orders = [[int(ch) for ch in o] for o in ORDER.split('_')]
for g, o in enumerate(orders): assert sorted(o) == list(range(9)), o
assert len(orders) == 3
FIRST_IS_G = all(o[0] == g for g, o in enumerate(orders))
FIRST_IS_0 = all(o[0] == 0 for o in orders)
assert FIRST_IS_G or FIRST_IS_0

e(f's_load_dwordx2 s[{sW}:{sW+1}], s[0:1], 8')
e(f's_load_dwordx2 s[{sX}:{sX+1}], s[0:1], 0')
if PF == 'front': e('s_load_dwordx8 s[8:15], s[0:1], 16')
if STAMP:
    stamp(0)
    e(f's_memtime s[{sStamp+24}:{sStamp+25}]')
e(f's_lshr_b32 s{sT1}, s2, 3')
if 'nocpf' not in opt:
    e('s_getpc_b64 s[30:31]')
    e('L_pc:')
    e('v_and_b32 v2, 0x180, v0')
    e(f'v_lshl_add_u32 v2, s{sT1}, 9, v2')
    e('v_min_u32 v2, L_end-L_pc, v2')
    e('global_load_dword v255, v2, s[30:31]')
e('v_readfirstlane_b32 s3, v0')
e(f's_and_b32 s{sT0}, s2, 7')
if MAP == 'p3':
    NWG = 240
    e(f's_mul_i32 s{sT2}, s{sT0}, 27')
    e(f's_mul_i32 s{sT3}, s{sT0}, 3')
    e(f's_addk_i32 s{sT3}, {216-27}')
    e(f's_cmp_ge_u32 s{sT1}, 27')
    e(f's_cselect_b32 s{sT2}, s{sT3}, s{sT2}')
    e(f's_add_u32 s{sT2}, s{sT2}, s{sT1}')
    e(f's_cmp_ge_u32 s{sT1}, 30')
    e(f's_cselect_b32 s{sT2}, -1, s{sT2}')
    e(f's_cmpk_ge_u32 s{sT2}, 234')
    e('s_cbranch_scc1 L_end')
    div_small(sQ, sT2, 9, 233)
    e(f's_mul_i32 s{sT0}, s{sQ}, 9')
    e(f's_sub_u32 s{sCt}, s{sT2}, s{sT0}')
    e(f's_mul_i32 s{sB0}, s{sQ}, 40')
    e(f's_mov_b32 s{sNv}, {X_BYTES}')
elif MAP == 'p5':
    NWG = 256
    nL, nR = (int(v) for v in opt.get('n', '39,37').split(','))
    nBL = -(-(1024 - 24*nL) // 3); nBR = -(-(1024 - 24*nR) // 4)
    assert max(nL, nR, nBL, nBR) <= 40
    def P(M, ncol, c0, n, lim):
        assert all((j*M) >> 8 == j // ncol for j in range(lim))
        return M | ncol << 8 | c0 << 12 | n << 16 | lim << 24
    e(f's_mul_i32 s{sB0}, s{sT0}, {6*nL}')
    e(f's_mul_i32 s{sT2}, s{sT0}, {8*nR}')
    e(f's_sub_u32 s{sT2}, s{sT2}, {32*nR}')
    e(f's_cmp_lt_u32 s{sT0}, 4')
    e(f's_cselect_b32 s{sB0}, s{sB0}, s{sT2}')
    e(f's_mov_b32 s{sT2}, {P(64, 4, 5, nR, 32)}')
    e(f's_cselect_b32 s{sT2}, {P(52, 5, 0, nL, 30)}, s{sT2}')
    e(f's_cmp_lg_u32 s{sT0}, 7')
    e('s_cbranch_scc1 L_mp')
    e(f's_sub_u32 s{sT3}, s{sT1}, 15')
    e(f's_cselect_b32 s{sT1}, s{sT1}, s{sT3}')
    e(f's_cselect_b32 s{sB0}, {24*nL}, s{sB0}')
    e(f's_mov_b32 s{sT2}, {P(64, 4, 5, nBR, 16)}')
    e(f's_cselect_b32 s{sT2}, {P(52, 5, 0, nBL, 15)}, s{sT2}')
    e('L_mp:')
    e(f's_lshr_b32 s{sT0}, s{sT2}, 24')
    e(f's_cmp_ge_u32 s{sT1}, s{sT0}')
    e('s_cbranch_scc1 L_end')
    e(f's_and_b32 s{sQ}, s{sT2}, 0xff')
    e(f's_mul_i32 s{sQ}, s{sQ}, s{sT1}')
    e(f's_lshr_b32 s{sQ}, s{sQ}, 8')
    e(f's_bfe_u32 s{sT0}, s{sT2}, 0x40008')
    e(f's_mul_i32 s{sT0}, s{sT0}, s{sQ}')
    e(f's_sub_u32 s{sCt}, s{sT1}, s{sT0}')
    e(f's_bfe_u32 s{sT0}, s{sT2}, 0x4000c')
    e(f's_add_u32 s{sCt}, s{sCt}, s{sT0}')
    e(f's_bfe_u32 s{sT3}, s{sT2}, 0x80010')
    e(f's_mul_i32 s{sT0}, s{sQ}, s{sT3}')
    e(f's_add_u32 s{sB0}, s{sB0}, s{sT0}')
    e(f's_add_u32 s{sNv}, s{sB0}, s{sT3}')
    e(f's_min_u32 s{sNv}, s{sNv}, 0x400')
    e(f's_mulk_i32 s{sNv}, 4608')
else:
    NWG = 256
    def P(M, ncol, lim, c0):
        assert all((j*M) >> 8 == j // ncol for j in range(lim))
        return M | ncol << 8 | lim << 16 | c0 << 24
    e(f's_mul_i32 s{sB0}, s{sT0}, 60')
    e(f's_mul_i32 s{sT2}, s{sT0}, 80')
    e(f's_sub_u32 s{sT2}, s{sT2}, 320')
    e(f's_cmp_lt_u32 s{sT0}, 4')
    e(f's_cselect_b32 s{sB0}, s{sB0}, s{sT2}')
    e(f's_mov_b32 s{sT2}, {P(64, 4, 32, 5)}')
    e(f's_cselect_b32 s{sT2}, {P(52, 5, 30, 0)}, s{sT2}')
    e(f's_cmp_eq_u32 s{sT0}, 7')
    BR = int(opt.get('br', 3))
    e(f's_cselect_b32 s{sT2}, {P(29, 9, 9*BR, 0)}, s{sT2}')
    e(f's_cselect_b32 s{sT3}, {int(opt.get("bn", -(-64//BR)))}, 40')
    e(f's_bfe_u32 s{sT0}, s{sT2}, 0x80010')
    e(f's_cmp_ge_u32 s{sT1}, s{sT0}')
    e('s_cbranch_scc1 L_help' if 'help' in opt else 's_cbranch_scc1 L_end')
    e(f's_and_b32 s{sQ}, s{sT2}, 0xff')
    e(f's_mul_i32 s{sQ}, s{sQ}, s{sT1}')
    e(f's_lshr_b32 s{sQ}, s{sQ}, 8')
    e(f's_bfe_u32 s{sT0}, s{sT2}, 0x80008')
    e(f's_mul_i32 s{sT0}, s{sT0}, s{sQ}')
    e(f's_sub_u32 s{sCt}, s{sT1}, s{sT0}')
    e(f's_lshr_b32 s{sT2}, s{sT2}, 24')
    e(f's_add_u32 s{sCt}, s{sCt}, s{sT2}')
    e(f's_mul_i32 s{sT0}, s{sQ}, s{sT3}')
    e(f's_lshl2_add_u32 s{sB0}, s{sB0}, s{sT0}')
    e(f's_add_u32 s{sNv}, s{sB0}, s{sT3}')
    e(f's_min_u32 s{sNv}, s{sNv}, 0x400')
    e(f's_mulk_i32 s{sNv}, 4608')
if FLIP:
    e(f's_lshr_b32 s{sF}, 0x38, s{sQ}')
    e(f's_and_b32 s{sF}, s{sF}, 1')
e(f's_lshr_b32 s{sWave}, s3, 6')
e('v_and_b32 v1, 63, v0')
e(f's_cmp_ge_u32 s{sWave}, 4')
e('s_cbranch_scc1 L_consumer')

vX = [10, 11, 12, 13, 14]
vW = [15, 16, 17]
vOOB = 18
vP = 20
e(f's_add_u32 s{sG}, s{sQ}, s{sCt}')
div_small(sT1, sG, 3, 40)
e('v_lshrrev_b32 v2, 3, v1')
e(f's_mul_i32 s{sT1}, s{sT1}, 3')
e('v_and_b32 v3, 7, v1')
e(f's_sub_u32 s{sG}, s{sG}, s{sT1}')
sG0 = sG
if CLS:
    e(f's_and_b32 s{sC}, s2, 7')
    e(f's_cmp_eq_u32 s{sC}, 7')
    e(f's_cselect_b32 s{sC}, 31, 0x1e0')
    e(f's_lshr_b32 s{sC}, s{sC}, s{sCt}')
    e(f's_and_b32 s{sC}, s{sC}, 1')
    if PERM[0]:
        sG0 = sOrd
        e(f's_mul_i32 s{sG0}, s{sC}, {3*PERM[0]}')
        if FIRST_IS_G: e(f's_add_u32 s{sG0}, s{sG0}, s{sG}')
        FIRST_IS_G = True
e('v_and_b32 v9, 2, v2')
e(f's_and_b32 s{sT2}, s{sWave}, 1')
e('v_mul_u32_u24 v8, 1152, v2')
e(f's_lshl_b32 s{sT3}, s{sT2}, 2')
e('v_xor_b32 v9, v9, v3')
e(f's_mul_i32 s{sT0}, s{sWave}, 72')
e(f'v_xor_b32 v9, s{sT3}, v9')
e(f's_add_u32 s{sT0}, s{sT0}, s{sCt}')
e('v_lshl_add_u32 v9, v9, 4, v8')
e(f's_lshl_b32 s{sT0}, s{sT0}, 7')
e(f's_mov_b32 s{sW+2}, {W_BYTES}')
e(f'v_add_u32 v{vW[0]}, s{sT0}, v9')
e(f's_mov_b32 s{sW+3}, 0x20000')
e(f'v_add_u32 v{vW[1]}, {TAP-1024}, v{vW[0]}')
if FIRST_IS_G:
    if FLIP:
        e(f's_lshl1_add_u32 s{sK}, s{sG0}, s{sF}')
        e(f's_mul_i32 s{sK}, s{sK}, {32*ROW}')
    else:
        e(f's_mul_i32 s{sK}, s{sG0}, {64*ROW}')
else:
    e(f's_mul_i32 s{sK}, s{sF}, {32*ROW}' if FLIP else f's_mov_b32 s{sK}, 0')
e(f'v_add_u32 v{vW[2]}, {2*TAP-2048}, v{vW[0]}')
e(f's_mul_i32 s{sWl}, s{sWave}, 6144')
e('v_lshrrev_b32 v4, 4, v1')
e(f's_add_u32 s{sWl}, s{sWl}, {WBASE}')
e('v_xor_b32 v5, v3, v4')
e(f's_mov_b32 m0, s{sWl}')
e('v_lshlrev_b32 v5, 4, v5')
e(f's_mov_b32 s{sX+3}, s{sW+3}')
e('v_lshl_add_u32 v6, v8, 2, v5')
LST_OFF = False
def lstamp(lane_expr):
    if LST and not (LST_OFF and lane_expr != 30):
        e('s_memrealtime s[92:93]')
        e('s_waitcnt lgkmcnt(0)')
        e(f's_mov_b32 s95, {lane_expr}')
        e('v_mov_b32 v31, s92')
        e('v_cmp_eq_u32 vcc, s95, v1')
        e('s_nop 1')
        e('v_cndmask_b32 v30, v30, v31, vcc')
def dw(tap): e(f'buffer_load_dwordx4 v{vW[tap]}, s[{sW}:{sW+3}], s{sK} offen' + (f' offset:{tap*1024}' if tap else '') + ' lds')
def dx(i): e(f'buffer_load_dwordx4 v{vX[i]}, s[{sX}:{sX+3}], s{sT0} offen' + (f' offset:{i*1024}' if 0 < i < 4 else '') + f'{XNT} lds')
def ld_flag():
    e(f's_mov_b32 m0, s{sFl}')
    e('s_mov_b64 exec, 1')
    e(f'buffer_load_dword v{vOOB}, s[{sW}:{sW+3}], 0 offen lds')
    e('s_mov_b64 exec, -1')
    e(f's_add_u32 s{sFl}, s{sFl}, 16')
e('s_waitcnt lgkmcnt(0)')
if LST:
    e(f'v_mov_b32 v30, s{sStamp}')
    lstamp(2)
def par_load(lab):
    e(f's_cmp_lg_u32 s{sWave}, 3')
    e(f's_cbranch_scc1 {lab}')
    e(f's_lshl_b32 s{sT1}, s{sCt}, 7')
    e(f'v_lshl_add_u32 v{vP+4}, v1, 1, s{sT1}')
    if PF != 'front': e('s_waitcnt lgkmcnt(0)')
    for p in range(4):
        e(f'global_load_ushort v{vP+p}, v{vP+4}, s[{8+2*p}:{9+2*p}]')
    e(f'{lab}:')
if PF == 'front': par_load('L_lnop')
dw(0)
e(f's_lshl2_add_u32 s{sT1}, s{sB0}, s{sWave}')
e(f's_mulk_i32 s{sT1}, 1152')
if not NF0: e(f's_lshl_b32 s{sFl}, s{sWave}, 2')
dw(1)
e(f'v_add_u32 v{vX[0]}, s{sT1}, v6')
e(f's_mul_i32 s{sXl}, s{sWave}, 5120')
e(f'v_xor_b32 v{vX[1]}, 64, v{vX[0]}')
e(f's_lshl_b32 s{sT0}, s{sG0}, 7' if FIRST_IS_G else f's_mov_b32 s{sT0}, 0')
dw(2)
e(f's_mov_b32 m0, s{sXl}')
e(f'v_add_u32 v{vX[1]}, {8*4608-1024}, v{vX[1]}')
dx(0)
e(f'v_add_u32 v{vX[2]}, {20*4608-2048}, v{vX[0]}')
e(f's_lshr_b32 s{sT1}, s{sWave}, 1')
if not NF0: e(f's_add_u32 s{sFl}, s{sFl}, {FLAGL}')
dx(1)
e(f'v_add_u32 v{vX[3]}, {20*4608-2048}, v{vX[1]}')
e(f's_mul_i32 s{sT1}, s{sT1}, 10')
e(f's_add_u32 s{sT1}, s{sT1}, s{sT2}')
if not NF0: e(f'v_lshl_add_u32 v2, v1, 4, s{sFl}')
if not NF0: e(f'v_bfrev_b32 v{vOOB}, 2')
dx(2)
if not NF0: e(f'ds_write_b32 v2, v{vOOB}')
e(f's_lshl1_add_u32 s{sT1}, s{sT1}, s{sB0}')
e(f's_add_u32 s{sT1}, s{sT1}, 16')
e(f's_mulk_i32 s{sT1}, 4608')
e(f's_lshl_b32 s{sT3}, s{sT2}, 6')
dx(3)
e(f'v_xor_b32 v9, s{sT3}, v5')
e(f's_add_u32 m0, s{sXl}, 4096')
e(f'v_add3_u32 v{vX[4]}, v9, v8, s{sT1}')
dx(4)
if not NF0:
    e('s_waitcnt lgkmcnt(0)')
    ld_flag()
lstamp(4)
if FLIP:
    e(f's_mul_i32 s{sKf}, s{sF}, {32*ROW}')
    e(f's_lshl_b32 s{sKd}, s{sKf}, 1')
    e(f's_sub_u32 s{sKd}, {32*ROW}, s{sKd}')
KD = f's{sKd}' if FLIP else f'{32*ROW}'
e(f's_add_u32 m0, s{sWl}, 3072')
e(f's_add_u32 s{sK}, s{sK}, {KD}')
dw(0); dw(1); dw(2)
if not NF0: ld_flag()
if PF != 'front': e('s_load_dwordx8 s[8:15], s[0:1], 16')
lstamp(6)
if 'l0' in opt:
    for i, vm in enumerate((13, 12, 10, 8, 5, 1)):
        e(f's_waitcnt vmcnt({vm})')
        lstamp(8 + 2*i)
    LST_OFF = True
if not NF0: e('s_barrier')
if 'sched' not in opt:
    allo = list(orders)
    if CLS:
        allo += [[3*PERM[s//3] + s % 3 for s in o] for o in orders]
        e(f's_mul_i32 s{sC}, s{sC}, 3')
        e(f's_add_u32 s{sG}, s{sG}, s{sC}')
    ps = [pack(o[1:]) for o in allo]
    e(f's_mov_b32 s{sOrd}, {ps[0]}')
    for g in range(1, len(allo)):
        e(f's_cmp_eq_u32 s{sG}, {g}')
        e(f's_cselect_b32 s{sOrd}, {ps[g]}, s{sOrd}')
if PF == 'mid': par_load('L_lnop')
if 'sched' not in opt:
    e(f's_mov_b32 s{sIt}, 1')
    e(f's_mov_b32 s{sSl}, 0')
def advance():
    e(f's_add_u32 s{sSl}, s{sSl}, 1')
    e(f's_cmp_eq_u32 s{sSl}, 3')
    e(f's_cselect_b32 s{sSl}, 0, s{sSl}')
    e(f's_mov_b32 s{sDX}, {XSLOT}')
    e(f's_cselect_b32 s{sDX}, {(-2*XSLOT) & 0xffffffff}, s{sDX}')
    e(f's_mov_b32 s{sDW}, {WSLOT}')
    e(f's_cselect_b32 s{sDW}, {(-2*WSLOT) & 0xffffffff}, s{sDW}')
    e(f's_add_u32 s{sXl}, s{sXl}, s{sDX}')
    e(f's_add_u32 s{sWl}, s{sWl}, s{sDW}')
    e(f's_and_b32 s{sK}, s{sOrd}, 15')
    e(f's_lshl_b32 s{sT0}, s{sK}, 7')
    e(f's_mul_i32 s{sK}, s{sK}, {64*ROW}')
    if FLIP: e(f's_add_u32 s{sK}, s{sK}, s{sKf}')
    e(f's_lshr_b32 s{sOrd}, s{sOrd}, 4')
def issue_x():
    e(f's_mov_b32 m0, s{sXl}')
    e('s_nop 0')
    for i in range(4): dx(i)
    e(f's_add_u32 m0, s{sXl}, 4096')
    e('s_nop 0')
    dx(4)
def issue_w(ks):
    if ks:
        e(f's_add_u32 m0, s{sWl}, 3072')
        e(f's_add_u32 s{sK}, s{sK}, {KD}')
    else:
        e(f's_mov_b32 m0, s{sWl}')
        e('s_nop 0')
    for tap in range(3): dw(tap)
SCHED = opt.get('sched')
NF = 'nf' in opt or SCHED is not None
if SCHED:
    bl = [[int(c, 16) for c in s] for s in SCHED.split('_')]
    if len(bl) == 1: bl = bl*3
    sK2 = sSl
    for g in (1, 2):
        e(f's_cmp_eq_u32 s{sG}, {g}')
        e(f's_cbranch_scc1 L_lg{g}')
    for g in range(3):
        if g: e(f'L_lg{g}:')
        stream = [(p, i) for p in range(1, 9) for i in range(11)]
        cuts = {}
        for n in range(7):
            at = (n + 2 - 1)*11 + 11 - bl[g][n]
            cuts.setdefault(at, []).append(n)
        if NF0: cuts.setdefault(int(NF0), []).append(-1)
        cur_m0 = None
        for si in range(len(stream) + 1):
            pre = []
            if si < len(stream):
                p, i = stream[si]
                st = orders[g][p]; slot = p % 3
                if i == 0: pre.append(f's_movk_i32 s{sT0}, {st*128}')
                if i == 5: pre.append(f's_add_u32 s{sK}, s{sKf}, {st*64*ROW}' if FLIP else f's_mov_b32 s{sK}, {st*64*ROW}')
                if i == 8: pre.append(f's_add_u32 s{sK}, s{sK}, {KD}')
                want = ('x', slot*XSLOT + (4096 if i == 4 else 0)) if i < 5 else ('w', slot*WSLOT + (3072 if i >= 8 else 0))
                if want != cur_m0:
                    pre = [f's_add_u32 m0, s{sXl if want[0] == "x" else sWl}, {want[1]}'] + (pre if pre else ([] if si in cuts else ['s_nop 0']))
                    cur_m0 = want
            for x in pre: e(x)
            for n in cuts.get(si, []):
                e(f's_waitcnt vmcnt({si - (n+1)*11})')
                e('s_barrier')
            if PF == 'late' and si == (g + 1)*11: par_load(f'L_lnop{g}')
            if si < len(stream):
                dx(i) if i < 5 else dw((i - 5) % 3)
        if g < 2: e('s_branch L_lend')
    e('L_lend:')
elif NF:
    e('L_lloop:')
    advance()
    e(f's_mov_b32 m0, s{sXl}')
    E0 = int(opt.get('e0', 0))
    e(f's_cmp_lt_u32 s{sIt}, {3 + E0}')
    e('s_cbranch_scc1 L_lfree')
    e('s_waitcnt vmcnt(11)')
    e('s_barrier')
    e('L_lfree:')
    for i in range(4): dx(i)
    e(f's_add_u32 m0, s{sXl}, 4096')
    e(f's_add_u32 s{sIt}, s{sIt}, 1')
    dx(4)
    issue_w(0)
    if E0:
        e(f's_sub_u32 s{sDX}, s{sIt}, 3')
        e(f's_cmp_ge_u32 s{sDX}, {E0}')
        e('s_cbranch_scc1 L_lnb')
        e('s_waitcnt vmcnt(8)')
        e('s_barrier')
        e('L_lnb:')
    issue_w(1)
    if LST:
        e(f's_lshl_b32 s94, s{sIt}, 1')
        e('s_add_u32 s94, s94, 4')
    lstamp('s94')
    e(f's_cmp_lt_u32 s{sIt}, 9')
    e('s_cbranch_scc1 L_lloop')
else:
    e('L_lloop:')
    advance()
    e(f's_cmp_lt_u32 s{sIt}, 3')
    e('s_cbranch_scc1 L_lfree')
    e('s_barrier')
    e('L_lfree:')
    issue_x(); issue_w(0)
    e(f's_cmp_eq_u32 s{sIt}, 8')
    e('s_cbranch_scc1 L_llast')
    issue_w(1)
    ld_flag()
    if LST:
        e(f's_lshl_b32 s94, s{sIt}, 1')
        e('s_add_u32 s94, s94, 6')
    lstamp('s94')
    e(f's_add_u32 s{sIt}, s{sIt}, 1')
    e('s_branch L_lloop')
    e('L_llast:')
    ld_flag()
    issue_w(1)

def par_compute():
    for p in range(4):
        e(f'v_lshlrev_b32 v{vP+p}, 16, v{vP+p}')
    e(f'v_add_f32 v{vP+1}, 0x3727c5ac, v{vP+1}')
    e(f'v_rsq_f32 v{vP+1}, v{vP+1}')
    e(f'v_mul_f32 v{vP+2}, 0xbfb8aa3b, v{vP+2}')
    e(f'v_mul_f32 v{vP+3}, 0xbfb8aa3b, v{vP+3}')
    e(f'v_mul_f32 v{vP+2}, v{vP+1}, v{vP+2}')
    e(f'v_fma_f32 v{vP+3}, -v{vP}, v{vP+2}, v{vP+3}')
    e('v_lshlrev_b32 v2, 2, v1')
    e(f'v_add_u32 v2, {PARM}, v2')
def par_write():
    e(f'ds_write_b32 v2, v{vP+2}')
    e(f'ds_write_b32 v2, v{vP+3} offset:256')
if NF:
    if not SCHED:
        e('s_waitcnt vmcnt(11)')
        e('s_barrier')
    e(f's_cmp_lg_u32 s{sWave}, 3')
    e('s_cbranch_scc1 L_lfin')
    par_compute()
    e('s_waitcnt vmcnt(3)')
    par_write()
    e('L_lfin:')
    e('s_waitcnt vmcnt(3)')
    e('s_barrier')
else:
    e(f's_cmp_lg_u32 s{sWave}, 3')
    e('s_cbranch_scc1 L_lfin')
    e('s_waitcnt vmcnt(12)')
    par_compute()
    e('s_waitcnt vmcnt(0)')
    par_write()
    e('L_lfin:')
e('s_waitcnt vmcnt(0) lgkmcnt(0)')
e('s_barrier')
if LST:
    lstamp(30)
    e('s_load_dwordx2 s[50:51], s[0:1], 64')
    e(f's_lshl_b32 s3, s2, 3')
    e(f's_add_u32 s3, s3, s{sWave}')
    e(f's_mul_i32 s3, s3, {NST*8}')
    e('v_lshl_add_u32 v0, v1, 2, s3')
    e('v_and_b32 v2, 1, v1')
    e('v_cmp_eq_u32 vcc, 0, v2')
    e('s_nop 1')
    e('v_cndmask_b32 v30, 0, v30, vcc')
    e('s_waitcnt lgkmcnt(0)')
    e('s_mov_b64 exec, 0xffffffff')
    e('global_store_dword v0, v30, s[50:51]')
e('s_endpgm')

if 'help' in opt:
    HS = [int(c) for c in str(opt['help'])]
    e('L_help:')
    e(f's_cmp_ge_u32 s{sT1}, 32')
    e('s_cbranch_scc1 L_end')
    e(f's_sub_u32 s{sT1}, s{sT1}, s{sT0}')
    e(f's_and_b32 s{sT0}, s2, 7')
    if 'hx7' in opt:
        e(f's_cmp_lg_u32 s{sT0}, 7')
        e('s_cbranch_scc1 L_end')
    else:
        e(f's_min_u32 s{sT0}, s{sT0}, 4')
        e(f's_lshl1_add_u32 s{sT1}, s{sT0}, s{sT1}')
    e(f's_lshr_b32 s{sWave}, s3, 6')
    HW = int(opt.get('hw', 8))
    if HW == 8:
        e(f's_lshl3_add_u32 s{sT1}, s{sT1}, s{sWave}')
    else:
        e(f's_cmp_ge_u32 s{sWave}, {HW}')
        e('s_cbranch_scc1 L_end')
        e(f's_mul_i32 s{sT1}, s{sT1}, {HW}')
        e(f's_add_u32 s{sT1}, s{sT1}, s{sWave}')
    e('v_and_b32 v1, 63, v0')
    e(f's_mov_b32 s{sX+2}, {X_BYTES}')
    e(f's_mov_b32 s{sX+3}, 0x20000')
    e(f's_movk_i32 s{sK}, 128')
    e(f'v_lshl_add_u32 v2, s{sT1}, 6, v1')
    e('v_mul_u32_u24 v2, 1152, v2')
    e(f's_cmp_lt_u32 s{sT1}, 64')
    e('s_waitcnt lgkmcnt(0)')
    e('s_cbranch_scc1 L_hgo')
    e(f's_sub_u32 s{sT1}, s{sT1}, 64')
    e(f's_cmp_ge_u32 s{sT1}, 27')
    e('s_cbranch_scc1 L_end')
    div_small(sT0, sT1, 9, 40)
    e(f's_mul_i32 s{sT2}, s{sT0}, {TAP//128 - 576}')
    e(f's_lshl_b32 s{sT1}, s{sT1}, 6')
    e(f's_add_u32 s{sT1}, s{sT1}, s{sT2}')
    e(f'v_add_u32 v2, s{sT1}, v1')
    e('v_lshlrev_b32 v2, 7, v2')
    e(f's_mov_b32 s{sX}, s{sW}')
    e(f's_mov_b32 s{sX+1}, s{sW+1}')
    e(f's_mov_b32 s{sX+2}, {W_BYTES}')
    e(f's_mov_b32 s{sK}, {64*ROW}')
    e('L_hgo:')
    for i in range(int(opt.get('hdel', 0))):
        e('s_mov_b64 exec, 1')
        e(f's_mul_i32 s{sT0}, s{sK}, {HS[i]}')
        e(f'buffer_load_dword v3, v2, s[{sX}:{sX+3}], s{sT0} offen')
        e('s_waitcnt vmcnt(0)')
        e('s_mov_b64 exec, -1')
    for i, st in enumerate(HS):
        e(f's_mul_i32 s{sT0}, s{sK}, {st}')
        e(f'buffer_load_dword v{4+i}, v2, s[{sX}:{sX+3}], s{sT0} offen')
        if i + 1 < len(HS): e('s_barrier')
    e('s_waitcnt vmcnt(0)')
    e('s_endpgm')

e('L_consumer:')
e('s_load_dwordx2 s[28:29], s[0:1], 48')
if STAMP: e('s_load_dwordx2 s[50:51], s[0:1], 64')
e('s_setprio 3')
vXa = [2, 3]; vXm = [[4, 5], [252, 253], [6, 7]]
vWa = [8, 9]
vOut = 10; vOutM = 11
vPar = 12
ACC = 16
F = [56, 108, 160]
SC2 = 212; SH2 = 220
T = 228; P = 236; Qs = [240, 244]
cFl, cPoll, cSw, cSr = 248, 249, 250, 251
def acc(tile, t): return ACC + (tile*2 + t)*4
def fx(buf, i): return F[buf] + i*4
def fw(buf, k, t): return F[buf] + 28 + (k*2 + t)*4
A0, A1, A2 = T, T+1, T+2
e('v_and_b32 v13, 15, v1')
e('v_lshrrev_b32 v14, 4, v1')
for r in range(4):
    e(f'v_mov_b32 v{ACC+r}, 0')
e('v_min_u32 v15, 2, v14')
e(f'v_mul_u32_u24 v15, {XSLOT}, v15')
e('v_lshl_add_u32 v15, v13, 4, v15')
e(f'ds_write_b128 v15, v[{ACC}:{ACC+3}] offset:{XBASE+20480}')
e(f's_sub_u32 s{sWave}, s{sWave}, 4')
e(f's_lshr_b32 s{sT0}, s{sWave}, 1')
e(f's_and_b32 s{sT1}, s{sWave}, 1')
if not NF0:
    e('v_and_b32 v15, 3, v1')
    e('v_lshlrev_b32 v15, 2, v15')
    e(f'v_add_u32 v{cFl}, {FLAGL}, v15')
GX = 14
if FLIP:
    GX = A2 + 1
    e(f's_lshl_b32 s{sIt}, s{sF}, 2')
    e(f'v_xor_b32 v{GX}, s{sIt}, v14')
e(f's_lshl_b32 s{sT3}, s{sT0}, 11')
e('v_lshrrev_b32 v15, 1, v13')
e(f'v_xor_b32 v15, v15, v{GX}')
e('v_lshlrev_b32 v15, 4, v15')
e('v_lshl_add_u32 v15, v13, 7, v15')
e(f'v_add_u32 v{vXa[0]}, s{sT3}, v15')
e(f'v_xor_b32 v{vXa[1]}, 64, v{vXa[0]}')
e(f's_mul_i32 s{sIt}, s{sT0}, 10240')
e(f's_add_u32 s{sIt}, s{sIt}, 4096')
e(f'v_lshrrev_b32 v{A2}, 3, v13')
e(f'v_lshl_add_u32 v{A2}, v{A2}, 12, s{sIt}')
e(f'v_add_u32 v{vXm[1][0]}, v{A2}, v15')
e(f'v_xor_b32 v{vXm[1][1]}, 64, v{vXm[1][0]}')
for k in (0, 2):
    regs = vXm[k]
    e(f'v_add_u32 v15, {1 if k==2 else 3}, v13')
    e(f'v_bfi_b32 v15, 3, v15, v13')
    e(f'v_lshrrev_b32 v{A0}, 1, v15')
    e(f'v_xor_b32 v{A0}, v{A0}, v{GX}')
    e(f'v_lshlrev_b32 v{A0}, 4, v{A0}')
    e(f'v_lshl_add_u32 v{A0}, v15, 7, v{A0}')
    e(f'v_add_u32 v{A1}, v{A2}, v{A0}')
    e(f'v_and_b32 v{A0}, 0xff, v{A0}')
    e('v_and_b32 v15, 3, v13')
    e(f'v_cmp_eq_u32 vcc, {0 if k==0 else 3}, v15')
    e(f'v_add_u32 v{A0}, {XBASE+20480}, v{A0}')
    e('s_nop 0')
    e(f'v_cndmask_b32 v{regs[0]}, v{A1}, v{A0}, vcc')
    e(f'v_xor_b32 v{regs[1]}, 64, v{regs[0]}')
e('v_lshrrev_b32 v15, 2, v13')
e(f'v_mul_u32_u24 v{A0}, 6144, v14')
e(f'v_lshl_add_u32 v{A0}, v15, 7, v{A0}')
e('v_lshrrev_b32 v15, 1, v15')
e(f'v_and_b32 v{A1}, 1, v14')
e(f'v_lshl_add_u32 v15, v{A1}, 1, v15')
e(f's_lshl_b32 s{sIt}, s{sT1}, 1')
e(f'v_xor_b32 v15, s{sIt}, v15')
e(f'v_lshl_add_u32 v{A0}, v15, 5, v{A0}')
e('v_and_b32 v15, 3, v13')
e(f'v_lshl_add_u32 v{A0}, v15, 3, v{A0}')
e(f'v_add_u32 v{vWa[0]}, {WBASE}, v{A0}')
e(f'v_xor_b32 v{vWa[1]}, 32, v{vWa[0]}')
assert WBASE % 256 == 0
if not NF0:
    e('s_waitcnt lgkmcnt(0)')
    e('s_barrier')
sNL = 46
deferred = [
 f's_mov_b32 s{sOut+2}, s{sNv}', f's_mov_b32 s{sOut+3}, 0x20000',
 f's_lshl_b32 s{sIt}, s{sT1}, 7', f's_add_u32 s{sIt}, s{sIt}, {PARM}',
 f'v_lshl_add_u32 v{vPar}, v14, 4, s{sIt}',
 f's_lshl_b32 s{sIt}, s{sWave}, 10', f's_add_u32 s{sIt}, s{sIt}, {STG}',
 'v_and_b32 v15, 1, v14', 'v_lshlrev_b32 v15, 1, v15', f'v_lshrrev_b32 v{A0}, 1, v14', f'v_or_b32 v15, v15, v{A0}',
 f'v_bfe_u32 v{A0}, v13, 1, 2', f'v_xor_b32 v15, v15, v{A0}', 'v_lshlrev_b32 v15, 4, v15', 'v_lshl_add_u32 v15, v13, 6, v15',
 f'v_add_u32 v{cSw}, s{sIt}, v15', f'v_lshl_add_u32 v{cSr}, v1, 4, s{sIt}',
 f's_lshl_b32 s{sT2}, s{sCt}, 7', f's_lshl_b32 s{sT3}, s{sT1}, 6', f's_add_u32 s{sT2}, s{sT2}, s{sT3}',
 f's_mul_i32 s{sIt}, s{sT0}, 20', f's_add_u32 s{sIt}, s{sIt}, s{sB0}', f's_mulk_i32 s{sIt}, 4608', f's_add_u32 s{sIt}, s{sIt}, s{sT2}',
 'v_bfe_u32 v15, v1, 3, 2', f'v_and_b32 v{A0}, 3, v1', f'v_xor_b32 v15, v15, v{A0}', f'v_lshl_add_u32 v15, v15, 4, s{sIt}',
 f'v_lshrrev_b32 v{A0}, 2, v1', f'v_mul_u32_u24 v{vOutM}, 1152, v{A0}', f'v_lshl_add_u32 v{vOut}, v{vOutM}, 2, v15',
 f'v_add_u32 v{vOutM}, v{vOutM}, v15', f'v_add_u32 v{vOutM}, {16*4608}, v{vOutM}',
 f's_mov_b32 s{sNL}, 0xbfb8aa3b', f's_mov_b32 s{sNL+1}, 0xbfb8aa3b']

cSw1 = 254
if FULL:
    deferred = [
     f's_mov_b32 s{sOut+2}, s{sNv}', f's_mov_b32 s{sOut+3}, 0x20000',
     f's_lshl_b32 s{sIt}, s{sT1}, 7', f's_add_u32 s{sIt}, s{sIt}, {PARM}',
     f'v_lshl_add_u32 v{vPar}, v14, 4, s{sIt}',
     f's_lshl_b32 s{sIt}, s{sT0}, 11', f's_add_u32 s{sIt}, s{sIt}, {STG}', f's_lshl_b32 s{sT2}, s{sT1}, 2',
     'v_lshrrev_b32 v15, 1, v14', f'v_or_b32 v15, s{sT2}, v15', f'v_and_b32 v{A0}, 7, v13', f'v_xor_b32 v15, v15, v{A0}',
     'v_lshlrev_b32 v15, 4, v15', 'v_lshl_add_u32 v15, v13, 7, v15', f'v_and_b32 v{A0}, 1, v14', f'v_lshl_add_u32 v15, v{A0}, 3, v15',
     f'v_add_u32 v{cSw}, s{sIt}, v15', f'v_xor_b32 v{cSw1}, 32, v{cSw}',
     f's_lshl_b32 s{sT2}, s{sT1}, 10', f's_add_u32 s{sIt}, s{sIt}, s{sT2}', f'v_lshl_add_u32 v{cSr}, v1, 4, s{sIt}',
     f's_lshl_b32 s{sT2}, s{sCt}, 7',
     f's_mul_i32 s{sIt}, s{sT0}, 20', f's_add_u32 s{sIt}, s{sIt}, s{sB0}', f's_mulk_i32 s{sIt}, 4608', f's_add_u32 s{sIt}, s{sIt}, s{sT2}',
     f'v_lshrrev_b32 v{A0}, 3, v1', 'v_and_b32 v15, 7, v1', f'v_xor_b32 v15, v15, v{A0}', f'v_lshl_add_u32 v15, v15, 4, s{sIt}',
     f's_lshl_b32 s{sT2}, s{sT1}, 3', f'v_add_u32 v{A0}, s{sT2}, v{A0}',
     f'v_mul_u32_u24 v{vOutM}, 1152, v{A0}', f'v_lshl_add_u32 v{vOut}, v{vOutM}, 2, v15',
     f'v_add_u32 v{vOutM}, v{vOutM}, v15', f'v_add_u32 v{vOutM}, {16*4608}, v{vOutM}',
     f's_mov_b32 s{sNL}, 0xbfb8aa3b', f's_mov_b32 s{sNL+1}, 0xbfb8aa3b']
    assert STG % 256 == 0

def rx(buf, slot, h, i):
    xo = XBASE + slot*XSLOT
    if i < 4: return f'ds_read_b128 v[{fx(buf,i)}:{fx(buf,i)+3}], v{vXa[h]} offset:{xo + i*5120}'
    return f'ds_read_b128 v[{fx(buf,i)}:{fx(buf,i)+3}], v{vXm[i-4][h]} offset:{xo}'
def rw(buf, slot, h, k, t):
    r = []
    for hp in range(2):
        d = fw(buf, k, t) + 2*hp
        off = slot*WSLOT + (h*3+k)*1024 + hp*512
        r.append(f'ds_read_b64_tr_b16 v[{d}:{d+1}], v{vWa[t]} offset:{off}')
    return r
CHAIN = 'nochain' not in opt
def reads(buf, slot, h):
    X = lambda i: rx(buf, slot, h, i)
    W = lambda k, t: rw(buf, slot, h, k, t)
    if CHAIN:
        early = W(1,0) + [X(0)] + W(2,0) + [X(1)] + W(1,1) + W(2,1) + W(0,0) + [X(2)] + W(0,1)
        late = [X(3), X(4), X(5), X(6)]
        return early, late
    early = W(0,0) + [X(0), X(1), X(2), X(4)] + W(0,1) + W(1,0) + [X(3), X(5)] + W(1,1)
    late = W(2,0) + [X(6)] + W(2,1)
    return early, late
NL = 4 if CHAIN else 5
touched = set()
def mf(a, A, B):
    c = f'v[{a}:{a+3}]' if a in touched else '0'
    touched.add(a)
    return f'v_mfma_f32_16x16x32_bf16 v[{a}:{a+3}], v[{A}:{A+3}], v[{B}:{B+3}], {c}'
def tile_mfmas(tile, buf):
    r = []
    for t in range(2):
        for k in range(3):
            if tile < 4:
                sp = tile + k - 1
                if 0 <= sp <= 3: r.append(mf(acc(tile, t), fw(buf,k,t), fx(buf,sp)))
            else:
                r.append(mf(acc(4, t), fw(buf,k,t), fx(buf,4+k)))
    return r
def mfmas(buf):
    if CHAIN: return [m for tl in range(5) for m in tile_mfmas(tl, buf)]
    r = []
    for k in range(3):
        for t in range(2):
            for s in range(4):
                sp = s + k - 1
                if 0 <= sp <= 3:
                    r.append(mf(acc(s, t), fw(buf,k,t), fx(buf,sp)))
            r.append(mf(acc(4, t), fw(buf,k,t), fx(buf,4+k)))
    return r
def emit_phase(ms, fill, defer=False):
    assert len(fill) <= len(ms), len(fill)
    for i, m in enumerate(ms):
        e(m)
        if i < len(fill) and fill[i]:
            for x in fill[i]: e(x)
        elif defer and deferred:
            e(deferred.pop(0))
def poll(fidx): return f'ds_read_b32 v{cPoll}, v{cFl} offset:{16*fidx}'
spin_sites = []
def check(name, fidx):
    spin_sites.append((name, fidx))
    return [f'v_cmp_ne_u32 vcc, 0, v{cPoll}'], [f's_cbranch_vccnz L_cspin{name}', f'L_cback{name}:']

if STAMP:
    e(f's_mov_b32 s{sStamp+16}, 0')
    e(f's_mov_b32 s{sStamp+17}, 0')
NPAD = 0 if 'nopad' in opt else int(opt.get('npad', 2))
if NPAD:
    e('s_mov_b64 exec, 0')
    for p in range(NPAD):
        e(f's_branch L_pad{p}')
        e(f'L_ret{p}:')
    e('s_mov_b64 exec, -1')
stamp(1)
e('L_cpoll0:')
if NF0:
    e('s_waitcnt lgkmcnt(0)')
    e('s_barrier')
else:
    e(poll(0))
    e('s_waitcnt lgkmcnt(0)')
    e(f'v_cmp_ne_u32 vcc, 0, v{cPoll}')
    e('s_cbranch_vccnz L_cpoll0')
stamp(2)
cstamp(5)
ea, la = reads(0, 0, 0)
for r in ea + la: e(r)
W2 = int(opt.get('w2', 8))
BPOS = [int(v) for v in opt.get('bpos', '4,4,4,4,4,4').split(',')]
def build_fill(pre, seq, wait_at, bar_at):
    fill = list(pre) + [[x] for x in seq]
    wpos = len(pre) + wait_at
    fill.insert(wpos, [f's_waitcnt lgkmcnt({wait_at})'])
    if bar_at is not None:
        while len(fill) <= bar_at: fill.append([])
        fill[bar_at] = fill[bar_at] + ['s_barrier']
    return fill, wpos
for n in range(7):
    u = n % 3
    ea, la = reads(1, u, 1)
    bar = BPOS[n-1] - 26 if (1 <= n <= 6 and BPOS[n-1] >= 26) else None
    if n == 0 and NF0:
        e('s_waitcnt lgkmcnt(9)')
        fill = [[x] for x in ea + la]
        fill[3] = fill[3] + ['s_waitcnt lgkmcnt(8)']
        fill.insert(W2, [f's_waitcnt lgkmcnt({W2})'])
    elif n == 0:
        X = [rx(1, 0, 1, i) for i in range(7)]
        c0, c1 = check('A0', 1)
        if CHAIN:
            e('s_waitcnt lgkmcnt(9)')
            Wr = [x for k, t in ((1,0),(2,0),(1,1),(2,1),(0,0),(0,1)) for x in rw(1, 0, 1, k, t)]
            fill = [[X[0]], [X[1]], [X[2]], [poll(1), 's_waitcnt lgkmcnt(8)'], [X[3]], [X[4]], [X[5]], [X[6], 's_waitcnt lgkmcnt(4)'], c0, c1]
            fill += [[x] for x in Wr[:6]] + ([] if NF else [[poll(2)]]) + [[x] for x in Wr[6:]]
        else:
            e('s_waitcnt lgkmcnt(13)')
            Wr = [x for k in range(3) for t in range(2) for x in rw(1, 0, 1, k, t)]
            fill = [[X[0]], [X[1]], [X[2]], [poll(1), 's_waitcnt lgkmcnt(9)'], [X[4]], [X[3]], [X[5]], [X[6], 's_waitcnt lgkmcnt(4)'], c0, c1]
            fill += [[x] for x in Wr[:7]] + [[poll(2)]] + [[x] for x in Wr[7:]]
    else:
        e(f's_waitcnt lgkmcnt({NL})')
        fill, _ = build_fill([], ea + ([] if NF else [poll(n+2)]) + la, W2, None if NF else bar)
    emit_phase(mfmas(0), fill, defer=True)
    e(f's_waitcnt lgkmcnt({4 if n == 0 else NL})')
    ea, la = reads(0, (u+1) % 3, 0)
    if NF:
        NB = int(opt.get('nb', 2))
        st = ([f's_memrealtime s[{84+2*n}:{85+2*n}]'] if n < 6 else ['s_memrealtime s[4:5]']) if 'pst' in opt else []
        fill = [[] for _ in range(NB)] + [['s_waitcnt lgkmcnt(0)', 's_barrier'] + st] + [[x] for x in ea + la]
    else:
        c0, c1 = check(f'B{n}', n+2)
        if 'pst' in opt: c1 = c1 + [f's_memrealtime s[{84+2*n}:{85+2*n}]'] if n < 6 else c1 + ['s_memrealtime s[4:5]']
        bar = BPOS[n] if (n <= 5 and BPOS[n] < 26) else None
        wa = W2 if bar is None else max(0, min(W2, bar - 2))
        if CHAIN and n == 0: wa = min(wa, 1)
        fill, wpos = build_fill([c0, c1], ea + la, wa, bar)
        assert bar is None or bar >= wpos
    emit_phase(mfmas(1), fill, defer=True)
assert not deferred
e(f's_waitcnt lgkmcnt({NL})')
if not NF: c0, c1 = check('T', 9)
ea, la = reads(1, 1, 1)
r15 = ea + la
ea, la = reads(2, 2, 0)
r16 = ea + la
def group2(rs):
    g = []; i = 0
    while i < len(rs):
        if 'tr_b16' in rs[i] and i+1 < len(rs) and 'tr_b16' in rs[i+1]:
            g.append([rs[i], rs[i+1]]); i += 2
        else:
            g.append([rs[i]]); i += 1
    return g
g15 = group2(r15); g16 = group2(r16)
if NF:
    n_first = sum(len(x) for x in g15[:6])
    g15[5] = g15[5] + [f's_waitcnt lgkmcnt({n_first})']
    g15[-1] = g15[-1] + ['s_barrier']
else:
    g15 = [[poll(9)] + g15[0]] + g15[1:]
    n_first = sum(len(x) for x in g15[:6])
    g15[5] = g15[5] + [f's_waitcnt lgkmcnt({n_first - 1})']
    g15[-2] = g15[-2] + c0
    g15[-1] = g15[-1] + c1
fill = g15 + g16[:26-len(g15)]
left16 = [x for gg in g16[26-len(g15):] for x in gg]
fill[-1] = fill[-1] + ['s_barrier']
emit_phase(mfmas(0), fill)
stamp(3)
cstamp(6)
X = lambda i: rx(0, 2, 1, i)
W = lambda k, t: rw(0, 2, 1, k, t)
par = [f'ds_read_b128 v[{SC2}:{SC2+3}], v{vPar}', f'ds_read_b128 v[{SC2+4}:{SC2+7}], v{vPar} offset:64',
       f'ds_read_b128 v[{SH2}:{SH2+3}], v{vPar} offset:256', f'ds_read_b128 v[{SH2+4}:{SH2+7}], v{vPar} offset:320']
first17 = W(1,0) + [X(0)] + W(2,0) + [X(1)] + W(1,1) + W(2,1) + par
rest17 = W(0,0) + [X(2), X(3)] + W(0,1) + [X(4), X(5), X(6)]
head = tile_mfmas(0, 1) + tile_mfmas(3, 1) + tile_mfmas(0, 2) + tile_mfmas(3, 2)
n16_issued = len(r16) - len(left16)
e(f's_waitcnt lgkmcnt({min(12, n16_issued)})')
rq = left16 + first17 + rest17
gq = group2(rq)
issued = 0
def pop_reads():
    global issued
    if gq:
        for x in gq.pop(0):
            e(x); issued += 1
for i, m in enumerate(head):
    if i == 8:
        e(f's_waitcnt lgkmcnt({min(12, issued - len(left16))})')
    e(m); pop_reads()
e(f's_waitcnt lgkmcnt({min(12, issued - len(left16) - len(first17))})')
for m in tile_mfmas(0, 0):
    e(m); pop_reads()
assert not gq
e('s_waitcnt lgkmcnt(3)')
rest = tile_mfmas(3, 0) + tile_mfmas(1, 1) + tile_mfmas(1, 2) + tile_mfmas(1, 0) + tile_mfmas(2, 1) + tile_mfmas(2, 2) + tile_mfmas(2, 0) \
     + tile_mfmas(4, 1) + tile_mfmas(4, 2) + ['WAIT0'] + tile_mfmas(4, 0)
done_at = {0: 0, 3: 4, 1: 22, 2: 40, 4: 58}
emitted = 0
since = {0: 1}
def em(m):
    global emitted
    if m == 'WAIT0':
        e('s_waitcnt lgkmcnt(0)'); m = rest.pop(0)
    e(m); emitted += 1
    for k in since: since[k] += 1
    for tl, at in done_at.items():
        if at == emitted: since[tl] = 0
def ev(x):
    e(x)
    for k in since: since[k] += 1
def need(tl):
    while tl not in since: em(rest.pop(0))
    while since[tl] < 8:
        if rest and not (tl == 0 and emitted >= int(opt.get('hz', 99))): em(rest.pop(0))
        else:
            e(f's_nop {8 - since[tl] - 1}'); since[tl] = 8
def cost(ins):
    if 'exp' in ins or 'rcp' in ins: return 8
    if 'v_pk' in ins or 'v_fma' in ins: return 5
    return 4
def tile_ops(tile, Q):
    a0 = acc(tile, 0)
    def two(pkf, sf):
        return [('pk', pkf(i), [sf(i), sf(i+1)]) for i in range(0, 8, 2)]
    ops = []
    ops += two(lambda i: f'v_pk_fma_f32 v[{a0+i}:{a0+i+1}], v[{a0+i}:{a0+i+1}], v[{SC2+i}:{SC2+i+1}], v[{SH2+i}:{SH2+i+1}]',
               lambda i: f'v_fma_f32 v{a0+i}, v{a0+i}, v{SC2+i}, v{SH2+i}')
    ops += [('s', f'v_exp_f32 v{T+i}, v{a0+i}') for i in range(8)]
    ops += two(lambda i: f'v_pk_fma_f32 v[{T+i}:{T+i+1}], v[{T+i}:{T+i+1}], s[{sNL}:{sNL+1}], s[{sNL}:{sNL+1}]',
               lambda i: f'v_fma_f32 v{T+i}, v{T+i}, s{sNL}, s{sNL}')
    ops += [('s', f'v_rcp_f32 v{T+i}, v{T+i}') for i in range(8)]
    ops += two(lambda i: f'v_pk_mul_f32 v[{a0+i}:{a0+i+1}], v[{a0+i}:{a0+i+1}], v[{T+i}:{T+i+1}]',
               lambda i: f'v_mul_f32 v{a0+i}, v{a0+i}, v{T+i}')
    ops += [('s', f'v_cvt_pk_bf16_f32 v{P+i//2}, v{a0+i}, v{a0+i+1}') for i in range(0, 8, 2)]
    if FULL:
        cv = ops[-4:]
        ops = ops[:-4] + [cv[0], cv[1], cv[2], ('s', f'ds_write_b64 v{cSw}, v[{P}:{P+1}] offset:{tile*4096}'), cv[3],
                          ('s', f'ds_write_b64 v{cSw1}, v[{P+2}:{P+3}] offset:{tile*4096}')]
    else:
        ops += [('s', 's_nop 1'), ('s', f'v_permlane16_swap_b32 v{P}, v{P+2}'), ('s', f'v_permlane16_swap_b32 v{P+1}, v{P+3}'),
                ('s', f'ds_write_b128 v{cSw}, v[{P}:{P+3}]'), ('s', f'ds_read_b128 v[{Q}:{Q+3}], v{cSr}')]
    return ops
def tile_store(tile, Q):
    if tile < 4:
        return f'buffer_store_dwordx4 v[{Q}:{Q+3}], v{vOut}, s[{sOut}:{sOut+3}], 0 offen offset:{tile*1152} {STF}'
    return f'buffer_store_dwordx4 v[{Q}:{Q+3}], v{vOutM}, s[{sOut}:{sOut+3}], 0 offen {STL}'
pend = None
budget = 0
GAPV = int(opt.get('gapv', 8))
for n, tl in enumerate([0, 3, 1, 2, 4]):
    Q = Qs[n % 2]
    need(tl)
    if 't2st' in opt: e(f's_memtime s[{84+2*n}:{85+2*n}]')
    for i, op in enumerate(tile_ops(tl, Q)):
        if op[0] == 'pk':
            ins = [op[1]] if (PK == 2 or (PK == 1 and not rest)) else op[2]
        else:
            ins = [op[1]]
        for x in ins:
            ev(x); budget += cost(x)
            if rest and budget >= GAPV:
                em(rest.pop(0)); budget = 0
        if FULL:
            if pend is not None and i == 8:
                ev('s_waitcnt lgkmcnt(0)'); ev('s_barrier')
                ev(f'ds_read_b128 v[{pend[1]}:{pend[1]+3}], v{cSr} offset:{pend[0]*4096}')
            if pend is not None and i == 20:
                ev('s_waitcnt lgkmcnt(0)')
                ev(tile_store(*pend)); pend = None
        elif pend is not None and i == 12:
            ev('s_waitcnt lgkmcnt(0)')
            ev(tile_store(*pend)); pend = None
    pend = (tl, Q)
if 't2st' in opt: e('s_memtime s[94:95]')
if FULL:
    e('s_waitcnt lgkmcnt(0)'); e('s_barrier')
    e(f'ds_read_b128 v[{pend[1]}:{pend[1]+3}], v{cSr} offset:{pend[0]*4096}')
e('s_waitcnt lgkmcnt(0)')
e(tile_store(*pend))
stamp(4)
cstamp(7)
if 'pst' in opt or 't2st' in opt:
    e('s_waitcnt lgkmcnt(0)')
    if 't2st' in opt: e(f's_mov_b32 s4, s{sStamp+14}')
    e(f's_mov_b32 s{sStamp+18}, s84'); e(f's_mov_b32 s{sStamp+19}, s86')
    e(f's_mov_b32 s{sStamp+20}, s88'); e(f's_mov_b32 s{sStamp+21}, s90')
    e(f's_mov_b32 s{sStamp+22}, s92'); e(f's_mov_b32 s{sStamp+23}, s94')
    e(f's_mov_b32 s{sStamp+28}, s4'); e(f's_mov_b32 s{sStamp+29}, s4')
stamp_flush([0,1,2,3,4,5,6,7,8] + ([9,10,11,14] if ('pst' in opt or 't2st' in opt) else []))
e('s_endpgm')
for name, fidx in spin_sites:
    e(f'L_cspin{name}:')
    if STAMP: e(f's_add_u32 s{sStamp+16}, s{sStamp+16}, 1')
    e(poll(fidx))
    e('s_waitcnt lgkmcnt(0)')
    e(f'v_cmp_ne_u32 vcc, 0, v{cPoll}')
    e(f's_cbranch_vccnz L_cspin{name}')
    e(f's_branch L_cback{name}')
e('L_end:')
e('s_endpgm')

def render(lines):
    body = '\n'.join(lines)
    return HEADER + f'''; Override launch geometry by editing the next line (default: block=256,
; grid=ceil(out_elems/256), lds=0). Harness parses it; keep it on one line.
; @launch grid=({NWG},1,1) block=(512,1,1) lds={LDS_BYTES}
.amdgcn_target "amdgcn-amd-amdhsa--gfx950"
.text
.globl standalone__batchnorm__sampling_kernel
{'' if 'noal' in opt else '.p2align 12'}
.p2align 8
.type standalone__batchnorm__sampling_kernel,@function
standalone__batchnorm__sampling_kernel:
{body}
.section .rodata,"a"
.p2align 6
.amdhsa_kernel standalone__batchnorm__sampling_kernel
  .amdhsa_next_free_vgpr 256
  .amdhsa_next_free_sgpr 96
  .amdhsa_accum_offset 256
  .amdhsa_group_segment_fixed_size 0
  .amdhsa_kernarg_size 72
  .amdhsa_user_sgpr_count 2
  .amdhsa_user_sgpr_kernarg_segment_ptr 1
  .amdhsa_system_sgpr_workgroup_id_x 1
.end_amdhsa_kernel
'''
import subprocess, re, os
def offsets(lines):
    open('_g.s', 'w').write(render(lines))
    subprocess.run(['clang', '-x', 'assembler', '-target', 'amdgcn-amd-amdhsa', '-mcpu=gfx950', '-c', '_g.s', '-o', '_g.o'], check=True)
    d = subprocess.run(['llvm-objdump', '-d', '--mcpu=gfx950', '_g.o'], capture_output=True, text=True).stdout
    offs = [int(m.group(1), 16) for m in re.finditer(r'// ([0-9A-F]{12}):', d)]
    idx = [i for i, l in enumerate(lines) if l.startswith('    ')]
    assert len(offs) == len(idx), (len(offs), len(idx))
    return dict(zip(idx, offs))
if NPAD:
    KSTART = 0x300
    lines = out
    i0 = lines.index('L_cpoll0:')
    for p in range(NPAD):
        tmp = lines + [f'L_pad{q}:' for q in range(p, NPAD)] + ['    s_endpgm']
        offs = offsets(tmp)
        first = (offs[i0+1] + KSTART) // 4096
        bnd = 4096*(first + p + 1) - KSTART
        i = min(i for i, o in offs.items() if o >= bnd)
        lines = lines[:i] + [f'L_pad{p}:', f'    s_cbranch_execz L_ret{p}'] + lines[i:]
    out = lines
open(dst, 'w').write(render(out))
```

```python
import sys
opt = {}
dst = 'standalone__batchnorm__sampling.s'
for a in sys.argv[1:]:
    if a.startswith('--'):
        k, _, v = a[2:].partition('=')
        opt[k] = v if v else True
    else:
        dst = a
STAMP = 'stamp' in opt
AMP = None
if 'amp' in opt:
    AMP = tuple(int(v) for v in opt['amp'].split(',')); STAMP = True
MAP = opt.get('map', 'p4')
ORDER = opt.get('order', '013246578_120435768_201354687')
XNT = ' nt' if 'xnt' in opt else ''
STF = opt.get('stf', 'sc1').replace('+', ' ')
STL = opt.get('stl', STF).replace('+', ' ').replace('none', '')
PK = int(opt.get('pk', 1))
FLIP = MAP in ('p4', 'p5') and 'noflip' not in opt
LST = 'lst' in opt
NF0 = True
PERM = [int(c) for c in opt.get('perm', '012')]
CLS = PERM != [0, 1, 2]
sC = 49
PF = opt.get('ppos', 'mid')

out = []
def e(s=''):
    if 'nodma' in opt and s.startswith('buffer_load_dwordx4') and s.endswith('lds'): return
    out.append('    ' + s if s and not s.endswith(':') else s)

HEADER = open('standalone__batchnorm__sampling.s.ref').read().split('; Override launch')[0]

WSLOT = 24576
XSLOT = 20480 + 256
XBASE = 0
WBASE = XSLOT * 3
FLAGL = WBASE + WSLOT * 3
PARM = FLAGL + 1024
STG = PARM + 512
FULL = 'full' in opt
LDS_BYTES = STG + (20480 if FULL else 4096)
assert LDS_BYTES <= 163840
X_BYTES = 1024*4*576*2
W_BYTES = 3*576*576*2
TAP = 576*576*2
ROW = 1152

sX, sW, sOut = 20, 24, 28
sWave, sQ, sCt, sB0 = 32, 33, 34, 35
sT0, sT1, sT2, sT3 = 36, 37, 38, 39
sXl, sF, sWl, sK = 40, 41, 42, 43
sIt, sDX, sDW = 44, 45, 46
sSl, sFl = 47, 48
sOrd, sG, sKd, sKf = 16, 17, 18, 19
sNv = sX + 2
sStamp = 52
NST = 16
def stamp(i):
    if STAMP: e(f's_memrealtime s[{sStamp+2*i}:{sStamp+2*i+1}]')
def cstamp(i):
    if STAMP: e(f's_memtime s[{sStamp+2*i}:{sStamp+2*i+1}]')
def stamp_flush(used):
    if not STAMP: return
    e('s_waitcnt vmcnt(0) lgkmcnt(0)')
    stamp(NST-1)
    e(f's_memtime s[{sStamp+26}:{sStamp+27}]')
    e('s_waitcnt lgkmcnt(0)')
    if AMP is not None:
        e(f's_sub_u32 s3, s{sStamp+2*AMP[1]}, s{sStamp+2*AMP[0]}')
        e(f's_mul_i32 s3, s3, {AMP[3] if len(AMP) > 3 else 20}')
        e(f's_add_u32 s3, s3, s{sStamp+2*(NST-1)}')
        e('L_amp:')
        e('s_memrealtime s[4:5]')
        e('s_waitcnt lgkmcnt(0)')
        e('s_sub_u32 s6, s4, s3')
        e('s_cmp_lt_i32 s6, 0')
        e('s_cbranch_scc1 L_amp')
        return
    e(f's_lshl_b32 s3, s2, 3')
    e(f's_add_u32 s3, s3, s{sWave}')
    e('s_add_u32 s3, s3, 4')
    e(f's_mul_i32 s3, s3, {NST*8}')
    e('v_mov_b32 v0, s3')
    e('s_mov_b64 exec, 1')
    for i in used + [12, 13, NST-1]:
        e(f'v_mov_b32 v2, s{sStamp+2*i}')
        e(f'v_mov_b32 v3, s{sStamp+2*i+1}')
        e(f'global_store_dwordx2 v0, v[2:3], s[50:51] offset:{8*i}')
        e('s_nop 1')
def div_small(dstr, src_, d, maxv):
    for sh in range(4, 16):
        m = -(-(1 << sh) // d)
        if m <= 64 and all((t*m) >> sh == t // d for t in range(maxv+1)):
            e(f's_mul_i32 s{dstr}, s{src_}, {m}')
            e(f's_lshr_b32 s{dstr}, s{dstr}, {sh}')
            return
    assert 0
def pack(order): return sum(s << (4*i) for i, s in enumerate(order))
orders = [[int(ch) for ch in o] for o in ORDER.split('_')]
for g, o in enumerate(orders): assert sorted(o) == list(range(9)), o
assert len(orders) == 3
FIRST_IS_G = all(o[0] == g for g, o in enumerate(orders))
FIRST_IS_0 = all(o[0] == 0 for o in orders)
assert FIRST_IS_G or FIRST_IS_0

e(f's_load_dwordx2 s[{sW}:{sW+1}], s[0:1], 8')
e(f's_load_dwordx2 s[{sX}:{sX+1}], s[0:1], 0')
if PF == 'front': e('s_load_dwordx8 s[8:15], s[0:1], 16')
if STAMP:
    stamp(0)
    e(f's_memtime s[{sStamp+24}:{sStamp+25}]')
e(f's_lshr_b32 s{sT1}, s2, 3')
if 'nocpf' not in opt:
    e('s_getpc_b64 s[30:31]')
    e('L_pc:')
    e('v_and_b32 v2, 0x180, v0')
    e(f'v_lshl_add_u32 v2, s{sT1}, 9, v2')
    e('v_min_u32 v2, L_end-L_pc, v2')
    e('global_load_dword v255, v2, s[30:31]')
e('v_readfirstlane_b32 s3, v0')
e(f's_and_b32 s{sT0}, s2, 7')
if MAP == 'p3':
    NWG = 240
    e(f's_mul_i32 s{sT2}, s{sT0}, 27')
    e(f's_mul_i32 s{sT3}, s{sT0}, 3')
    e(f's_addk_i32 s{sT3}, {216-27}')
    e(f's_cmp_ge_u32 s{sT1}, 27')
    e(f's_cselect_b32 s{sT2}, s{sT3}, s{sT2}')
    e(f's_add_u32 s{sT2}, s{sT2}, s{sT1}')
    e(f's_cmp_ge_u32 s{sT1}, 30')
    e(f's_cselect_b32 s{sT2}, -1, s{sT2}')
    e(f's_cmpk_ge_u32 s{sT2}, 234')
    e('s_cbranch_scc1 L_end')
    div_small(sQ, sT2, 9, 233)
    e(f's_mul_i32 s{sT0}, s{sQ}, 9')
    e(f's_sub_u32 s{sCt}, s{sT2}, s{sT0}')
    e(f's_mul_i32 s{sB0}, s{sQ}, 40')
    e(f's_mov_b32 s{sNv}, {X_BYTES}')
elif MAP == 'p5':
    NWG = 256
    nL, nR = (int(v) for v in opt.get('n', '39,37').split(','))
    nBL = -(-(1024 - 24*nL) // 3); nBR = -(-(1024 - 24*nR) // 4)
    assert max(nL, nR, nBL, nBR) <= 40
    def P(M, ncol, c0, n, lim):
        assert all((j*M) >> 8 == j // ncol for j in range(lim))
        return M | ncol << 8 | c0 << 12 | n << 16 | lim << 24
    e(f's_mul_i32 s{sB0}, s{sT0}, {6*nL}')
    e(f's_mul_i32 s{sT2}, s{sT0}, {8*nR}')
    e(f's_sub_u32 s{sT2}, s{sT2}, {32*nR}')
    e(f's_cmp_lt_u32 s{sT0}, 4')
    e(f's_cselect_b32 s{sB0}, s{sB0}, s{sT2}')
    e(f's_mov_b32 s{sT2}, {P(64, 4, 5, nR, 32)}')
    e(f's_cselect_b32 s{sT2}, {P(52, 5, 0, nL, 30)}, s{sT2}')
    e(f's_cmp_lg_u32 s{sT0}, 7')
    e('s_cbranch_scc1 L_mp')
    e(f's_sub_u32 s{sT3}, s{sT1}, 15')
    e(f's_cselect_b32 s{sT1}, s{sT1}, s{sT3}')
    e(f's_cselect_b32 s{sB0}, {24*nL}, s{sB0}')
    e(f's_mov_b32 s{sT2}, {P(64, 4, 5, nBR, 16)}')
    e(f's_cselect_b32 s{sT2}, {P(52, 5, 0, nBL, 15)}, s{sT2}')
    e('L_mp:')
    e(f's_lshr_b32 s{sT0}, s{sT2}, 24')
    e(f's_cmp_ge_u32 s{sT1}, s{sT0}')
    e('s_cbranch_scc1 L_end')
    e(f's_and_b32 s{sQ}, s{sT2}, 0xff')
    e(f's_mul_i32 s{sQ}, s{sQ}, s{sT1}')
    e(f's_lshr_b32 s{sQ}, s{sQ}, 8')
    e(f's_bfe_u32 s{sT0}, s{sT2}, 0x40008')
    e(f's_mul_i32 s{sT0}, s{sT0}, s{sQ}')
    e(f's_sub_u32 s{sCt}, s{sT1}, s{sT0}')
    e(f's_bfe_u32 s{sT0}, s{sT2}, 0x4000c')
    e(f's_add_u32 s{sCt}, s{sCt}, s{sT0}')
    e(f's_bfe_u32 s{sT3}, s{sT2}, 0x80010')
    e(f's_mul_i32 s{sT0}, s{sQ}, s{sT3}')
    e(f's_add_u32 s{sB0}, s{sB0}, s{sT0}')
    e(f's_add_u32 s{sNv}, s{sB0}, s{sT3}')
    e(f's_min_u32 s{sNv}, s{sNv}, 0x400')
    e(f's_mulk_i32 s{sNv}, 4608')
else:
    NWG = 256
    def P(M, ncol, lim, c0):
        assert all((j*M) >> 8 == j // ncol for j in range(lim))
        return M | ncol << 8 | lim << 16 | c0 << 24
    e(f's_mul_i32 s{sB0}, s{sT0}, 60')
    e(f's_mul_i32 s{sT2}, s{sT0}, 80')
    e(f's_sub_u32 s{sT2}, s{sT2}, 320')
    e(f's_cmp_lt_u32 s{sT0}, 4')
    e(f's_cselect_b32 s{sB0}, s{sB0}, s{sT2}')
    e(f's_mov_b32 s{sT2}, {P(64, 4, 32, 5)}')
    e(f's_cselect_b32 s{sT2}, {P(52, 5, 30, 0)}, s{sT2}')
    e(f's_cmp_eq_u32 s{sT0}, 7')
    BR = int(opt.get('br', 3))
    e(f's_cselect_b32 s{sT2}, {P(29, 9, 9*BR, 0)}, s{sT2}')
    e(f's_cselect_b32 s{sT3}, {int(opt.get("bn", -(-64//BR)))}, 40')
    e(f's_bfe_u32 s{sT0}, s{sT2}, 0x80010')
    e(f's_cmp_ge_u32 s{sT1}, s{sT0}')
    e('s_cbranch_scc1 L_help' if 'help' in opt else 's_cbranch_scc1 L_end')
    e(f's_and_b32 s{sQ}, s{sT2}, 0xff')
    e(f's_mul_i32 s{sQ}, s{sQ}, s{sT1}')
    e(f's_lshr_b32 s{sQ}, s{sQ}, 8')
    e(f's_bfe_u32 s{sT0}, s{sT2}, 0x80008')
    e(f's_mul_i32 s{sT0}, s{sT0}, s{sQ}')
    e(f's_sub_u32 s{sCt}, s{sT1}, s{sT0}')
    e(f's_lshr_b32 s{sT2}, s{sT2}, 24')
    e(f's_add_u32 s{sCt}, s{sCt}, s{sT2}')
    e(f's_mul_i32 s{sT0}, s{sQ}, s{sT3}')
    e(f's_lshl2_add_u32 s{sB0}, s{sB0}, s{sT0}')
    e(f's_add_u32 s{sNv}, s{sB0}, s{sT3}')
    e(f's_min_u32 s{sNv}, s{sNv}, 0x400')
    e(f's_mulk_i32 s{sNv}, 4608')
if FLIP:
    e(f's_lshr_b32 s{sF}, 0x38, s{sQ}')
    e(f's_and_b32 s{sF}, s{sF}, 1')
e(f's_lshr_b32 s{sWave}, s3, 6')
e('v_and_b32 v1, 63, v0')
e(f's_cmp_ge_u32 s{sWave}, 4')
e('s_cbranch_scc1 L_consumer')

vX = [10, 11, 12, 13, 14]
vW = [15, 16, 17]
vOOB = 18
vP = 20
e(f's_add_u32 s{sG}, s{sQ}, s{sCt}')
div_small(sT1, sG, 3, 40)
e('v_lshrrev_b32 v2, 3, v1')
e(f's_mul_i32 s{sT1}, s{sT1}, 3')
e('v_and_b32 v3, 7, v1')
e(f's_sub_u32 s{sG}, s{sG}, s{sT1}')
sG0 = sG
if CLS:
    e(f's_and_b32 s{sC}, s2, 7')
    e(f's_cmp_eq_u32 s{sC}, 7')
    e(f's_cselect_b32 s{sC}, 31, 0x1e0')
    e(f's_lshr_b32 s{sC}, s{sC}, s{sCt}')
    e(f's_and_b32 s{sC}, s{sC}, 1')
    if PERM[0]:
        sG0 = sOrd
        e(f's_mul_i32 s{sG0}, s{sC}, {3*PERM[0]}')
        if FIRST_IS_G: e(f's_add_u32 s{sG0}, s{sG0}, s{sG}')
        FIRST_IS_G = True
e('v_and_b32 v9, 2, v2')
e(f's_and_b32 s{sT2}, s{sWave}, 1')
e('v_mul_u32_u24 v8, 1152, v2')
e(f's_lshl_b32 s{sT3}, s{sT2}, 2')
e('v_xor_b32 v9, v9, v3')
e(f's_mul_i32 s{sT0}, s{sWave}, 72')
e(f'v_xor_b32 v9, s{sT3}, v9')
e(f's_add_u32 s{sT0}, s{sT0}, s{sCt}')
e('v_lshl_add_u32 v9, v9, 4, v8')
e(f's_lshl_b32 s{sT0}, s{sT0}, 7')
e(f's_mov_b32 s{sW+2}, {W_BYTES}')
e(f'v_add_u32 v{vW[0]}, s{sT0}, v9')
e(f's_mov_b32 s{sW+3}, 0x20000')
e(f'v_add_u32 v{vW[1]}, {TAP-1024}, v{vW[0]}')
if FIRST_IS_G:
    if FLIP:
        e(f's_lshl1_add_u32 s{sK}, s{sG0}, s{sF}')
        e(f's_mul_i32 s{sK}, s{sK}, {32*ROW}')
    else:
        e(f's_mul_i32 s{sK}, s{sG0}, {64*ROW}')
else:
    e(f's_mul_i32 s{sK}, s{sF}, {32*ROW}' if FLIP else f's_mov_b32 s{sK}, 0')
e(f'v_add_u32 v{vW[2]}, {2*TAP-2048}, v{vW[0]}')
e(f's_mul_i32 s{sWl}, s{sWave}, 6144')
e('v_lshrrev_b32 v4, 4, v1')
e(f's_add_u32 s{sWl}, s{sWl}, {WBASE}')
e('v_xor_b32 v5, v3, v4')
e(f's_mov_b32 m0, s{sWl}')
e('v_lshlrev_b32 v5, 4, v5')
e(f's_mov_b32 s{sX+3}, s{sW+3}')
e('v_lshl_add_u32 v6, v8, 2, v5')
LST_OFF = False
def lstamp(lane_expr):
    if LST and not (LST_OFF and lane_expr != 30):
        e('s_memrealtime s[92:93]')
        e('s_waitcnt lgkmcnt(0)')
        e(f's_mov_b32 s95, {lane_expr}')
        e('v_mov_b32 v31, s92')
        e('v_cmp_eq_u32 vcc, s95, v1')
        e('s_nop 1')
        e('v_cndmask_b32 v30, v30, v31, vcc')
def dw(tap): e(f'buffer_load_dwordx4 v{vW[tap]}, s[{sW}:{sW+3}], s{sK} offen' + (f' offset:{tap*1024}' if tap else '') + ' lds')
def dx(i): e(f'buffer_load_dwordx4 v{vX[i]}, s[{sX}:{sX+3}], s{sT0} offen' + (f' offset:{i*1024}' if 0 < i < 4 else '') + f'{XNT} lds')
def ld_flag():
    e(f's_mov_b32 m0, s{sFl}')
    e('s_mov_b64 exec, 1')
    e(f'buffer_load_dword v{vOOB}, s[{sW}:{sW+3}], 0 offen lds')
    e('s_mov_b64 exec, -1')
    e(f's_add_u32 s{sFl}, s{sFl}, 16')
e('s_waitcnt lgkmcnt(0)')
if LST:
    e(f'v_mov_b32 v30, s{sStamp}')
    lstamp(2)
def par_load(lab):
    e(f's_cmp_lg_u32 s{sWave}, 3')
    e(f's_cbranch_scc1 {lab}')
    e(f's_lshl_b32 s{sT1}, s{sCt}, 7')
    e(f'v_lshl_add_u32 v{vP+4}, v1, 1, s{sT1}')
    if PF != 'front': e('s_waitcnt lgkmcnt(0)')
    for p in range(4):
        e(f'global_load_ushort v{vP+p}, v{vP+4}, s[{8+2*p}:{9+2*p}]')
    e(f'{lab}:')
if PF == 'front': par_load('L_lnop')
dw(0)
e(f's_lshl2_add_u32 s{sT1}, s{sB0}, s{sWave}')
e(f's_mulk_i32 s{sT1}, 1152')
if not NF0: e(f's_lshl_b32 s{sFl}, s{sWave}, 2')
dw(1)
e(f'v_add_u32 v{vX[0]}, s{sT1}, v6')
e(f's_mul_i32 s{sXl}, s{sWave}, 5120')
e(f'v_xor_b32 v{vX[1]}, 64, v{vX[0]}')
e(f's_lshl_b32 s{sT0}, s{sG0}, 7' if FIRST_IS_G else f's_mov_b32 s{sT0}, 0')
dw(2)
e(f's_mov_b32 m0, s{sXl}')
e(f'v_add_u32 v{vX[1]}, {8*4608-1024}, v{vX[1]}')
dx(0)
e(f'v_add_u32 v{vX[2]}, {20*4608-2048}, v{vX[0]}')
e(f's_lshr_b32 s{sT1}, s{sWave}, 1')
if not NF0: e(f's_add_u32 s{sFl}, s{sFl}, {FLAGL}')
dx(1)
e(f'v_add_u32 v{vX[3]}, {20*4608-2048}, v{vX[1]}')
e(f's_mul_i32 s{sT1}, s{sT1}, 10')
e(f's_add_u32 s{sT1}, s{sT1}, s{sT2}')
if not NF0: e(f'v_lshl_add_u32 v2, v1, 4, s{sFl}')
if not NF0: e(f'v_bfrev_b32 v{vOOB}, 2')
dx(2)
if not NF0: e(f'ds_write_b32 v2, v{vOOB}')
e(f's_lshl1_add_u32 s{sT1}, s{sT1}, s{sB0}')
e(f's_add_u32 s{sT1}, s{sT1}, 16')
e(f's_mulk_i32 s{sT1}, 4608')
e(f's_lshl_b32 s{sT3}, s{sT2}, 6')
dx(3)
e(f'v_xor_b32 v9, s{sT3}, v5')
e(f's_add_u32 m0, s{sXl}, 4096')
e(f'v_add3_u32 v{vX[4]}, v9, v8, s{sT1}')
dx(4)
if not NF0:
    e('s_waitcnt lgkmcnt(0)')
    ld_flag()
lstamp(4)
if FLIP:
    e(f's_mul_i32 s{sKf}, s{sF}, {32*ROW}')
    e(f's_lshl_b32 s{sKd}, s{sKf}, 1')
    e(f's_sub_u32 s{sKd}, {32*ROW}, s{sKd}')
KD = f's{sKd}' if FLIP else f'{32*ROW}'
e(f's_add_u32 m0, s{sWl}, 3072')
e(f's_add_u32 s{sK}, s{sK}, {KD}')
dw(0); dw(1); dw(2)
if not NF0: ld_flag()
if PF != 'front': e('s_load_dwordx8 s[8:15], s[0:1], 16')
lstamp(6)
if 'l0' in opt:
    for i, vm in enumerate((13, 12, 10, 8, 5, 1)):
        e(f's_waitcnt vmcnt({vm})')
        lstamp(8 + 2*i)
    LST_OFF = True
if not NF0: e('s_barrier')
if 'sched' not in opt:
    allo = list(orders)
    if CLS:
        allo += [[3*PERM[s//3] + s % 3 for s in o] for o in orders]
        e(f's_mul_i32 s{sC}, s{sC}, 3')
        e(f's_add_u32 s{sG}, s{sG}, s{sC}')
    ps = [pack(o[1:]) for o in allo]
    e(f's_mov_b32 s{sOrd}, {ps[0]}')
    for g in range(1, len(allo)):
        e(f's_cmp_eq_u32 s{sG}, {g}')
        e(f's_cselect_b32 s{sOrd}, {ps[g]}, s{sOrd}')
if PF == 'mid': par_load('L_lnop')
if 'sched' not in opt:
    e(f's_mov_b32 s{sIt}, 1')
    e(f's_mov_b32 s{sSl}, 0')
def advance():
    e(f's_add_u32 s{sSl}, s{sSl}, 1')
    e(f's_cmp_eq_u32 s{sSl}, 3')
    e(f's_cselect_b32 s{sSl}, 0, s{sSl}')
    e(f's_mov_b32 s{sDX}, {XSLOT}')
    e(f's_cselect_b32 s{sDX}, {(-2*XSLOT) & 0xffffffff}, s{sDX}')
    e(f's_mov_b32 s{sDW}, {WSLOT}')
    e(f's_cselect_b32 s{sDW}, {(-2*WSLOT) & 0xffffffff}, s{sDW}')
    e(f's_add_u32 s{sXl}, s{sXl}, s{sDX}')
    e(f's_add_u32 s{sWl}, s{sWl}, s{sDW}')
    e(f's_and_b32 s{sK}, s{sOrd}, 15')
    e(f's_lshl_b32 s{sT0}, s{sK}, 7')
    e(f's_mul_i32 s{sK}, s{sK}, {64*ROW}')
    if FLIP: e(f's_add_u32 s{sK}, s{sK}, s{sKf}')
    e(f's_lshr_b32 s{sOrd}, s{sOrd}, 4')
def issue_x():
    e(f's_mov_b32 m0, s{sXl}')
    e('s_nop 0')
    for i in range(4): dx(i)
    e(f's_add_u32 m0, s{sXl}, 4096')
    e('s_nop 0')
    dx(4)
def issue_w(ks):
    if ks:
        e(f's_add_u32 m0, s{sWl}, 3072')
        e(f's_add_u32 s{sK}, s{sK}, {KD}')
    else:
        e(f's_mov_b32 m0, s{sWl}')
        e('s_nop 0')
    for tap in range(3): dw(tap)
e('L_lloop:')
advance()
e(f's_mov_b32 m0, s{sXl}')
e(f's_cmp_lt_u32 s{sIt}, 3')
e('s_cbranch_scc1 L_lfree')
e('s_waitcnt vmcnt(11)')
e('s_barrier')
e('L_lfree:')
for i in range(4): dx(i)
e(f's_add_u32 m0, s{sXl}, 4096')
e(f's_add_u32 s{sIt}, s{sIt}, 1')
dx(4)
issue_w(0)
e(f's_cmp_lg_u32 s{sIt}, 2')
e('s_cbranch_scc1 L_lnb')
e('s_waitcnt vmcnt(8)')
e('s_barrier')
e('L_lnb:')
issue_w(1)
e(f's_cmp_lt_u32 s{sIt}, 9')
e('s_cbranch_scc1 L_lloop')
def par_compute():
    for p in range(4):
        e(f'v_lshlrev_b32 v{vP+p}, 16, v{vP+p}')
    e(f'v_add_f32 v{vP+1}, 0x3727c5ac, v{vP+1}')
    e(f'v_rsq_f32 v{vP+1}, v{vP+1}')
    e(f'v_mul_f32 v{vP+2}, 0xbfb8aa3b, v{vP+2}')
    e(f'v_mul_f32 v{vP+3}, 0xbfb8aa3b, v{vP+3}')
    e(f'v_mul_f32 v{vP+2}, v{vP+1}, v{vP+2}')
    e(f'v_fma_f32 v{vP+3}, -v{vP}, v{vP+2}, v{vP+3}')
    e('v_lshlrev_b32 v2, 2, v1')
    e(f'v_add_u32 v2, {PARM}, v2')
def par_write():
    e(f'ds_write_b32 v2, v{vP+2}')
    e(f'ds_write_b32 v2, v{vP+3} offset:256')
e('s_waitcnt vmcnt(11)')
e('s_barrier')
e(f's_cmp_lg_u32 s{sWave}, 3')
e('s_cbranch_scc1 L_lfin')
par_compute()
e('s_waitcnt vmcnt(0)')
par_write()
e('L_lfin:')
e('s_waitcnt vmcnt(0) lgkmcnt(0)')
e('s_barrier')
if LST:
    lstamp(30)
    e('s_load_dwordx2 s[50:51], s[0:1], 64')
    e(f's_lshl_b32 s3, s2, 3')
    e(f's_add_u32 s3, s3, s{sWave}')
    e(f's_mul_i32 s3, s3, {NST*8}')
    e('v_lshl_add_u32 v0, v1, 2, s3')
    e('v_and_b32 v2, 1, v1')
    e('v_cmp_eq_u32 vcc, 0, v2')
    e('s_nop 1')
    e('v_cndmask_b32 v30, 0, v30, vcc')
    e('s_waitcnt lgkmcnt(0)')
    e('s_mov_b64 exec, 0xffffffff')
    e('global_store_dword v0, v30, s[50:51]')
e('s_endpgm')

if 'help' in opt:
    HS = [int(c) for c in str(opt['help'])]
    e('L_help:')
    e(f's_cmp_ge_u32 s{sT1}, 32')
    e('s_cbranch_scc1 L_end')
    e(f's_sub_u32 s{sT1}, s{sT1}, s{sT0}')
    e(f's_and_b32 s{sT0}, s2, 7')
    e(f's_min_u32 s{sT0}, s{sT0}, 4')
    e(f's_lshl1_add_u32 s{sT1}, s{sT0}, s{sT1}')
    e(f's_lshr_b32 s{sWave}, s3, 6')
    e(f's_lshl3_add_u32 s{sT1}, s{sT1}, s{sWave}')
    e('v_and_b32 v1, 63, v0')
    e(f's_mov_b32 s{sX+2}, {X_BYTES}')
    e(f's_mov_b32 s{sX+3}, 0x20000')
    e(f's_movk_i32 s{sK}, 128')
    e(f'v_lshl_add_u32 v2, s{sT1}, 6, v1')
    e('v_mul_u32_u24 v2, 1152, v2')
    e(f's_cmp_lt_u32 s{sT1}, 64')
    e('s_waitcnt lgkmcnt(0)')
    e('s_cbranch_scc1 L_hgo')
    e(f's_sub_u32 s{sT1}, s{sT1}, 64')
    div_small(sT0, sT1, 9, 40)
    e(f's_mul_i32 s{sT2}, s{sT0}, {TAP//128 - 576}')
    e(f's_lshl_b32 s{sT1}, s{sT1}, 6')
    e(f's_add_u32 s{sT1}, s{sT1}, s{sT2}')
    e(f'v_add_u32 v2, s{sT1}, v1')
    e('v_lshlrev_b32 v2, 7, v2')
    e(f's_mov_b32 s{sX}, s{sW}')
    e(f's_mov_b32 s{sX+1}, s{sW+1}')
    e(f's_mov_b32 s{sX+2}, {W_BYTES}')
    e(f's_mov_b32 s{sK}, {64*ROW}')
    e('L_hgo:')
    for i, st in enumerate(HS):
        e(f's_mul_i32 s{sT0}, s{sK}, {st}')
        e(f'buffer_load_dword v{4+i}, v2, s[{sX}:{sX+3}], s{sT0} offen')
        if i + 1 < len(HS): e('s_barrier')
    e('s_waitcnt vmcnt(0)')
    e('s_endpgm')

e('L_consumer:')
e('s_load_dwordx2 s[28:29], s[0:1], 48')
if STAMP: e('s_load_dwordx2 s[50:51], s[0:1], 64')
e('s_setprio 3')
vXa = [2, 3]; vXm = [[4, 5], [252, 253], [6, 7]]
vWa = [8, 9]
vOut = 10; vOutM = 11
vPar = 12
ACC = 16
WB = [56, 104]; XB = 152
SC2 = 212; SH2 = 220
T = 228; P = 236; Qs = [240, 244]
cFl, cPoll, cSw, cSr = 248, 249, 250, 251
def acc(tile, t): return ACC + (tile*2 + t)*4
def fx(h, i): return XB + (h*7 + i)*4
def fw(buf, h, k, t): return WB[buf] + ((h*3 + k)*2 + t)*4
A0, A1, A2 = T, T+1, T+2
e('v_and_b32 v13, 15, v1')
e('v_lshrrev_b32 v14, 4, v1')
for r in range(4):
    e(f'v_mov_b32 v{ACC+r}, 0')
e('v_min_u32 v15, 2, v14')
e(f'v_mul_u32_u24 v15, {XSLOT}, v15')
e('v_lshl_add_u32 v15, v13, 4, v15')
e(f'ds_write_b128 v15, v[{ACC}:{ACC+3}] offset:{XBASE+20480}')
e(f's_sub_u32 s{sWave}, s{sWave}, 4')
e(f's_lshr_b32 s{sT0}, s{sWave}, 1')
e(f's_and_b32 s{sT1}, s{sWave}, 1')
if not NF0:
    e('v_and_b32 v15, 3, v1')
    e('v_lshlrev_b32 v15, 2, v15')
    e(f'v_add_u32 v{cFl}, {FLAGL}, v15')
GX = 14
if FLIP:
    GX = A2 + 1
    e(f's_lshl_b32 s{sIt}, s{sF}, 2')
    e(f'v_xor_b32 v{GX}, s{sIt}, v14')
e(f's_lshl_b32 s{sT3}, s{sT0}, 11')
e('v_lshrrev_b32 v15, 1, v13')
e(f'v_xor_b32 v15, v15, v{GX}')
e('v_lshlrev_b32 v15, 4, v15')
e('v_lshl_add_u32 v15, v13, 7, v15')
e(f'v_add_u32 v{vXa[0]}, s{sT3}, v15')
e(f'v_xor_b32 v{vXa[1]}, 64, v{vXa[0]}')
e(f's_mul_i32 s{sIt}, s{sT0}, 10240')
e(f's_add_u32 s{sIt}, s{sIt}, 4096')
e(f'v_lshrrev_b32 v{A2}, 3, v13')
e(f'v_lshl_add_u32 v{A2}, v{A2}, 12, s{sIt}')
e(f'v_add_u32 v{vXm[1][0]}, v{A2}, v15')
e(f'v_xor_b32 v{vXm[1][1]}, 64, v{vXm[1][0]}')
for k in (0, 2):
    regs = vXm[k]
    e(f'v_add_u32 v15, {1 if k==2 else 3}, v13')
    e(f'v_bfi_b32 v15, 3, v15, v13')
    e(f'v_lshrrev_b32 v{A0}, 1, v15')
    e(f'v_xor_b32 v{A0}, v{A0}, v{GX}')
    e(f'v_lshlrev_b32 v{A0}, 4, v{A0}')
    e(f'v_lshl_add_u32 v{A0}, v15, 7, v{A0}')
    e(f'v_add_u32 v{A1}, v{A2}, v{A0}')
    e(f'v_and_b32 v{A0}, 0xff, v{A0}')
    e('v_and_b32 v15, 3, v13')
    e(f'v_cmp_eq_u32 vcc, {0 if k==0 else 3}, v15')
    e(f'v_add_u32 v{A0}, {XBASE+20480}, v{A0}')
    e('s_nop 0')
    e(f'v_cndmask_b32 v{regs[0]}, v{A1}, v{A0}, vcc')
    e(f'v_xor_b32 v{regs[1]}, 64, v{regs[0]}')
e('v_lshrrev_b32 v15, 2, v13')
e(f'v_mul_u32_u24 v{A0}, 6144, v14')
e(f'v_lshl_add_u32 v{A0}, v15, 7, v{A0}')
e('v_lshrrev_b32 v15, 1, v15')
e(f'v_and_b32 v{A1}, 1, v14')
e(f'v_lshl_add_u32 v15, v{A1}, 1, v15')
e(f's_lshl_b32 s{sIt}, s{sT1}, 1')
e(f'v_xor_b32 v15, s{sIt}, v15')
e(f'v_lshl_add_u32 v{A0}, v15, 5, v{A0}')
e('v_and_b32 v15, 3, v13')
e(f'v_lshl_add_u32 v{A0}, v15, 3, v{A0}')
e(f'v_add_u32 v{vWa[0]}, {WBASE}, v{A0}')
e(f'v_xor_b32 v{vWa[1]}, 32, v{vWa[0]}')
assert WBASE % 256 == 0
if not NF0:
    e('s_waitcnt lgkmcnt(0)')
    e('s_barrier')
sNL = 46
deferred = [
 f's_mov_b32 s{sOut+2}, s{sNv}', f's_mov_b32 s{sOut+3}, 0x20000',
 f's_lshl_b32 s{sIt}, s{sT1}, 7', f's_add_u32 s{sIt}, s{sIt}, {PARM}',
 f'v_lshl_add_u32 v{vPar}, v14, 4, s{sIt}',
 f's_lshl_b32 s{sIt}, s{sWave}, 10', f's_add_u32 s{sIt}, s{sIt}, {STG}',
 'v_and_b32 v15, 1, v14', 'v_lshlrev_b32 v15, 1, v15', f'v_lshrrev_b32 v{A0}, 1, v14', f'v_or_b32 v15, v15, v{A0}',
 f'v_bfe_u32 v{A0}, v13, 1, 2', f'v_xor_b32 v15, v15, v{A0}', 'v_lshlrev_b32 v15, 4, v15', 'v_lshl_add_u32 v15, v13, 6, v15',
 f'v_add_u32 v{cSw}, s{sIt}, v15', f'v_lshl_add_u32 v{cSr}, v1, 4, s{sIt}',
 f's_lshl_b32 s{sT2}, s{sCt}, 7', f's_lshl_b32 s{sT3}, s{sT1}, 6', f's_add_u32 s{sT2}, s{sT2}, s{sT3}',
 f's_mul_i32 s{sIt}, s{sT0}, 20', f's_add_u32 s{sIt}, s{sIt}, s{sB0}', f's_mulk_i32 s{sIt}, 4608', f's_add_u32 s{sIt}, s{sIt}, s{sT2}',
 'v_bfe_u32 v15, v1, 3, 2', f'v_and_b32 v{A0}, 3, v1', f'v_xor_b32 v15, v15, v{A0}', f'v_lshl_add_u32 v15, v15, 4, s{sIt}',
 f'v_lshrrev_b32 v{A0}, 2, v1', f'v_mul_u32_u24 v{vOutM}, 1152, v{A0}', f'v_lshl_add_u32 v{vOut}, v{vOutM}, 2, v15',
 f'v_add_u32 v{vOutM}, v{vOutM}, v15', f'v_add_u32 v{vOutM}, {16*4608}, v{vOutM}',
 f's_mov_b32 s{sNL}, 0xbfb8aa3b', f's_mov_b32 s{sNL+1}, 0xbfb8aa3b']

cSw1 = 254
if FULL:
    deferred = [
     f's_mov_b32 s{sOut+2}, s{sNv}', f's_mov_b32 s{sOut+3}, 0x20000',
     f's_lshl_b32 s{sIt}, s{sT1}, 7', f's_add_u32 s{sIt}, s{sIt}, {PARM}',
     f'v_lshl_add_u32 v{vPar}, v14, 4, s{sIt}',
     f's_lshl_b32 s{sIt}, s{sT0}, 11', f's_add_u32 s{sIt}, s{sIt}, {STG}', f's_lshl_b32 s{sT2}, s{sT1}, 2',
     'v_lshrrev_b32 v15, 1, v14', f'v_or_b32 v15, s{sT2}, v15', f'v_and_b32 v{A0}, 7, v13', f'v_xor_b32 v15, v15, v{A0}',
     'v_lshlrev_b32 v15, 4, v15', 'v_lshl_add_u32 v15, v13, 7, v15', f'v_and_b32 v{A0}, 1, v14', f'v_lshl_add_u32 v15, v{A0}, 3, v15',
     f'v_add_u32 v{cSw}, s{sIt}, v15', f'v_xor_b32 v{cSw1}, 32, v{cSw}',
     f's_lshl_b32 s{sT2}, s{sT1}, 10', f's_add_u32 s{sIt}, s{sIt}, s{sT2}', f'v_lshl_add_u32 v{cSr}, v1, 4, s{sIt}',
     f's_lshl_b32 s{sT2}, s{sCt}, 7',
     f's_mul_i32 s{sIt}, s{sT0}, 20', f's_add_u32 s{sIt}, s{sIt}, s{sB0}', f's_mulk_i32 s{sIt}, 4608', f's_add_u32 s{sIt}, s{sIt}, s{sT2}',
     f'v_lshrrev_b32 v{A0}, 3, v1', 'v_and_b32 v15, 7, v1', f'v_xor_b32 v15, v15, v{A0}', f'v_lshl_add_u32 v15, v15, 4, s{sIt}',
     f's_lshl_b32 s{sT2}, s{sT1}, 3', f'v_add_u32 v{A0}, s{sT2}, v{A0}',
     f'v_mul_u32_u24 v{vOutM}, 1152, v{A0}', f'v_lshl_add_u32 v{vOut}, v{vOutM}, 2, v15',
     f'v_add_u32 v{vOutM}, v{vOutM}, v15', f'v_add_u32 v{vOutM}, {16*4608}, v{vOutM}',
     f's_mov_b32 s{sNL}, 0xbfb8aa3b', f's_mov_b32 s{sNL+1}, 0xbfb8aa3b']
    assert STG % 256 == 0

def rx(n, h, i):
    xo = XBASE + (n % 3)*XSLOT
    d = fx(h, i)
    if i < 4: return (f'ds_read_b128 v[{d}:{d+3}], v{vXa[h]} offset:{xo + i*5120}', d)
    return (f'ds_read_b128 v[{d}:{d+3}], v{vXm[i-4][h]} offset:{xo}', d)
def rw(n, h, k, t):
    d = fw(n & 1, h, k, t)
    off = (n % 3)*WSLOT + (h*3+k)*1024
    return [(f'ds_read_b64_tr_b16 v[{d+2*hp}:{d+2*hp+1}], v{vWa[t]} offset:{off + hp*512}', d) for hp in range(2)]
touched = set()
def tile_mfmas(n, tile):
    r = []
    for t in range(2):
        for h in range(2):
            for k in range(3):
                i = tile + k - 1 if tile < 4 else 4 + k
                if tile < 4 and not 0 <= i <= 3: continue
                r.append((acc(tile, t), fw(n & 1, h, k, t), fx(h, i)))
    return r
lds_q = []
mf_count = 0
AGE = int(opt.get('age', 6))
def lds(op):
    e(op[0]); lds_q.append((op[1], mf_count))
def wait_for(regs):
    idx = max((i for i, (d, _) in enumerate(lds_q) if d in regs), default=-1)
    if idx < 0: return False
    while idx + 1 < len(lds_q) and mf_count - lds_q[idx+1][1] >= AGE: idx += 1
    n = min(len(lds_q) - 1 - idx, 14)
    e(f's_waitcnt lgkmcnt({n})')
    del lds_q[:len(lds_q) - n]
    return True
def wait_all():
    e('s_waitcnt lgkmcnt(0)'); lds_q.clear()
def mfma(m):
    global mf_count
    a, A, B = m
    w = wait_for({A, B})
    c = f'v[{a}:{a+3}]' if a in touched else '0'
    touched.add(a)
    e(f'v_mfma_f32_16x16x32_bf16 v[{a}:{a+3}], v[{A}:{A+3}], v[{B}:{B+3}], {c}')
    mf_count += 1
    return w
def w_order(n):
    return [rw(n, h, k, t) for (t, h, k) in [(0,0,1),(0,0,2),(0,1,1),(0,1,2),(1,0,1),(1,0,2),(1,1,1),(1,1,2),(0,0,0),(0,1,0),(1,0,0),(1,1,0)]]
spin_sites = []
if STAMP:
    e(f's_mov_b32 s{sStamp+16}, 0')
    e(f's_mov_b32 s{sStamp+17}, 0')
NPAD = 0 if 'nopad' in opt else int(opt.get('npad', 2))
if NPAD:
    e('s_mov_b64 exec, 0')
    for p in range(NPAD):
        e(f's_branch L_pad{p}')
        e(f'L_ret{p}:')
    e('s_mov_b64 exec, -1')
stamp(1)
e('L_cpoll0:')
e('s_waitcnt lgkmcnt(0)')
e('s_barrier')
stamp(2)
cstamp(5)
LATE = 'late' in opt
XT = 'xt' in opt
wo = w_order(0)
init = wo[0] + [rx(0,0,0)] + wo[1] + [rx(0,0,1)] + wo[2] + [rx(0,1,0)] + wo[3] + [rx(0,1,1)]
pre0 = wo[4:9] + [[rx(0,0,2)]] + [wo[9]] + [[rx(0,1,2)]] + wo[10:] + [[rx(0,0,3)], [rx(0,1,3)]]
NI = int(opt.get('ni', 2))
for op in init + [x for g in pre0[:NI] for x in g]: lds(op)
pre0 = pre0[NI:]
BG = [int(v) for v in opt.get('bg', '28,24,24,24,24,24,24,18' if LATE else '28,18,18,18,18,18,18,18').split(',')]
par = [(f'ds_read_b128 v[{SC2}:{SC2+3}], v{vPar}', SC2), (f'ds_read_b128 v[{SC2+4}:{SC2+7}], v{vPar} offset:64', SC2),
       (f'ds_read_b128 v[{SH2}:{SH2+3}], v{vPar} offset:256', SC2), (f'ds_read_b128 v[{SH2+4}:{SH2+7}], v{vPar} offset:320', SC2)]
def own_late(n):
    return [[x] for g in w_order(n)[10:] for x in g] + [[rx(n,0,3)], [rx(n,1,3)]]
carry = []
for n in range(8):
    last = XT and n == 7
    ms = [m for tl in range(4 if last else 5) for m in tile_mfmas(n, tl)]
    own = (pre0 if n == 0 else (own_late(n) if LATE else [])) + [[rx(n, h, 4+k)] for h in range(2) for k in range(3)]
    wq = w_order(n+1)
    xq = [(21, rx(n+1,0,0)), (21, rx(n+1,1,0)), (33, rx(n+1,0,1)), (33, rx(n+1,1,1)), (41, rx(n+1,0,2)), (41, rx(n+1,1,2))]
    if LATE: wq = wq[:10]
    else: xq += [(41, rx(n+1,0,3)), (41, rx(n+1,1,3))]
    if n == 7 and not last: xq += [(41, p) for p in par]
    bg = BG[n]
    LASTW = (48 if LATE else 46) if not last else 36
    if last:
        carry = [x for g in w_order(8)[8:] for x in g]; wq = wq[:8]
        xq = xq[:4]
    wflat = [x for g in wq for x in g]
    for i, m in enumerate(ms):
        mfma(m)
        if own:
            for x in own.pop(0): lds(x)
        elif i == bg or (i > bg and bg >= 0):
            wait_all(); e('s_barrier'); bg = -1
            if 'pst' in opt and n < 7: e(f's_memrealtime s[{84+2*n}:{85+2*n}]' if n < 6 else 's_memrealtime s[4:5]')
        elif bg < 0 and xq and i >= xq[0][0] and not (xq[0][0] == 41 and wflat):
            lds(xq.pop(0)[1])
        elif bg < 0 and wflat:
            lds(wflat.pop(0))
            gaps_left = LASTW - i - sum(1 for g, _ in xq if g < 41)
            if wflat and len(wflat) > gaps_left: lds(wflat.pop(0))
        elif last and bg < 0 and par:
            lds(par.pop(0))
        elif deferred:
            e(deferred.pop(0))
    for g, x in xq: lds(x)
    assert not wflat and bg < 0 and not own
assert not deferred
stamp(3)
cstamp(6)
XM8 = [rx(8, h, 4+k) for h in range(2) for k in range(3)]
TO = [int(c) for c in opt.get('to', '03124')]
if XT:
    own = [[p] for p in par] + [[rx(8,0,2)], [rx(8,1,2)], [rx(8,0,3)], [rx(8,1,3)]] + [carry[i:i+2] for i in range(0, len(carry), 2)]
    while len(own) > 8: own = [own[0] + own[1]] + own[2:]
    rest = tile_mfmas(7, 4) + [('LDS', x) for x in XM8[:1]]
    blk = [m for tl in TO[1:] for m in tile_mfmas(8, tl)]
    for i, m in enumerate(blk):
        rest.append(m)
        if 1 + i < 6: rest.append(('LDS', XM8[1+i]))
    base = 12
else:
    own = ([g for g in [[x for gg in own_late(8)[:4] for x in gg][i:i+2] for i in (0, 2)]] + own_late(8)[4:] if LATE else []) + [[x] for x in XM8]
    if len(own) > 8: own = own[:6] + [own[6] + own[7], own[8] + own[9]]
    rest = [m for tl in TO[1:] for m in tile_mfmas(8, tl)]
    base = 0
for m in tile_mfmas(8, 0):
    mfma(m)
    if own:
        for x in own.pop(0): lds(x)
assert not own
done_at = {}
cnt = base
for tl in TO[1:]:
    cnt += len(tile_mfmas(8, tl)); done_at[tl] = cnt
emitted = 0
since = {0: 0}
def em(m):
    global emitted
    mfma(m); emitted += 1
    while rest and rest[0][0] == 'LDS': lds(rest.pop(0)[1])
    for k in since: since[k] += 1
    for tl, at in done_at.items():
        if at == emitted: since[tl] = 0
def ev(x):
    if x == 's_waitcnt lgkmcnt(0)': wait_all()
    elif x.startswith('ds_'): lds((x, None))
    else: e(x)
    for k in since: since[k] += 1
def need(tl):
    while tl not in since: em(rest.pop(0))
    if tl == 0 and PK != 2:
        while since[0] < 3: em(rest.pop(0))
        if not wait_for({SC2}): e('s_nop 0')
        return
    while since[tl] < 8:
        if rest: em(rest.pop(0))
        else:
            e(f's_nop {8 - since[tl] - 1}'); since[tl] = 8
    if tl == 0: wait_for({SC2})
def cost(ins):
    if 'exp' in ins or 'rcp' in ins: return 8
    if 'v_pk' in ins or 'v_fma' in ins: return 5
    return 4
def tile_ops(tile, Q):
    a0 = acc(tile, 0)
    def two(pkf, sf):
        return [('pk', pkf(i), [sf(i), sf(i+1)]) for i in range(0, 8, 2)]
    ops = []
    ops += two(lambda i: f'v_pk_fma_f32 v[{a0+i}:{a0+i+1}], v[{a0+i}:{a0+i+1}], v[{SC2+i}:{SC2+i+1}], v[{SH2+i}:{SH2+i+1}]',
               lambda i: f'v_fma_f32 v{a0+i}, v{a0+i}, v{SC2+i}, v{SH2+i}')
    ops += [('s', f'v_exp_f32 v{T+i}, v{a0+i}') for i in range(8)]
    ops += two(lambda i: f'v_pk_fma_f32 v[{T+i}:{T+i+1}], v[{T+i}:{T+i+1}], s[{sNL}:{sNL+1}], s[{sNL}:{sNL+1}]',
               lambda i: f'v_fma_f32 v{T+i}, v{T+i}, s{sNL}, s{sNL}')
    ops += [('s', f'v_rcp_f32 v{T+i}, v{T+i}') for i in range(8)]
    ops += two(lambda i: f'v_pk_mul_f32 v[{a0+i}:{a0+i+1}], v[{a0+i}:{a0+i+1}], v[{T+i}:{T+i+1}]',
               lambda i: f'v_mul_f32 v{a0+i}, v{a0+i}, v{T+i}')
    ops += [('s', f'v_cvt_pk_bf16_f32 v{P+i//2}, v{a0+i}, v{a0+i+1}') for i in range(0, 8, 2)]
    if FULL:
        cv = ops[-4:]
        ops = ops[:-4] + [cv[0], cv[1], cv[2], ('s', f'ds_write_b64 v{cSw}, v[{P}:{P+1}] offset:{tile*4096}'), cv[3],
                          ('s', f'ds_write_b64 v{cSw1}, v[{P+2}:{P+3}] offset:{tile*4096}')]
    else:
        ops += [('s', 's_nop 1'), ('s', f'v_permlane16_swap_b32 v{P}, v{P+2}'), ('s', f'v_permlane16_swap_b32 v{P+1}, v{P+3}'),
                ('s', f'ds_write_b128 v{cSw}, v[{P}:{P+3}]'), ('s', f'ds_read_b128 v[{Q}:{Q+3}], v{cSr}')]
    return ops
def tile_store(tile, Q):
    if tile < 4:
        return f'buffer_store_dwordx4 v[{Q}:{Q+3}], v{vOut}, s[{sOut}:{sOut+3}], 0 offen offset:{tile*1152} {STF}'
    return f'buffer_store_dwordx4 v[{Q}:{Q+3}], v{vOutM}, s[{sOut}:{sOut+3}], 0 offen {STL}'
pend = None
budget = 0
GAPV = int(opt.get('gapv', 8))
for n, tl in enumerate(TO):
    Q = Qs[n % 2]
    need(tl)
    if 't2st' in opt: e(f's_memtime s[{84+2*n}:{85+2*n}]')
    for i, op in enumerate(tile_ops(tl, Q)):
        if op[0] == 'pk':
            ins = [op[1]] if (PK == 2 or (PK == 1 and not rest)) else op[2]
        else:
            ins = [op[1]]
        for x in ins:
            ev(x); budget += cost(x)
            if rest and budget >= GAPV:
                em(rest.pop(0)); budget = 0
        if FULL:
            if pend is not None and i == 8:
                ev('s_waitcnt lgkmcnt(0)'); ev('s_barrier')
                ev(f'ds_read_b128 v[{pend[1]}:{pend[1]+3}], v{cSr} offset:{pend[0]*4096}')
            if pend is not None and i == 20:
                ev('s_waitcnt lgkmcnt(0)')
                ev(tile_store(*pend)); pend = None
        elif pend is not None and i == 12:
            ev('s_waitcnt lgkmcnt(0)')
            ev(tile_store(*pend)); pend = None
    pend = (tl, Q)
if 't2st' in opt: e('s_memtime s[94:95]')
if FULL:
    e('s_waitcnt lgkmcnt(0)'); e('s_barrier')
    e(f'ds_read_b128 v[{pend[1]}:{pend[1]+3}], v{cSr} offset:{pend[0]*4096}')
e('s_waitcnt lgkmcnt(0)')
e(tile_store(*pend))
stamp(4)
cstamp(7)
if 'pst' in opt or 't2st' in opt:
    e('s_waitcnt lgkmcnt(0)')
    if 't2st' in opt: e(f's_mov_b32 s4, s{sStamp+14}')
    e(f's_mov_b32 s{sStamp+18}, s84'); e(f's_mov_b32 s{sStamp+19}, s86')
    e(f's_mov_b32 s{sStamp+20}, s88'); e(f's_mov_b32 s{sStamp+21}, s90')
    e(f's_mov_b32 s{sStamp+22}, s92'); e(f's_mov_b32 s{sStamp+23}, s94')
    e(f's_mov_b32 s{sStamp+28}, s4'); e(f's_mov_b32 s{sStamp+29}, s4')
stamp_flush([0,1,2,3,4,5,6,7,8] + ([9,10,11,14] if ('pst' in opt or 't2st' in opt) else []))
e('s_endpgm')
for name, fidx in spin_sites:
    e(f'L_cspin{name}:')
    if STAMP: e(f's_add_u32 s{sStamp+16}, s{sStamp+16}, 1')
    e(poll(fidx))
    e('s_waitcnt lgkmcnt(0)')
    e(f'v_cmp_ne_u32 vcc, 0, v{cPoll}')
    e(f's_cbranch_vccnz L_cspin{name}')
    e(f's_branch L_cback{name}')
e('L_end:')
e('s_endpgm')

def render(lines):
    body = '\n'.join(lines)
    return HEADER + f'''; Override launch geometry by editing the next line (default: block=256,
; grid=ceil(out_elems/256), lds=0). Harness parses it; keep it on one line.
; @launch grid=({NWG},1,1) block=(512,1,1) lds={LDS_BYTES}
.amdgcn_target "amdgcn-amd-amdhsa--gfx950"
.text
.globl standalone__batchnorm__sampling_kernel
{'' if 'noal' in opt else '.p2align 12'}
.p2align 8
.type standalone__batchnorm__sampling_kernel,@function
standalone__batchnorm__sampling_kernel:
{body}
.section .rodata,"a"
.p2align 6
.amdhsa_kernel standalone__batchnorm__sampling_kernel
  .amdhsa_next_free_vgpr 256
  .amdhsa_next_free_sgpr 96
  .amdhsa_accum_offset 256
  .amdhsa_group_segment_fixed_size 0
  .amdhsa_kernarg_size 72
  .amdhsa_user_sgpr_count 2
  .amdhsa_user_sgpr_kernarg_segment_ptr 1
  .amdhsa_system_sgpr_workgroup_id_x 1
.end_amdhsa_kernel
'''
import subprocess, re, os
def offsets(lines):
    open('_g.s', 'w').write(render(lines))
    subprocess.run(['clang', '-x', 'assembler', '-target', 'amdgcn-amd-amdhsa', '-mcpu=gfx950', '-c', '_g.s', '-o', '_g.o'], check=True)
    d = subprocess.run(['llvm-objdump', '-d', '--mcpu=gfx950', '_g.o'], capture_output=True, text=True).stdout
    offs = [int(m.group(1), 16) for m in re.finditer(r'// ([0-9A-F]{12}):', d)]
    idx = [i for i, l in enumerate(lines) if l.startswith('    ')]
    assert len(offs) == len(idx), (len(offs), len(idx))
    return dict(zip(idx, offs))
if NPAD:
    KSTART = 0x300
    lines = out
    i0 = lines.index('L_cpoll0:')
    for p in range(NPAD):
        tmp = lines + [f'L_pad{q}:' for q in range(p, NPAD)] + ['    s_endpgm']
        offs = offsets(tmp)
        first = (offs[i0+1] + KSTART) // 4096
        bnd = 4096*(first + p + 1) - KSTART
        i = min(i for i, o in offs.items() if o >= bnd)
        lines = lines[:i] + [f'L_pad{p}:', f'    s_cbranch_execz L_ret{p}'] + lines[i:]
    out = lines
open(dst, 'w').write(render(out))
```

```python
import sys
opt = {}
dst = 'standalone__batchnorm__sampling.s'
for a in sys.argv[1:]:
    if a.startswith('--'):
        k, _, v = a[2:].partition('=')
        opt[k] = v if v else True
    else:
        dst = a
STAMP = 'stamp' in opt
AMP = None
if 'amp' in opt:
    AMP = tuple(int(v) for v in opt['amp'].split(',')); STAMP = True
MAP = opt.get('map', 'p4')
ORDER = opt.get('order', '013246578_120435768_201354687')
XNT = ' nt' if 'xnt' in opt else ''
STF = opt.get('stf', 'sc1').replace('+', ' ')
STL = opt.get('stl', STF).replace('+', ' ').replace('none', '')
PK = int(opt.get('pk', 1))
FLIP = MAP in ('p4', 'p5') and 'noflip' not in opt
LST = 'lst' in opt
NF0 = True
PERM = [int(c) for c in opt.get('perm', '012')]
CLS = PERM != [0, 1, 2]
sC = 49
PF = opt.get('ppos', 'mid')

out = []
def e(s=''):
    if 'nodma' in opt and s.startswith('buffer_load_dwordx4') and s.endswith('lds'): return
    out.append('    ' + s if s and not s.endswith(':') else s)

HEADER = open('standalone__batchnorm__sampling.s.ref').read().split('; Override launch')[0]

WSLOT = 24576
XSLOT = 20480 + 256
XBASE = 0
WBASE = XSLOT * 3
FLAGL = WBASE + WSLOT * 3
PARM = FLAGL + 1024
STG = PARM + 512
FULL = 'full' in opt
LDS_BYTES = STG + (20480 if FULL else 4096)
assert LDS_BYTES <= 163840
X_BYTES = 1024*4*576*2
W_BYTES = 3*576*576*2
TAP = 576*576*2
ROW = 1152

sX, sW, sOut = 20, 24, 28
sWave, sQ, sCt, sB0 = 32, 33, 34, 35
sT0, sT1, sT2, sT3 = 36, 37, 38, 39
sXl, sF, sWl, sK = 40, 41, 42, 43
sIt, sDX, sDW = 44, 45, 46
sSl, sFl = 47, 48
sOrd, sG, sKd, sKf = 16, 17, 18, 19
sNv = sX + 2
sStamp = 52
NST = 16
def stamp(i):
    if STAMP: e(f's_memrealtime s[{sStamp+2*i}:{sStamp+2*i+1}]')
def cstamp(i):
    if STAMP: e(f's_memtime s[{sStamp+2*i}:{sStamp+2*i+1}]')
def stamp_flush(used):
    if not STAMP: return
    e('s_waitcnt vmcnt(0) lgkmcnt(0)')
    stamp(NST-1)
    e(f's_memtime s[{sStamp+26}:{sStamp+27}]')
    e('s_waitcnt lgkmcnt(0)')
    if AMP is not None:
        e(f's_sub_u32 s3, s{sStamp+2*AMP[1]}, s{sStamp+2*AMP[0]}')
        e(f's_mul_i32 s3, s3, {AMP[3] if len(AMP) > 3 else 20}')
        e(f's_add_u32 s3, s3, s{sStamp+2*(NST-1)}')
        e('L_amp:')
        e('s_memrealtime s[4:5]')
        e('s_waitcnt lgkmcnt(0)')
        e('s_sub_u32 s6, s4, s3')
        e('s_cmp_lt_i32 s6, 0')
        e('s_cbranch_scc1 L_amp')
        return
    e(f's_lshl_b32 s3, s2, 3')
    e(f's_add_u32 s3, s3, s{sWave}')
    e('s_add_u32 s3, s3, 4')
    e(f's_mul_i32 s3, s3, {NST*8}')
    e('v_mov_b32 v0, s3')
    e('s_mov_b64 exec, 1')
    for i in used + [12, 13, NST-1]:
        e(f'v_mov_b32 v2, s{sStamp+2*i}')
        e(f'v_mov_b32 v3, s{sStamp+2*i+1}')
        e(f'global_store_dwordx2 v0, v[2:3], s[50:51] offset:{8*i}')
        e('s_nop 1')
def div_small(dstr, src_, d, maxv):
    for sh in range(4, 16):
        m = -(-(1 << sh) // d)
        if m <= 64 and all((t*m) >> sh == t // d for t in range(maxv+1)):
            e(f's_mul_i32 s{dstr}, s{src_}, {m}')
            e(f's_lshr_b32 s{dstr}, s{dstr}, {sh}')
            return
    assert 0
def pack(order): return sum(s << (4*i) for i, s in enumerate(order))
orders = [[int(ch) for ch in o] for o in ORDER.split('_')]
for g, o in enumerate(orders): assert sorted(o) == list(range(9)), o
assert len(orders) == 3
FIRST_IS_G = all(o[0] == g for g, o in enumerate(orders))
FIRST_IS_0 = all(o[0] == 0 for o in orders)
assert FIRST_IS_G or FIRST_IS_0

e(f's_load_dwordx2 s[{sW}:{sW+1}], s[0:1], 8')
e(f's_load_dwordx2 s[{sX}:{sX+1}], s[0:1], 0')
if PF == 'front': e('s_load_dwordx8 s[8:15], s[0:1], 16')
if STAMP:
    stamp(0)
    e(f's_memtime s[{sStamp+24}:{sStamp+25}]')
e(f's_lshr_b32 s{sT1}, s2, 3')
if 'nocpf' not in opt:
    e('s_getpc_b64 s[30:31]')
    e('L_pc:')
    e('v_and_b32 v2, 0x180, v0')
    e(f'v_lshl_add_u32 v2, s{sT1}, 9, v2')
    e('v_min_u32 v2, L_end-L_pc, v2')
    e('global_load_dword v255, v2, s[30:31]')
e('v_readfirstlane_b32 s3, v0')
e(f's_and_b32 s{sT0}, s2, 7')
if MAP == 'p3':
    NWG = 240
    e(f's_mul_i32 s{sT2}, s{sT0}, 27')
    e(f's_mul_i32 s{sT3}, s{sT0}, 3')
    e(f's_addk_i32 s{sT3}, {216-27}')
    e(f's_cmp_ge_u32 s{sT1}, 27')
    e(f's_cselect_b32 s{sT2}, s{sT3}, s{sT2}')
    e(f's_add_u32 s{sT2}, s{sT2}, s{sT1}')
    e(f's_cmp_ge_u32 s{sT1}, 30')
    e(f's_cselect_b32 s{sT2}, -1, s{sT2}')
    e(f's_cmpk_ge_u32 s{sT2}, 234')
    e('s_cbranch_scc1 L_end')
    div_small(sQ, sT2, 9, 233)
    e(f's_mul_i32 s{sT0}, s{sQ}, 9')
    e(f's_sub_u32 s{sCt}, s{sT2}, s{sT0}')
    e(f's_mul_i32 s{sB0}, s{sQ}, 40')
    e(f's_mov_b32 s{sNv}, {X_BYTES}')
elif MAP == 'p5':
    NWG = 256
    nL, nR = (int(v) for v in opt.get('n', '39,37').split(','))
    nBL = -(-(1024 - 24*nL) // 3); nBR = -(-(1024 - 24*nR) // 4)
    assert max(nL, nR, nBL, nBR) <= 40
    def P(M, ncol, c0, n, lim):
        assert all((j*M) >> 8 == j // ncol for j in range(lim))
        return M | ncol << 8 | c0 << 12 | n << 16 | lim << 24
    e(f's_mul_i32 s{sB0}, s{sT0}, {6*nL}')
    e(f's_mul_i32 s{sT2}, s{sT0}, {8*nR}')
    e(f's_sub_u32 s{sT2}, s{sT2}, {32*nR}')
    e(f's_cmp_lt_u32 s{sT0}, 4')
    e(f's_cselect_b32 s{sB0}, s{sB0}, s{sT2}')
    e(f's_mov_b32 s{sT2}, {P(64, 4, 5, nR, 32)}')
    e(f's_cselect_b32 s{sT2}, {P(52, 5, 0, nL, 30)}, s{sT2}')
    e(f's_cmp_lg_u32 s{sT0}, 7')
    e('s_cbranch_scc1 L_mp')
    e(f's_sub_u32 s{sT3}, s{sT1}, 15')
    e(f's_cselect_b32 s{sT1}, s{sT1}, s{sT3}')
    e(f's_cselect_b32 s{sB0}, {24*nL}, s{sB0}')
    e(f's_mov_b32 s{sT2}, {P(64, 4, 5, nBR, 16)}')
    e(f's_cselect_b32 s{sT2}, {P(52, 5, 0, nBL, 15)}, s{sT2}')
    e('L_mp:')
    e(f's_lshr_b32 s{sT0}, s{sT2}, 24')
    e(f's_cmp_ge_u32 s{sT1}, s{sT0}')
    e('s_cbranch_scc1 L_end')
    e(f's_and_b32 s{sQ}, s{sT2}, 0xff')
    e(f's_mul_i32 s{sQ}, s{sQ}, s{sT1}')
    e(f's_lshr_b32 s{sQ}, s{sQ}, 8')
    e(f's_bfe_u32 s{sT0}, s{sT2}, 0x40008')
    e(f's_mul_i32 s{sT0}, s{sT0}, s{sQ}')
    e(f's_sub_u32 s{sCt}, s{sT1}, s{sT0}')
    e(f's_bfe_u32 s{sT0}, s{sT2}, 0x4000c')
    e(f's_add_u32 s{sCt}, s{sCt}, s{sT0}')
    e(f's_bfe_u32 s{sT3}, s{sT2}, 0x80010')
    e(f's_mul_i32 s{sT0}, s{sQ}, s{sT3}')
    e(f's_add_u32 s{sB0}, s{sB0}, s{sT0}')
    e(f's_add_u32 s{sNv}, s{sB0}, s{sT3}')
    e(f's_min_u32 s{sNv}, s{sNv}, 0x400')
    e(f's_mulk_i32 s{sNv}, 4608')
else:
    NWG = 256
    def P(M, ncol, lim, c0):
        assert all((j*M) >> 8 == j // ncol for j in range(lim))
        return M | ncol << 8 | lim << 16 | c0 << 24
    e(f's_mul_i32 s{sB0}, s{sT0}, 60')
    e(f's_mul_i32 s{sT2}, s{sT0}, 80')
    e(f's_sub_u32 s{sT2}, s{sT2}, 320')
    e(f's_cmp_lt_u32 s{sT0}, 4')
    e(f's_cselect_b32 s{sB0}, s{sB0}, s{sT2}')
    e(f's_mov_b32 s{sT2}, {P(64, 4, 32, 5)}')
    e(f's_cselect_b32 s{sT2}, {P(52, 5, 30, 0)}, s{sT2}')
    e(f's_cmp_eq_u32 s{sT0}, 7')
    BR = int(opt.get('br', 3))
    e(f's_cselect_b32 s{sT2}, {P(29, 9, 9*BR, 0)}, s{sT2}')
    e(f's_cselect_b32 s{sT3}, {int(opt.get("bn", -(-64//BR)))}, 40')
    e(f's_bfe_u32 s{sT0}, s{sT2}, 0x80010')
    e(f's_cmp_ge_u32 s{sT1}, s{sT0}')
    e('s_cbranch_scc1 L_help' if 'help' in opt else 's_cbranch_scc1 L_end')
    e(f's_and_b32 s{sQ}, s{sT2}, 0xff')
    e(f's_mul_i32 s{sQ}, s{sQ}, s{sT1}')
    e(f's_lshr_b32 s{sQ}, s{sQ}, 8')
    e(f's_bfe_u32 s{sT0}, s{sT2}, 0x80008')
    e(f's_mul_i32 s{sT0}, s{sT0}, s{sQ}')
    e(f's_sub_u32 s{sCt}, s{sT1}, s{sT0}')
    e(f's_lshr_b32 s{sT2}, s{sT2}, 24')
    e(f's_add_u32 s{sCt}, s{sCt}, s{sT2}')
    e(f's_mul_i32 s{sT0}, s{sQ}, s{sT3}')
    e(f's_lshl2_add_u32 s{sB0}, s{sB0}, s{sT0}')
    e(f's_add_u32 s{sNv}, s{sB0}, s{sT3}')
    e(f's_min_u32 s{sNv}, s{sNv}, 0x400')
    e(f's_mulk_i32 s{sNv}, 4608')
if FLIP:
    e(f's_lshr_b32 s{sF}, 0x38, s{sQ}')
    e(f's_and_b32 s{sF}, s{sF}, 1')
e(f's_lshr_b32 s{sWave}, s3, 6')
e('v_and_b32 v1, 63, v0')
e(f's_cmp_ge_u32 s{sWave}, 4')
e('s_cbranch_scc1 L_consumer')

vX = [10, 11, 12, 13, 14]
vW = [15, 16, 17]
vOOB = 18
vP = 20
e(f's_add_u32 s{sG}, s{sQ}, s{sCt}')
div_small(sT1, sG, 3, 40)
e('v_lshrrev_b32 v2, 3, v1')
e(f's_mul_i32 s{sT1}, s{sT1}, 3')
e('v_and_b32 v3, 7, v1')
e(f's_sub_u32 s{sG}, s{sG}, s{sT1}')
sG0 = sG
if CLS:
    e(f's_and_b32 s{sC}, s2, 7')
    e(f's_cmp_eq_u32 s{sC}, 7')
    e(f's_cselect_b32 s{sC}, 31, 0x1e0')
    e(f's_lshr_b32 s{sC}, s{sC}, s{sCt}')
    e(f's_and_b32 s{sC}, s{sC}, 1')
    if PERM[0]:
        sG0 = sOrd
        e(f's_mul_i32 s{sG0}, s{sC}, {3*PERM[0]}')
        if FIRST_IS_G: e(f's_add_u32 s{sG0}, s{sG0}, s{sG}')
        FIRST_IS_G = True
e('v_and_b32 v9, 2, v2')
e(f's_and_b32 s{sT2}, s{sWave}, 1')
e('v_mul_u32_u24 v8, 1152, v2')
e(f's_lshl_b32 s{sT3}, s{sT2}, 2')
e('v_xor_b32 v9, v9, v3')
e(f's_mul_i32 s{sT0}, s{sWave}, 72')
e(f'v_xor_b32 v9, s{sT3}, v9')
e(f's_add_u32 s{sT0}, s{sT0}, s{sCt}')
e('v_lshl_add_u32 v9, v9, 4, v8')
e(f's_lshl_b32 s{sT0}, s{sT0}, 7')
e(f's_mov_b32 s{sW+2}, {W_BYTES}')
e(f'v_add_u32 v{vW[0]}, s{sT0}, v9')
e(f's_mov_b32 s{sW+3}, 0x20000')
e(f'v_add_u32 v{vW[1]}, {TAP-1024}, v{vW[0]}')
if FIRST_IS_G:
    if FLIP:
        e(f's_lshl1_add_u32 s{sK}, s{sG0}, s{sF}')
        e(f's_mul_i32 s{sK}, s{sK}, {32*ROW}')
    else:
        e(f's_mul_i32 s{sK}, s{sG0}, {64*ROW}')
else:
    e(f's_mul_i32 s{sK}, s{sF}, {32*ROW}' if FLIP else f's_mov_b32 s{sK}, 0')
e(f'v_add_u32 v{vW[2]}, {2*TAP-2048}, v{vW[0]}')
e(f's_mul_i32 s{sWl}, s{sWave}, 6144')
e('v_lshrrev_b32 v4, 4, v1')
e(f's_add_u32 s{sWl}, s{sWl}, {WBASE}')
e('v_xor_b32 v5, v3, v4')
e(f's_mov_b32 m0, s{sWl}')
e('v_lshlrev_b32 v5, 4, v5')
e(f's_mov_b32 s{sX+3}, s{sW+3}')
e('v_lshl_add_u32 v6, v8, 2, v5')
LST_OFF = False
def lstamp(lane_expr):
    if str(opt.get('lamp')) == str(lane_expr): e('s_memrealtime s[70:71]')
    if LST and not (LST_OFF and lane_expr != 30):
        e('s_memrealtime s[92:93]')
        e('s_waitcnt lgkmcnt(0)')
        e(f's_mov_b32 s95, {lane_expr}')
        e('v_mov_b32 v31, s92')
        e('v_cmp_eq_u32 vcc, s95, v1')
        e('s_nop 1')
        e('v_cndmask_b32 v30, v30, v31, vcc')
def dw(tap): e(f'buffer_load_dwordx4 v{vW[tap]}, s[{sW}:{sW+3}], s{sK} offen' + (f' offset:{tap*1024}' if tap else '') + ' lds')
def dx(i): e(f'buffer_load_dwordx4 v{vX[i]}, s[{sX}:{sX+3}], s{sT0} offen' + (f' offset:{i*1024}' if 0 < i < 4 else '') + f'{XNT} lds')
def ld_flag():
    e(f's_mov_b32 m0, s{sFl}')
    e('s_mov_b64 exec, 1')
    e(f'buffer_load_dword v{vOOB}, s[{sW}:{sW+3}], 0 offen lds')
    e('s_mov_b64 exec, -1')
    e(f's_add_u32 s{sFl}, s{sFl}, 16')
e('s_waitcnt lgkmcnt(0)')
if LST:
    e(f'v_mov_b32 v30, s{sStamp}')
lstamp(2)
def par_load(lab):
    e(f's_cmp_lg_u32 s{sWave}, 3')
    e(f's_cbranch_scc1 {lab}')
    e(f's_lshl_b32 s{sT1}, s{sCt}, 7')
    e(f'v_lshl_add_u32 v{vP+4}, v1, 1, s{sT1}')
    if PF != 'front': e('s_waitcnt lgkmcnt(0)')
    for p in range(4):
        e(f'global_load_ushort v{vP+p}, v{vP+4}, s[{8+2*p}:{9+2*p}]')
    e(f'{lab}:')
if PF == 'front': par_load('L_lnop')
dw(0)
e(f's_lshl2_add_u32 s{sT1}, s{sB0}, s{sWave}')
e(f's_mulk_i32 s{sT1}, 1152')
if not NF0: e(f's_lshl_b32 s{sFl}, s{sWave}, 2')
dw(1)
e(f'v_add_u32 v{vX[0]}, s{sT1}, v6')
e(f's_mul_i32 s{sXl}, s{sWave}, 5120')
e(f'v_xor_b32 v{vX[1]}, 64, v{vX[0]}')
e(f's_lshl_b32 s{sT0}, s{sG0}, 7' if FIRST_IS_G else f's_mov_b32 s{sT0}, 0')
dw(2)
e(f's_mov_b32 m0, s{sXl}')
e(f'v_add_u32 v{vX[1]}, {8*4608-1024}, v{vX[1]}')
dx(0)
e(f'v_add_u32 v{vX[2]}, {20*4608-2048}, v{vX[0]}')
e(f's_lshr_b32 s{sT1}, s{sWave}, 1')
if not NF0: e(f's_add_u32 s{sFl}, s{sFl}, {FLAGL}')
dx(1)
e(f'v_add_u32 v{vX[3]}, {20*4608-2048}, v{vX[1]}')
e(f's_mul_i32 s{sT1}, s{sT1}, 10')
e(f's_add_u32 s{sT1}, s{sT1}, s{sT2}')
if not NF0: e(f'v_lshl_add_u32 v2, v1, 4, s{sFl}')
if not NF0: e(f'v_bfrev_b32 v{vOOB}, 2')
dx(2)
if not NF0: e(f'ds_write_b32 v2, v{vOOB}')
e(f's_lshl1_add_u32 s{sT1}, s{sT1}, s{sB0}')
e(f's_add_u32 s{sT1}, s{sT1}, 16')
e(f's_mulk_i32 s{sT1}, 4608')
e(f's_lshl_b32 s{sT3}, s{sT2}, 6')
dx(3)
e(f'v_xor_b32 v9, s{sT3}, v5')
e(f's_add_u32 m0, s{sXl}, 4096')
e(f'v_add3_u32 v{vX[4]}, v9, v8, s{sT1}')
dx(4)
if not NF0:
    e('s_waitcnt lgkmcnt(0)')
    ld_flag()
lstamp(4)
if FLIP:
    e(f's_mul_i32 s{sKf}, s{sF}, {32*ROW}')
    e(f's_lshl_b32 s{sKd}, s{sKf}, 1')
    e(f's_sub_u32 s{sKd}, {32*ROW}, s{sKd}')
KD = f's{sKd}' if FLIP else f'{32*ROW}'
e(f's_add_u32 m0, s{sWl}, 3072')
e(f's_add_u32 s{sK}, s{sK}, {KD}')
dw(0); dw(1); dw(2)
if not NF0: ld_flag()
if PF != 'front': e('s_load_dwordx8 s[8:15], s[0:1], 16')
lstamp(6)
if 'l0' in opt:
    for i, vm in enumerate((13, 12, 10, 8, 5, 1)):
        e(f's_waitcnt vmcnt({vm})')
        lstamp(8 + 2*i)
    LST_OFF = True
if not NF0: e('s_barrier')
if 'sched' not in opt:
    allo = list(orders)
    if CLS:
        allo += [[3*PERM[s//3] + s % 3 for s in o] for o in orders]
        e(f's_mul_i32 s{sC}, s{sC}, 3')
        e(f's_add_u32 s{sG}, s{sG}, s{sC}')
    ps = [pack(o[1:]) for o in allo]
    e(f's_mov_b32 s{sOrd}, {ps[0]}')
    for g in range(1, len(allo)):
        e(f's_cmp_eq_u32 s{sG}, {g}')
        e(f's_cselect_b32 s{sOrd}, {ps[g]}, s{sOrd}')
if PF == 'mid': par_load('L_lnop')
if 'sched' not in opt:
    e(f's_mov_b32 s{sIt}, 1')
    e(f's_mov_b32 s{sSl}, 0')
def advance():
    e(f's_add_u32 s{sSl}, s{sSl}, 1')
    e(f's_cmp_eq_u32 s{sSl}, 3')
    e(f's_cselect_b32 s{sSl}, 0, s{sSl}')
    e(f's_mov_b32 s{sDX}, {XSLOT}')
    e(f's_cselect_b32 s{sDX}, {(-2*XSLOT) & 0xffffffff}, s{sDX}')
    e(f's_mov_b32 s{sDW}, {WSLOT}')
    e(f's_cselect_b32 s{sDW}, {(-2*WSLOT) & 0xffffffff}, s{sDW}')
    e(f's_add_u32 s{sXl}, s{sXl}, s{sDX}')
    e(f's_add_u32 s{sWl}, s{sWl}, s{sDW}')
    e(f's_and_b32 s{sK}, s{sOrd}, 15')
    e(f's_lshl_b32 s{sT0}, s{sK}, 7')
    e(f's_mul_i32 s{sK}, s{sK}, {64*ROW}')
    if FLIP: e(f's_add_u32 s{sK}, s{sK}, s{sKf}')
    e(f's_lshr_b32 s{sOrd}, s{sOrd}, 4')
def issue_x():
    e(f's_mov_b32 m0, s{sXl}')
    e('s_nop 0')
    for i in range(4): dx(i)
    e(f's_add_u32 m0, s{sXl}, 4096')
    e('s_nop 0')
    dx(4)
def issue_w(ks):
    if ks:
        e(f's_add_u32 m0, s{sWl}, 3072')
        e(f's_add_u32 s{sK}, s{sK}, {KD}')
    else:
        e(f's_mov_b32 m0, s{sWl}')
        e('s_nop 0')
    for tap in range(3): dw(tap)
e('L_lloop:')
advance()
e(f's_mov_b32 m0, s{sXl}')
e(f's_cmp_lt_u32 s{sIt}, 3')
e('s_cbranch_scc1 L_lfree')
e('s_waitcnt vmcnt(11)')
e('s_barrier')
e('L_lfree:')
for i in range(4): dx(i)
e(f's_add_u32 m0, s{sXl}, 4096')
e(f's_add_u32 s{sIt}, s{sIt}, 1')
dx(4)
issue_w(0)
e(f's_cmp_lg_u32 s{sIt}, 2')
e('s_cbranch_scc1 L_lnb')
e('s_waitcnt vmcnt(8)')
e('s_barrier')
e('L_lnb:')
issue_w(1)
e(f's_cmp_lt_u32 s{sIt}, 9')
e('s_cbranch_scc1 L_lloop')
def par_compute():
    for p in range(4):
        e(f'v_lshlrev_b32 v{vP+p}, 16, v{vP+p}')
    e(f'v_add_f32 v{vP+1}, 0x3727c5ac, v{vP+1}')
    e(f'v_rsq_f32 v{vP+1}, v{vP+1}')
    e(f'v_mul_f32 v{vP+2}, 0xbfb8aa3b, v{vP+2}')
    e(f'v_mul_f32 v{vP+3}, 0xbfb8aa3b, v{vP+3}')
    e(f'v_mul_f32 v{vP+2}, v{vP+1}, v{vP+2}')
    e(f'v_fma_f32 v{vP+3}, -v{vP}, v{vP+2}, v{vP+3}')
    e('v_lshlrev_b32 v2, 2, v1')
    e(f'v_add_u32 v2, {PARM}, v2')
def par_write():
    e(f'ds_write_b32 v2, v{vP+2}')
    e(f'ds_write_b32 v2, v{vP+3} offset:256')
e('s_waitcnt vmcnt(11)')
e('s_barrier')
e(f's_cmp_lg_u32 s{sWave}, 3')
e('s_cbranch_scc1 L_lfin')
par_compute()
e('s_waitcnt vmcnt(0)')
par_write()
e('L_lfin:')
e('s_waitcnt vmcnt(0) lgkmcnt(0)')
e('s_barrier')
if 'lamp' in opt:
    e('s_waitcnt lgkmcnt(0)')
    e(f's_sub_u32 s3, s70, s{sStamp}')
    e('s_mul_i32 s3, s3, 100')
    e(f's_add_u32 s3, s3, s{sStamp}')
    e('s_add_u32 s3, s3, 2000')
    e('L_lamp:')
    e('s_memrealtime s[4:5]')
    e('s_waitcnt lgkmcnt(0)')
    e('s_sub_u32 s6, s4, s3')
    e('s_cmp_lt_i32 s6, 0')
    e('s_cbranch_scc1 L_lamp')
if LST:
    lstamp(30)
    e('s_load_dwordx2 s[50:51], s[0:1], 64')
    e(f's_lshl_b32 s3, s2, 3')
    e(f's_add_u32 s3, s3, s{sWave}')
    e(f's_mul_i32 s3, s3, {NST*8}')
    e('v_lshl_add_u32 v0, v1, 2, s3')
    e('v_and_b32 v2, 1, v1')
    e('v_cmp_eq_u32 vcc, 0, v2')
    e('s_nop 1')
    e('v_cndmask_b32 v30, 0, v30, vcc')
    e('s_waitcnt lgkmcnt(0)')
    e('s_mov_b64 exec, 0xffffffff')
    e('global_store_dword v0, v30, s[50:51]')
e('s_endpgm')

if 'help' in opt:
    HS = [int(c) for c in str(opt['help'])]
    e('L_help:')
    e(f's_cmp_ge_u32 s{sT1}, 32')
    e('s_cbranch_scc1 L_end')
    e(f's_sub_u32 s{sT1}, s{sT1}, s{sT0}')
    e(f's_and_b32 s{sT0}, s2, 7')
    e(f's_min_u32 s{sT0}, s{sT0}, 4')
    e(f's_lshl1_add_u32 s{sT1}, s{sT0}, s{sT1}')
    e(f's_lshr_b32 s{sWave}, s3, 6')
    e(f's_lshl3_add_u32 s{sT1}, s{sT1}, s{sWave}')
    e('v_and_b32 v1, 63, v0')
    e(f's_mov_b32 s{sX+2}, {X_BYTES}')
    e(f's_mov_b32 s{sX+3}, 0x20000')
    e(f's_movk_i32 s{sK}, 128')
    e(f'v_lshl_add_u32 v2, s{sT1}, 6, v1')
    e('v_mul_u32_u24 v2, 1152, v2')
    e(f's_cmp_lt_u32 s{sT1}, 64')
    e('s_waitcnt lgkmcnt(0)')
    e('s_cbranch_scc1 L_hgo')
    e(f's_sub_u32 s{sT1}, s{sT1}, 64')
    div_small(sT0, sT1, 9, 40)
    e(f's_mul_i32 s{sT2}, s{sT0}, {TAP//128 - 576}')
    e(f's_lshl_b32 s{sT1}, s{sT1}, 6')
    e(f's_add_u32 s{sT1}, s{sT1}, s{sT2}')
    e(f'v_add_u32 v2, s{sT1}, v1')
    e('v_lshlrev_b32 v2, 7, v2')
    e(f's_mov_b32 s{sX}, s{sW}')
    e(f's_mov_b32 s{sX+1}, s{sW+1}')
    e(f's_mov_b32 s{sX+2}, {W_BYTES}')
    e(f's_mov_b32 s{sK}, {64*ROW}')
    e('L_hgo:')
    for i, st in enumerate(HS):
        e(f's_mul_i32 s{sT0}, s{sK}, {st}')
        e(f'buffer_load_dword v{4+i}, v2, s[{sX}:{sX+3}], s{sT0} offen')
        if i + 1 < len(HS): e('s_barrier')
    e('s_waitcnt vmcnt(0)')
    e('s_endpgm')

e('L_consumer:')
e('s_load_dwordx2 s[28:29], s[0:1], 48')
if STAMP: e('s_load_dwordx2 s[50:51], s[0:1], 64')
e('s_setprio 3')
vXa = [2, 3]; vXm = [[4, 5], [252, 253], [6, 7]]
vWa = [8, 9]
vOut = 10; vOutM = 11
vPar = 12
ACC = 16
WB = [56, 104]; XB = 152
SC2 = 212; SH2 = 220
T = 228; P = 236; Qs = [240, 244]
cFl, cPoll, cSw, cSr = 248, 249, 250, 251
def acc(tile, t): return ACC + (tile*2 + t)*4
def fx(h, i): return XB + (h*7 + i)*4
def fw(buf, h, k, t): return WB[buf] + ((h*3 + k)*2 + t)*4
A0, A1, A2 = T, T+1, T+2
e('v_and_b32 v13, 15, v1')
e('v_lshrrev_b32 v14, 4, v1')
for r in range(4):
    e(f'v_mov_b32 v{ACC+r}, 0')
e('v_min_u32 v15, 2, v14')
e(f'v_mul_u32_u24 v15, {XSLOT}, v15')
e('v_lshl_add_u32 v15, v13, 4, v15')
e(f'ds_write_b128 v15, v[{ACC}:{ACC+3}] offset:{XBASE+20480}')
e(f's_sub_u32 s{sWave}, s{sWave}, 4')
e(f's_lshr_b32 s{sT0}, s{sWave}, 1')
e(f's_and_b32 s{sT1}, s{sWave}, 1')
if not NF0:
    e('v_and_b32 v15, 3, v1')
    e('v_lshlrev_b32 v15, 2, v15')
    e(f'v_add_u32 v{cFl}, {FLAGL}, v15')
GX = 14
if FLIP:
    GX = A2 + 1
    e(f's_lshl_b32 s{sIt}, s{sF}, 2')
    e(f'v_xor_b32 v{GX}, s{sIt}, v14')
e(f's_lshl_b32 s{sT3}, s{sT0}, 11')
e('v_lshrrev_b32 v15, 1, v13')
e(f'v_xor_b32 v15, v15, v{GX}')
e('v_lshlrev_b32 v15, 4, v15')
e('v_lshl_add_u32 v15, v13, 7, v15')
e(f'v_add_u32 v{vXa[0]}, s{sT3}, v15')
e(f'v_xor_b32 v{vXa[1]}, 64, v{vXa[0]}')
e(f's_mul_i32 s{sIt}, s{sT0}, 10240')
e(f's_add_u32 s{sIt}, s{sIt}, 4096')
e(f'v_lshrrev_b32 v{A2}, 3, v13')
e(f'v_lshl_add_u32 v{A2}, v{A2}, 12, s{sIt}')
e(f'v_add_u32 v{vXm[1][0]}, v{A2}, v15')
e(f'v_xor_b32 v{vXm[1][1]}, 64, v{vXm[1][0]}')
for k in (0, 2):
    regs = vXm[k]
    e(f'v_add_u32 v15, {1 if k==2 else 3}, v13')
    e(f'v_bfi_b32 v15, 3, v15, v13')
    e(f'v_lshrrev_b32 v{A0}, 1, v15')
    e(f'v_xor_b32 v{A0}, v{A0}, v{GX}')
    e(f'v_lshlrev_b32 v{A0}, 4, v{A0}')
    e(f'v_lshl_add_u32 v{A0}, v15, 7, v{A0}')
    e(f'v_add_u32 v{A1}, v{A2}, v{A0}')
    e(f'v_and_b32 v{A0}, 0xff, v{A0}')
    e('v_and_b32 v15, 3, v13')
    e(f'v_cmp_eq_u32 vcc, {0 if k==0 else 3}, v15')
    e(f'v_add_u32 v{A0}, {XBASE+20480}, v{A0}')
    e('s_nop 0')
    e(f'v_cndmask_b32 v{regs[0]}, v{A1}, v{A0}, vcc')
    e(f'v_xor_b32 v{regs[1]}, 64, v{regs[0]}')
e('v_lshrrev_b32 v15, 2, v13')
e(f'v_mul_u32_u24 v{A0}, 6144, v14')
e(f'v_lshl_add_u32 v{A0}, v15, 7, v{A0}')
e('v_lshrrev_b32 v15, 1, v15')
e(f'v_and_b32 v{A1}, 1, v14')
e(f'v_lshl_add_u32 v15, v{A1}, 1, v15')
e(f's_lshl_b32 s{sIt}, s{sT1}, 1')
e(f'v_xor_b32 v15, s{sIt}, v15')
e(f'v_lshl_add_u32 v{A0}, v15, 5, v{A0}')
e('v_and_b32 v15, 3, v13')
e(f'v_lshl_add_u32 v{A0}, v15, 3, v{A0}')
e(f'v_add_u32 v{vWa[0]}, {WBASE}, v{A0}')
e(f'v_xor_b32 v{vWa[1]}, 32, v{vWa[0]}')
assert WBASE % 256 == 0
if not NF0:
    e('s_waitcnt lgkmcnt(0)')
    e('s_barrier')
sNL = 46
deferred = [
 f's_mov_b32 s{sOut+2}, s{sNv}', f's_mov_b32 s{sOut+3}, 0x20000',
 f's_lshl_b32 s{sIt}, s{sT1}, 7', f's_add_u32 s{sIt}, s{sIt}, {PARM}',
 f'v_lshl_add_u32 v{vPar}, v14, 4, s{sIt}',
 f's_lshl_b32 s{sIt}, s{sWave}, 10', f's_add_u32 s{sIt}, s{sIt}, {STG}',
 'v_and_b32 v15, 1, v14', 'v_lshlrev_b32 v15, 1, v15', f'v_lshrrev_b32 v{A0}, 1, v14', f'v_or_b32 v15, v15, v{A0}',
 f'v_bfe_u32 v{A0}, v13, 1, 2', f'v_xor_b32 v15, v15, v{A0}', 'v_lshlrev_b32 v15, 4, v15', 'v_lshl_add_u32 v15, v13, 6, v15',
 f'v_add_u32 v{cSw}, s{sIt}, v15', f'v_lshl_add_u32 v{cSr}, v1, 4, s{sIt}',
 f's_lshl_b32 s{sT2}, s{sCt}, 7', f's_lshl_b32 s{sT3}, s{sT1}, 6', f's_add_u32 s{sT2}, s{sT2}, s{sT3}',
 f's_mul_i32 s{sIt}, s{sT0}, 20', f's_add_u32 s{sIt}, s{sIt}, s{sB0}', f's_mulk_i32 s{sIt}, 4608', f's_add_u32 s{sIt}, s{sIt}, s{sT2}',
 'v_bfe_u32 v15, v1, 3, 2', f'v_and_b32 v{A0}, 3, v1', f'v_xor_b32 v15, v15, v{A0}', f'v_lshl_add_u32 v15, v15, 4, s{sIt}',
 f'v_lshrrev_b32 v{A0}, 2, v1', f'v_mul_u32_u24 v{vOutM}, 1152, v{A0}', f'v_lshl_add_u32 v{vOut}, v{vOutM}, 2, v15',
 f'v_add_u32 v{vOutM}, v{vOutM}, v15', f'v_add_u32 v{vOutM}, {16*4608}, v{vOutM}',
 f's_mov_b32 s{sNL}, 0xbfb8aa3b', f's_mov_b32 s{sNL+1}, 0xbfb8aa3b']

cSw1 = 254
if FULL:
    deferred = [
     f's_mov_b32 s{sOut+2}, s{sNv}', f's_mov_b32 s{sOut+3}, 0x20000',
     f's_lshl_b32 s{sIt}, s{sT1}, 7', f's_add_u32 s{sIt}, s{sIt}, {PARM}',
     f'v_lshl_add_u32 v{vPar}, v14, 4, s{sIt}',
     f's_lshl_b32 s{sIt}, s{sT0}, 11', f's_add_u32 s{sIt}, s{sIt}, {STG}', f's_lshl_b32 s{sT2}, s{sT1}, 2',
     'v_lshrrev_b32 v15, 1, v14', f'v_or_b32 v15, s{sT2}, v15', f'v_and_b32 v{A0}, 7, v13', f'v_xor_b32 v15, v15, v{A0}',
     'v_lshlrev_b32 v15, 4, v15', 'v_lshl_add_u32 v15, v13, 7, v15', f'v_and_b32 v{A0}, 1, v14', f'v_lshl_add_u32 v15, v{A0}, 3, v15',
     f'v_add_u32 v{cSw}, s{sIt}, v15', f'v_xor_b32 v{cSw1}, 32, v{cSw}',
     f's_lshl_b32 s{sT2}, s{sT1}, 10', f's_add_u32 s{sIt}, s{sIt}, s{sT2}', f'v_lshl_add_u32 v{cSr}, v1, 4, s{sIt}',
     f's_lshl_b32 s{sT2}, s{sCt}, 7',
     f's_mul_i32 s{sIt}, s{sT0}, 20', f's_add_u32 s{sIt}, s{sIt}, s{sB0}', f's_mulk_i32 s{sIt}, 4608', f's_add_u32 s{sIt}, s{sIt}, s{sT2}',
     f'v_lshrrev_b32 v{A0}, 3, v1', 'v_and_b32 v15, 7, v1', f'v_xor_b32 v15, v15, v{A0}', f'v_lshl_add_u32 v15, v15, 4, s{sIt}',
     f's_lshl_b32 s{sT2}, s{sT1}, 3', f'v_add_u32 v{A0}, s{sT2}, v{A0}',
     f'v_mul_u32_u24 v{vOutM}, 1152, v{A0}', f'v_lshl_add_u32 v{vOut}, v{vOutM}, 2, v15',
     f'v_add_u32 v{vOutM}, v{vOutM}, v15', f'v_add_u32 v{vOutM}, {16*4608}, v{vOutM}',
     f's_mov_b32 s{sNL}, 0xbfb8aa3b', f's_mov_b32 s{sNL+1}, 0xbfb8aa3b']
    assert STG % 256 == 0

def rx(n, h, i):
    xo = XBASE + (n % 3)*XSLOT
    d = fx(h, i)
    if i < 4: return (f'ds_read_b128 v[{d}:{d+3}], v{vXa[h]} offset:{xo + i*5120}', d)
    return (f'ds_read_b128 v[{d}:{d+3}], v{vXm[i-4][h]} offset:{xo}', d)
def rw(n, h, k, t):
    d = fw(n & 1, h, k, t)
    off = (n % 3)*WSLOT + (h*3+k)*1024
    return [(f'ds_read_b64_tr_b16 v[{d+2*hp}:{d+2*hp+1}], v{vWa[t]} offset:{off + hp*512}', d) for hp in range(2)]
touched = set()
def tile_mfmas(n, tile):
    r = []
    for t in range(2):
        for h in range(2):
            for k in range(3):
                i = tile + k - 1 if tile < 4 else 4 + k
                if tile < 4 and not 0 <= i <= 3: continue
                r.append((acc(tile, t), fw(n & 1, h, k, t), fx(h, i)))
    return r
lds_q = []
mf_count = 0
AGE = int(opt.get('age', 6))
def lds(op):
    e(op[0]); lds_q.append((op[1], mf_count))
def wait_for(regs):
    idx = max((i for i, (d, _) in enumerate(lds_q) if d in regs), default=-1)
    if idx < 0: return False
    while idx + 1 < len(lds_q) and mf_count - lds_q[idx+1][1] >= AGE: idx += 1
    n = min(len(lds_q) - 1 - idx, 14)
    e(f's_waitcnt lgkmcnt({n})')
    del lds_q[:len(lds_q) - n]
    return True
def wait_all():
    e('s_waitcnt lgkmcnt(0)'); lds_q.clear()
def mfma(m):
    global mf_count
    a, A, B = m
    w = wait_for({A, B})
    c = f'v[{a}:{a+3}]' if a in touched else '0'
    touched.add(a)
    e(f'v_mfma_f32_16x16x32_bf16 v[{a}:{a+3}], v[{A}:{A+3}], v[{B}:{B+3}], {c}')
    mf_count += 1
    return w
def w_order(n):
    return [rw(n, h, k, t) for (t, h, k) in [(0,0,1),(0,0,2),(0,1,1),(0,1,2),(1,0,1),(1,0,2),(1,1,1),(1,1,2),(0,0,0),(0,1,0),(1,0,0),(1,1,0)]]
spin_sites = []
if STAMP:
    e(f's_mov_b32 s{sStamp+16}, 0')
    e(f's_mov_b32 s{sStamp+17}, 0')
NPAD = 0 if 'nopad' in opt else int(opt.get('npad', 2))
if NPAD:
    e('s_mov_b64 exec, 0')
    for p in range(NPAD):
        e(f's_branch L_pad{p}')
        e(f'L_ret{p}:')
    e('s_mov_b64 exec, -1')
stamp(1)
e('L_cpoll0:')
e('s_waitcnt lgkmcnt(0)')
e('s_barrier')
stamp(2)
cstamp(5)
LATE = 'late' in opt
XT = 'xt' in opt
wo = w_order(0)
init = wo[0] + [rx(0,0,0)] + wo[1] + [rx(0,0,1)] + wo[2] + [rx(0,1,0)] + wo[3] + [rx(0,1,1)]
pre0 = wo[4:9] + [[rx(0,0,2)]] + [wo[9]] + [[rx(0,1,2)]] + wo[10:] + [[rx(0,0,3)], [rx(0,1,3)]]
NI = int(opt.get('ni', 2))
for op in init + [x for g in pre0[:NI] for x in g]: lds(op)
pre0 = pre0[NI:]
BG = [int(v) for v in opt.get('bg', '28,24,24,24,24,24,24,18' if LATE else '28,18,18,18,18,18,18,18').split(',')]
par = [(f'ds_read_b128 v[{SC2}:{SC2+3}], v{vPar}', SC2), (f'ds_read_b128 v[{SC2+4}:{SC2+7}], v{vPar} offset:64', SC2),
       (f'ds_read_b128 v[{SH2}:{SH2+3}], v{vPar} offset:256', SC2), (f'ds_read_b128 v[{SH2+4}:{SH2+7}], v{vPar} offset:320', SC2)]
def own_late(n):
    return [[x] for g in w_order(n)[10:] for x in g] + [[rx(n,0,3)], [rx(n,1,3)]]
carry = []
for n in range(8):
    last = XT and n == 7
    ms = [m for tl in range(4 if last else 5) for m in tile_mfmas(n, tl)]
    own = (pre0 if n == 0 else (own_late(n) if LATE else [])) + [[rx(n, h, 4+k)] for h in range(2) for k in range(3)]
    wq = w_order(n+1)
    xq = [(21, rx(n+1,0,0)), (21, rx(n+1,1,0)), (33, rx(n+1,0,1)), (33, rx(n+1,1,1)), (41, rx(n+1,0,2)), (41, rx(n+1,1,2))]
    if LATE: wq = wq[:10]
    else: xq += [(41, rx(n+1,0,3)), (41, rx(n+1,1,3))]
    if n == 7 and not last: xq += [(41, p) for p in par]
    bg = BG[n]
    LASTW = (48 if LATE else 46) if not last else 36
    if last:
        carry = [x for g in w_order(8)[8:] for x in g]; wq = wq[:8]
        xq = xq[:4]
    wflat = [x for g in wq for x in g]
    for i, m in enumerate(ms):
        mfma(m)
        if own:
            for x in own.pop(0): lds(x)
        elif i == bg or (i > bg and bg >= 0):
            wait_all(); e('s_barrier'); bg = -1
            if 'pst' in opt and n < 7: e(f's_memrealtime s[{84+2*n}:{85+2*n}]' if n < 6 else 's_memrealtime s[4:5]')
        elif bg < 0 and xq and i >= xq[0][0] and not (xq[0][0] == 41 and wflat):
            lds(xq.pop(0)[1])
        elif bg < 0 and wflat:
            lds(wflat.pop(0))
            gaps_left = LASTW - i - sum(1 for g, _ in xq if g < 41)
            if wflat and len(wflat) > gaps_left: lds(wflat.pop(0))
        elif last and bg < 0 and par:
            lds(par.pop(0))
        elif deferred:
            e(deferred.pop(0))
    for g, x in xq: lds(x)
    assert not wflat and bg < 0 and not own
assert not deferred
stamp(3)
cstamp(6)
XM8 = [rx(8, h, 4+k) for h in range(2) for k in range(3)]
TO = [int(c) for c in opt.get('to', '03124')]
if XT:
    own = [[p] for p in par] + [[rx(8,0,2)], [rx(8,1,2)], [rx(8,0,3)], [rx(8,1,3)]] + [carry[i:i+2] for i in range(0, len(carry), 2)]
    while len(own) > 8: own = [own[0] + own[1]] + own[2:]
    rest = tile_mfmas(7, 4) + [('LDS', x) for x in XM8[:1]]
    blk = [m for tl in TO[1:] for m in tile_mfmas(8, tl)]
    for i, m in enumerate(blk):
        rest.append(m)
        if 1 + i < 6: rest.append(('LDS', XM8[1+i]))
    base = 12
else:
    own = ([g for g in [[x for gg in own_late(8)[:4] for x in gg][i:i+2] for i in (0, 2)]] + own_late(8)[4:] if LATE else []) + [[x] for x in XM8]
    if len(own) > 8: own = own[:6] + [own[6] + own[7], own[8] + own[9]]
    rest = [m for tl in TO[1:] for m in tile_mfmas(8, tl)]
    base = 0
for m in tile_mfmas(8, 0):
    mfma(m)
    if own:
        for x in own.pop(0): lds(x)
assert not own
done_at = {}
cnt = base
for tl in TO[1:]:
    cnt += len(tile_mfmas(8, tl)); done_at[tl] = cnt
emitted = 0
since = {0: 0}
def em(m):
    global emitted
    mfma(m); emitted += 1
    while rest and rest[0][0] == 'LDS': lds(rest.pop(0)[1])
    for k in since: since[k] += 1
    for tl, at in done_at.items():
        if at == emitted: since[tl] = 0
def ev(x):
    if x == 's_waitcnt lgkmcnt(0)': wait_all()
    elif x.startswith('ds_'): lds((x, None))
    else: e(x)
    for k in since: since[k] += 1
def need(tl):
    while tl not in since: em(rest.pop(0))
    if tl == 0 and PK != 2:
        while since[0] < 3: em(rest.pop(0))
        if not wait_for({SC2}): e('s_nop 0')
        return
    while since[tl] < 8:
        if rest: em(rest.pop(0))
        else:
            e(f's_nop {8 - since[tl] - 1}'); since[tl] = 8
    if tl == 0: wait_for({SC2})
def cost(ins):
    if 'exp' in ins or 'rcp' in ins: return 8
    if 'v_pk' in ins or 'v_fma' in ins: return 5
    return 4
def tile_ops(tile, Q):
    a0 = acc(tile, 0)
    def two(pkf, sf):
        return [('pk', pkf(i), [sf(i), sf(i+1)]) for i in range(0, 8, 2)]
    ops = []
    ops += two(lambda i: f'v_pk_fma_f32 v[{a0+i}:{a0+i+1}], v[{a0+i}:{a0+i+1}], v[{SC2+i}:{SC2+i+1}], v[{SH2+i}:{SH2+i+1}]',
               lambda i: f'v_fma_f32 v{a0+i}, v{a0+i}, v{SC2+i}, v{SH2+i}')
    ops += [('s', f'v_exp_f32 v{T+i}, v{a0+i}') for i in range(8)]
    ops += two(lambda i: f'v_pk_fma_f32 v[{T+i}:{T+i+1}], v[{T+i}:{T+i+1}], s[{sNL}:{sNL+1}], s[{sNL}:{sNL+1}]',
               lambda i: f'v_fma_f32 v{T+i}, v{T+i}, s{sNL}, s{sNL}')
    ops += [('s', f'v_rcp_f32 v{T+i}, v{T+i}') for i in range(8)]
    ops += two(lambda i: f'v_pk_mul_f32 v[{a0+i}:{a0+i+1}], v[{a0+i}:{a0+i+1}], v[{T+i}:{T+i+1}]',
               lambda i: f'v_mul_f32 v{a0+i}, v{a0+i}, v{T+i}')
    ops += [('s', f'v_cvt_pk_bf16_f32 v{P+i//2}, v{a0+i}, v{a0+i+1}') for i in range(0, 8, 2)]
    if FULL:
        cv = ops[-4:]
        ops = ops[:-4] + [cv[0], cv[1], cv[2], ('s', f'ds_write_b64 v{cSw}, v[{P}:{P+1}] offset:{tile*4096}'), cv[3],
                          ('s', f'ds_write_b64 v{cSw1}, v[{P+2}:{P+3}] offset:{tile*4096}')]
    else:
        ops += [('s', 's_nop 1'), ('s', f'v_permlane16_swap_b32 v{P}, v{P+2}'), ('s', f'v_permlane16_swap_b32 v{P+1}, v{P+3}'),
                ('s', f'ds_write_b128 v{cSw}, v[{P}:{P+3}]'), ('s', f'ds_read_b128 v[{Q}:{Q+3}], v{cSr}')]
    return ops
def tile_store(tile, Q):
    if tile < 4:
        return f'buffer_store_dwordx4 v[{Q}:{Q+3}], v{vOut}, s[{sOut}:{sOut+3}], 0 offen offset:{tile*1152} {STF}'
    return f'buffer_store_dwordx4 v[{Q}:{Q+3}], v{vOutM}, s[{sOut}:{sOut+3}], 0 offen {STL}'
pend = None
budget = 0
GAPV = int(opt.get('gapv', 8))
for n, tl in enumerate(TO):
    Q = Qs[n % 2]
    need(tl)
    if 't2st' in opt: e(f's_memtime s[{84+2*n}:{85+2*n}]')
    for i, op in enumerate(tile_ops(tl, Q)):
        if op[0] == 'pk':
            ins = [op[1]] if (PK == 2 or (PK == 1 and not rest)) else op[2]
        else:
            ins = [op[1]]
        for x in ins:
            ev(x); budget += cost(x)
            if rest and budget >= GAPV:
                em(rest.pop(0)); budget = 0
        if FULL:
            if pend is not None and i == 8:
                ev('s_waitcnt lgkmcnt(0)'); ev('s_barrier')
                ev(f'ds_read_b128 v[{pend[1]}:{pend[1]+3}], v{cSr} offset:{pend[0]*4096}')
            if pend is not None and i == 20:
                ev('s_waitcnt lgkmcnt(0)')
                ev(tile_store(*pend)); pend = None
        elif pend is not None and i == 12:
            ev('s_waitcnt lgkmcnt(0)')
            ev(tile_store(*pend)); pend = None
    pend = (tl, Q)
if 't2st' in opt: e('s_memtime s[94:95]')
if FULL:
    e('s_waitcnt lgkmcnt(0)'); e('s_barrier')
    e(f'ds_read_b128 v[{pend[1]}:{pend[1]+3}], v{cSr} offset:{pend[0]*4096}')
e('s_waitcnt lgkmcnt(0)')
e(tile_store(*pend))
stamp(4)
cstamp(7)
if 'pst' in opt or 't2st' in opt:
    e('s_waitcnt lgkmcnt(0)')
    if 't2st' in opt: e(f's_mov_b32 s4, s{sStamp+14}')
    e(f's_mov_b32 s{sStamp+18}, s84'); e(f's_mov_b32 s{sStamp+19}, s86')
    e(f's_mov_b32 s{sStamp+20}, s88'); e(f's_mov_b32 s{sStamp+21}, s90')
    e(f's_mov_b32 s{sStamp+22}, s92'); e(f's_mov_b32 s{sStamp+23}, s94')
    e(f's_mov_b32 s{sStamp+28}, s4'); e(f's_mov_b32 s{sStamp+29}, s4')
stamp_flush([0,1,2,3,4,5,6,7,8] + ([9,10,11,14] if ('pst' in opt or 't2st' in opt) else []))
e('s_endpgm')
for name, fidx in spin_sites:
    e(f'L_cspin{name}:')
    if STAMP: e(f's_add_u32 s{sStamp+16}, s{sStamp+16}, 1')
    e(poll(fidx))
    e('s_waitcnt lgkmcnt(0)')
    e(f'v_cmp_ne_u32 vcc, 0, v{cPoll}')
    e(f's_cbranch_vccnz L_cspin{name}')
    e(f's_branch L_cback{name}')
e('L_end:')
e('s_endpgm')

def render(lines):
    body = '\n'.join(lines)
    return HEADER + f'''; Override launch geometry by editing the next line (default: block=256,
; grid=ceil(out_elems/256), lds=0). Harness parses it; keep it on one line.
; @launch grid=({NWG},1,1) block=(512,1,1) lds={LDS_BYTES}
.amdgcn_target "amdgcn-amd-amdhsa--gfx950"
.text
.globl standalone__batchnorm__sampling_kernel
{'' if 'noal' in opt else '.p2align 12'}
.p2align 8
.type standalone__batchnorm__sampling_kernel,@function
standalone__batchnorm__sampling_kernel:
{body}
.section .rodata,"a"
.p2align 6
.amdhsa_kernel standalone__batchnorm__sampling_kernel
  .amdhsa_next_free_vgpr 256
  .amdhsa_next_free_sgpr 96
  .amdhsa_accum_offset 256
  .amdhsa_group_segment_fixed_size 0
  .amdhsa_kernarg_size 72
  .amdhsa_user_sgpr_count 2
  .amdhsa_user_sgpr_kernarg_segment_ptr 1
  .amdhsa_system_sgpr_workgroup_id_x 1
.end_amdhsa_kernel
'''
import subprocess, re, os
def offsets(lines):
    open('_g.s', 'w').write(render(lines))
    subprocess.run(['clang', '-x', 'assembler', '-target', 'amdgcn-amd-amdhsa', '-mcpu=gfx950', '-c', '_g.s', '-o', '_g.o'], check=True)
    d = subprocess.run(['llvm-objdump', '-d', '--mcpu=gfx950', '_g.o'], capture_output=True, text=True).stdout
    offs = [int(m.group(1), 16) for m in re.finditer(r'// ([0-9A-F]{12}):', d)]
    idx = [i for i, l in enumerate(lines) if l.startswith('    ')]
    assert len(offs) == len(idx), (len(offs), len(idx))
    return dict(zip(idx, offs))
if NPAD:
    KSTART = 0x300
    lines = out
    i0 = lines.index('L_cpoll0:')
    for p in range(NPAD):
        tmp = lines + [f'L_pad{q}:' for q in range(p, NPAD)] + ['    s_endpgm']
        offs = offsets(tmp)
        first = (offs[i0+1] + KSTART) // 4096
        bnd = 4096*(first + p + 1) - KSTART
        i = min(i for i, o in offs.items() if o >= bnd)
        lines = lines[:i] + [f'L_pad{p}:', f'    s_cbranch_execz L_ret{p}'] + lines[i:]
    out = lines
open(dst, 'w').write(render(out))
```

```python
import sys
opt = {}
dst = 'standalone__batchnorm__sampling.s'
for a in sys.argv[1:]:
    if a.startswith('--'):
        k, _, v = a[2:].partition('=')
        opt[k] = v if v else True
    else:
        dst = a
STAMP = 'stamp' in opt
AMP = None
if 'amp' in opt:
    AMP = tuple(int(v) for v in opt['amp'].split(',')); STAMP = True
MAP = opt.get('map', 'p4')
ORDER = opt.get('order', '013246578_120435768_201354687')
XNT = ' nt' if 'xnt' in opt else ''
STF = opt.get('stf', 'sc1').replace('+', ' ')
STL = opt.get('stl', STF).replace('+', ' ').replace('none', '')
PK = int(opt.get('pk', 1))
FLIP = MAP in ('p4', 'p5') and 'noflip' not in opt
LST = 'lst' in opt
NF0 = True
PERM = [int(c) for c in opt.get('perm', '102')]
CLS = PERM != [0, 1, 2]
sC = 49
PF = opt.get('ppos', 'mid')

out = []
def e(s=''):
    if 'nodma' in opt and s.startswith('buffer_load_dwordx4') and s.endswith('lds'): return
    out.append('    ' + s if s and not s.endswith(':') else s)

HEADER = open('standalone__batchnorm__sampling.s.ref').read().split('; Override launch')[0]

WSLOT = 24576
XSLOT = 20480 + 256
XBASE = 0
WBASE = XSLOT * 3
FLAGL = WBASE + WSLOT * 3
PARM = FLAGL + 1024
STG = PARM + 512
FULL = 'full' in opt
LDS_BYTES = STG + (20480 if FULL else 4096)
assert LDS_BYTES <= 163840
X_BYTES = 1024*4*576*2
W_BYTES = 3*576*576*2
TAP = 576*576*2
ROW = 1152

sX, sW, sOut = 20, 24, 28
sWave, sQ, sCt, sB0 = 32, 33, 34, 35
sT0, sT1, sT2, sT3 = 36, 37, 38, 39
sXl, sF, sWl, sK = 40, 41, 42, 43
sIt, sDX, sDW = 44, 45, 46
sSl, sFl = 47, 48
sOrd, sG, sKd, sKf = 16, 17, 18, 19
sNv = sX + 2
sStamp = 52
NST = 16
def stamp(i):
    if STAMP: e(f's_memrealtime s[{sStamp+2*i}:{sStamp+2*i+1}]')
def cstamp(i):
    if STAMP: e(f's_memtime s[{sStamp+2*i}:{sStamp+2*i+1}]')
def stamp_flush(used):
    if not STAMP: return
    e('s_waitcnt vmcnt(0) lgkmcnt(0)')
    stamp(NST-1)
    e(f's_memtime s[{sStamp+26}:{sStamp+27}]')
    e('s_waitcnt lgkmcnt(0)')
    if AMP is not None:
        e(f's_sub_u32 s3, s{sStamp+2*AMP[1]}, s{sStamp+2*AMP[0]}')
        e(f's_mul_i32 s3, s3, {AMP[3] if len(AMP) > 3 else 20}')
        e(f's_add_u32 s3, s3, s{sStamp+2*(NST-1)}')
        e('L_amp:')
        e('s_memrealtime s[4:5]')
        e('s_waitcnt lgkmcnt(0)')
        e('s_sub_u32 s6, s4, s3')
        e('s_cmp_lt_i32 s6, 0')
        e('s_cbranch_scc1 L_amp')
        return
    e(f's_lshl_b32 s3, s2, 3')
    e(f's_add_u32 s3, s3, s{sWave}')
    e('s_add_u32 s3, s3, 4')
    e(f's_mul_i32 s3, s3, {NST*8}')
    e('v_mov_b32 v0, s3')
    e('s_mov_b64 exec, 1')
    for i in used + [12, 13, NST-1]:
        e(f'v_mov_b32 v2, s{sStamp+2*i}')
        e(f'v_mov_b32 v3, s{sStamp+2*i+1}')
        e(f'global_store_dwordx2 v0, v[2:3], s[50:51] offset:{8*i}')
        e('s_nop 1')
def div_small(dstr, src_, d, maxv):
    for sh in range(4, 16):
        m = -(-(1 << sh) // d)
        if m <= 64 and all((t*m) >> sh == t // d for t in range(maxv+1)):
            e(f's_mul_i32 s{dstr}, s{src_}, {m}')
            e(f's_lshr_b32 s{dstr}, s{dstr}, {sh}')
            return
    assert 0
def pack(order): return sum(s << (4*i) for i, s in enumerate(order))
orders = [[int(ch) for ch in o] for o in ORDER.split('_')]
for g, o in enumerate(orders): assert sorted(o) == list(range(9)), o
assert len(orders) == 3
FIRST_IS_G = all(o[0] == g for g, o in enumerate(orders))
FIRST_IS_0 = all(o[0] == 0 for o in orders)
assert FIRST_IS_G or FIRST_IS_0

e(f's_load_dwordx2 s[{sW}:{sW+1}], s[0:1], 8')
e(f's_load_dwordx2 s[{sX}:{sX+1}], s[0:1], 0')
if PF == 'front': e('s_load_dwordx8 s[8:15], s[0:1], 16')
if STAMP:
    stamp(0)
    e(f's_memtime s[{sStamp+24}:{sStamp+25}]')
e(f's_lshr_b32 s{sT1}, s2, 3')
if 'nocpf' not in opt:
    e('s_getpc_b64 s[30:31]')
    e('L_pc:')
    e('v_and_b32 v2, 0x180, v0')
    e(f'v_lshl_add_u32 v2, s{sT1}, 9, v2')
    e('v_min_u32 v2, L_end-L_pc, v2')
    e('global_load_dword v255, v2, s[30:31]')
e('v_readfirstlane_b32 s3, v0')
e(f's_and_b32 s{sT0}, s2, 7')
if MAP == 'p3':
    NWG = 240
    e(f's_mul_i32 s{sT2}, s{sT0}, 27')
    e(f's_mul_i32 s{sT3}, s{sT0}, 3')
    e(f's_addk_i32 s{sT3}, {216-27}')
    e(f's_cmp_ge_u32 s{sT1}, 27')
    e(f's_cselect_b32 s{sT2}, s{sT3}, s{sT2}')
    e(f's_add_u32 s{sT2}, s{sT2}, s{sT1}')
    e(f's_cmp_ge_u32 s{sT1}, 30')
    e(f's_cselect_b32 s{sT2}, -1, s{sT2}')
    e(f's_cmpk_ge_u32 s{sT2}, 234')
    e('s_cbranch_scc1 L_end')
    div_small(sQ, sT2, 9, 233)
    e(f's_mul_i32 s{sT0}, s{sQ}, 9')
    e(f's_sub_u32 s{sCt}, s{sT2}, s{sT0}')
    e(f's_mul_i32 s{sB0}, s{sQ}, 40')
    e(f's_mov_b32 s{sNv}, {X_BYTES}')
elif MAP == 'p5':
    NWG = 256
    nL, nR = (int(v) for v in opt.get('n', '39,37').split(','))
    nBL = -(-(1024 - 24*nL) // 3); nBR = -(-(1024 - 24*nR) // 4)
    assert max(nL, nR, nBL, nBR) <= 40
    def P(M, ncol, c0, n, lim):
        assert all((j*M) >> 8 == j // ncol for j in range(lim))
        return M | ncol << 8 | c0 << 12 | n << 16 | lim << 24
    e(f's_mul_i32 s{sB0}, s{sT0}, {6*nL}')
    e(f's_mul_i32 s{sT2}, s{sT0}, {8*nR}')
    e(f's_sub_u32 s{sT2}, s{sT2}, {32*nR}')
    e(f's_cmp_lt_u32 s{sT0}, 4')
    e(f's_cselect_b32 s{sB0}, s{sB0}, s{sT2}')
    e(f's_mov_b32 s{sT2}, {P(64, 4, 5, nR, 32)}')
    e(f's_cselect_b32 s{sT2}, {P(52, 5, 0, nL, 30)}, s{sT2}')
    e(f's_cmp_lg_u32 s{sT0}, 7')
    e('s_cbranch_scc1 L_mp')
    e(f's_sub_u32 s{sT3}, s{sT1}, 15')
    e(f's_cselect_b32 s{sT1}, s{sT1}, s{sT3}')
    e(f's_cselect_b32 s{sB0}, {24*nL}, s{sB0}')
    e(f's_mov_b32 s{sT2}, {P(64, 4, 5, nBR, 16)}')
    e(f's_cselect_b32 s{sT2}, {P(52, 5, 0, nBL, 15)}, s{sT2}')
    e('L_mp:')
    e(f's_lshr_b32 s{sT0}, s{sT2}, 24')
    e(f's_cmp_ge_u32 s{sT1}, s{sT0}')
    e('s_cbranch_scc1 L_end')
    e(f's_and_b32 s{sQ}, s{sT2}, 0xff')
    e(f's_mul_i32 s{sQ}, s{sQ}, s{sT1}')
    e(f's_lshr_b32 s{sQ}, s{sQ}, 8')
    e(f's_bfe_u32 s{sT0}, s{sT2}, 0x40008')
    e(f's_mul_i32 s{sT0}, s{sT0}, s{sQ}')
    e(f's_sub_u32 s{sCt}, s{sT1}, s{sT0}')
    e(f's_bfe_u32 s{sT0}, s{sT2}, 0x4000c')
    e(f's_add_u32 s{sCt}, s{sCt}, s{sT0}')
    e(f's_bfe_u32 s{sT3}, s{sT2}, 0x80010')
    e(f's_mul_i32 s{sT0}, s{sQ}, s{sT3}')
    e(f's_add_u32 s{sB0}, s{sB0}, s{sT0}')
    e(f's_add_u32 s{sNv}, s{sB0}, s{sT3}')
    e(f's_min_u32 s{sNv}, s{sNv}, 0x400')
    e(f's_mulk_i32 s{sNv}, 4608')
else:
    NWG = 256
    def P(M, ncol, lim, c0):
        assert all((j*M) >> 8 == j // ncol for j in range(lim))
        return M | ncol << 8 | lim << 16 | c0 << 24
    e(f's_mul_i32 s{sB0}, s{sT0}, 60')
    e(f's_mul_i32 s{sT2}, s{sT0}, 80')
    e(f's_sub_u32 s{sT2}, s{sT2}, 320')
    e(f's_cmp_lt_u32 s{sT0}, 4')
    e(f's_cselect_b32 s{sB0}, s{sB0}, s{sT2}')
    e(f's_mov_b32 s{sT2}, {P(64, 4, 32, 5)}')
    e(f's_cselect_b32 s{sT2}, {P(52, 5, 30, 0)}, s{sT2}')
    e(f's_cmp_eq_u32 s{sT0}, 7')
    BR = int(opt.get('br', 2))
    e(f's_cselect_b32 s{sT2}, {P(29, 9, 9*BR, 0)}, s{sT2}')
    e(f's_cselect_b32 s{sT3}, {int(opt.get("bn", -(-64//BR)))}, 40')
    e(f's_bfe_u32 s{sT0}, s{sT2}, 0x80010')
    e(f's_cmp_ge_u32 s{sT1}, s{sT0}')
    e('s_cbranch_scc1 L_help' if 'help' in opt else 's_cbranch_scc1 L_end')
    e(f's_and_b32 s{sQ}, s{sT2}, 0xff')
    e(f's_mul_i32 s{sQ}, s{sQ}, s{sT1}')
    e(f's_lshr_b32 s{sQ}, s{sQ}, 8')
    e(f's_bfe_u32 s{sT0}, s{sT2}, 0x80008')
    e(f's_mul_i32 s{sT0}, s{sT0}, s{sQ}')
    e(f's_sub_u32 s{sCt}, s{sT1}, s{sT0}')
    e(f's_lshr_b32 s{sT2}, s{sT2}, 24')
    e(f's_add_u32 s{sCt}, s{sCt}, s{sT2}')
    e(f's_mul_i32 s{sT0}, s{sQ}, s{sT3}')
    e(f's_lshl2_add_u32 s{sB0}, s{sB0}, s{sT0}')
    e(f's_add_u32 s{sNv}, s{sB0}, s{sT3}')
    e(f's_min_u32 s{sNv}, s{sNv}, 0x400')
    e(f's_mulk_i32 s{sNv}, 4608')
if FLIP:
    e(f's_lshr_b32 s{sF}, 0x38, s{sQ}')
    e(f's_and_b32 s{sF}, s{sF}, 1')
e(f's_lshr_b32 s{sWave}, s3, 6')
e('v_and_b32 v1, 63, v0')
e(f's_cmp_ge_u32 s{sWave}, 4')
e('s_cbranch_scc1 L_consumer')

vX = [10, 11, 12, 13, 14]
vW = [15, 16, 17]
vOOB = 18
vP = 20
e(f's_add_u32 s{sG}, s{sQ}, s{sCt}')
div_small(sT1, sG, 3, 40)
e('v_lshrrev_b32 v2, 3, v1')
e(f's_mul_i32 s{sT1}, s{sT1}, 3')
e('v_and_b32 v3, 7, v1')
e(f's_sub_u32 s{sG}, s{sG}, s{sT1}')
sG0 = sG
if CLS:
    e(f's_and_b32 s{sC}, s2, 7')
    e(f's_cmp_eq_u32 s{sC}, 7')
    e(f's_cselect_b32 s{sC}, 31, 0x1e0')
    e(f's_lshr_b32 s{sC}, s{sC}, s{sCt}')
    e(f's_and_b32 s{sC}, s{sC}, 1')
    if PERM[0]:
        sG0 = sOrd
        e(f's_mul_i32 s{sG0}, s{sC}, {3*PERM[0]}')
        if FIRST_IS_G: e(f's_add_u32 s{sG0}, s{sG0}, s{sG}')
        FIRST_IS_G = True
e('v_and_b32 v9, 2, v2')
e(f's_and_b32 s{sT2}, s{sWave}, 1')
e('v_mul_u32_u24 v8, 1152, v2')
e(f's_lshl_b32 s{sT3}, s{sT2}, 2')
e('v_xor_b32 v9, v9, v3')
e(f's_mul_i32 s{sT0}, s{sWave}, 72')
e(f'v_xor_b32 v9, s{sT3}, v9')
e(f's_add_u32 s{sT0}, s{sT0}, s{sCt}')
e('v_lshl_add_u32 v9, v9, 4, v8')
e(f's_lshl_b32 s{sT0}, s{sT0}, 7')
e(f's_mov_b32 s{sW+2}, {W_BYTES}')
e(f'v_add_u32 v{vW[0]}, s{sT0}, v9')
e(f's_mov_b32 s{sW+3}, 0x20000')
e(f'v_add_u32 v{vW[1]}, {TAP-1024}, v{vW[0]}')
if FIRST_IS_G:
    if FLIP:
        e(f's_lshl1_add_u32 s{sK}, s{sG0}, s{sF}')
        e(f's_mul_i32 s{sK}, s{sK}, {32*ROW}')
    else:
        e(f's_mul_i32 s{sK}, s{sG0}, {64*ROW}')
else:
    e(f's_mul_i32 s{sK}, s{sF}, {32*ROW}' if FLIP else f's_mov_b32 s{sK}, 0')
e(f'v_add_u32 v{vW[2]}, {2*TAP-2048}, v{vW[0]}')
e(f's_mul_i32 s{sWl}, s{sWave}, 6144')
e('v_lshrrev_b32 v4, 4, v1')
e(f's_add_u32 s{sWl}, s{sWl}, {WBASE}')
e('v_xor_b32 v5, v3, v4')
e(f's_mov_b32 m0, s{sWl}')
e('v_lshlrev_b32 v5, 4, v5')
e(f's_mov_b32 s{sX+3}, s{sW+3}')
e('v_lshl_add_u32 v6, v8, 2, v5')
LST_OFF = False
def lstamp(lane_expr):
    if str(opt.get('lamp')) == str(lane_expr): e('s_memrealtime s[70:71]')
    if LST and not (LST_OFF and lane_expr != 30):
        e('s_memrealtime s[92:93]')
        e('s_waitcnt lgkmcnt(0)')
        e(f's_mov_b32 s95, {lane_expr}')
        e('v_mov_b32 v31, s92')
        e('v_cmp_eq_u32 vcc, s95, v1')
        e('s_nop 1')
        e('v_cndmask_b32 v30, v30, v31, vcc')
def dw(tap): e(f'buffer_load_dwordx4 v{vW[tap]}, s[{sW}:{sW+3}], s{sK} offen' + (f' offset:{tap*1024}' if tap else '') + ' lds')
def dx(i): e(f'buffer_load_dwordx4 v{vX[i]}, s[{sX}:{sX+3}], s{sT0} offen' + (f' offset:{i*1024}' if 0 < i < 4 else '') + f'{XNT} lds')
def ld_flag():
    e(f's_mov_b32 m0, s{sFl}')
    e('s_mov_b64 exec, 1')
    e(f'buffer_load_dword v{vOOB}, s[{sW}:{sW+3}], 0 offen lds')
    e('s_mov_b64 exec, -1')
    e(f's_add_u32 s{sFl}, s{sFl}, 16')
e('s_waitcnt lgkmcnt(0)')
if LST:
    e(f'v_mov_b32 v30, s{sStamp}')
lstamp(2)
def par_load(lab):
    e(f's_cmp_lg_u32 s{sWave}, 3')
    e(f's_cbranch_scc1 {lab}')
    e(f's_lshl_b32 s{sT1}, s{sCt}, 7')
    e(f'v_lshl_add_u32 v{vP+4}, v1, 1, s{sT1}')
    if PF != 'front': e('s_waitcnt lgkmcnt(0)')
    for p in range(4):
        e(f'global_load_ushort v{vP+p}, v{vP+4}, s[{8+2*p}:{9+2*p}]')
    e(f'{lab}:')
if PF == 'front': par_load('L_lnop')
dw(0)
e(f's_lshl2_add_u32 s{sT1}, s{sB0}, s{sWave}')
e(f's_mulk_i32 s{sT1}, 1152')
if not NF0: e(f's_lshl_b32 s{sFl}, s{sWave}, 2')
dw(1)
e(f'v_add_u32 v{vX[0]}, s{sT1}, v6')
e(f's_mul_i32 s{sXl}, s{sWave}, 5120')
e(f'v_xor_b32 v{vX[1]}, 64, v{vX[0]}')
e(f's_lshl_b32 s{sT0}, s{sG0}, 7' if FIRST_IS_G else f's_mov_b32 s{sT0}, 0')
dw(2)
e(f's_mov_b32 m0, s{sXl}')
e(f'v_add_u32 v{vX[1]}, {8*4608-1024}, v{vX[1]}')
dx(0)
e(f'v_add_u32 v{vX[2]}, {20*4608-2048}, v{vX[0]}')
e(f's_lshr_b32 s{sT1}, s{sWave}, 1')
if not NF0: e(f's_add_u32 s{sFl}, s{sFl}, {FLAGL}')
dx(1)
e(f'v_add_u32 v{vX[3]}, {20*4608-2048}, v{vX[1]}')
e(f's_mul_i32 s{sT1}, s{sT1}, 10')
e(f's_add_u32 s{sT1}, s{sT1}, s{sT2}')
if not NF0: e(f'v_lshl_add_u32 v2, v1, 4, s{sFl}')
if not NF0: e(f'v_bfrev_b32 v{vOOB}, 2')
dx(2)
if not NF0: e(f'ds_write_b32 v2, v{vOOB}')
e(f's_lshl1_add_u32 s{sT1}, s{sT1}, s{sB0}')
e(f's_add_u32 s{sT1}, s{sT1}, 16')
e(f's_mulk_i32 s{sT1}, 4608')
e(f's_lshl_b32 s{sT3}, s{sT2}, 6')
dx(3)
e(f'v_xor_b32 v9, s{sT3}, v5')
e(f's_add_u32 m0, s{sXl}, 4096')
e(f'v_add3_u32 v{vX[4]}, v9, v8, s{sT1}')
dx(4)
if not NF0:
    e('s_waitcnt lgkmcnt(0)')
    ld_flag()
lstamp(4)
if FLIP:
    e(f's_mul_i32 s{sKf}, s{sF}, {32*ROW}')
    e(f's_lshl_b32 s{sKd}, s{sKf}, 1')
    e(f's_sub_u32 s{sKd}, {32*ROW}, s{sKd}')
KD = f's{sKd}' if FLIP else f'{32*ROW}'
e(f's_add_u32 m0, s{sWl}, 3072')
e(f's_add_u32 s{sK}, s{sK}, {KD}')
dw(0); dw(1); dw(2)
if not NF0: ld_flag()
if PF != 'front': e('s_load_dwordx8 s[8:15], s[0:1], 16')
lstamp(6)
if 'l0' in opt:
    for i, vm in enumerate((13, 12, 10, 8, 5, 1)):
        e(f's_waitcnt vmcnt({vm})')
        lstamp(8 + 2*i)
    LST_OFF = True
if not NF0: e('s_barrier')
if 'sched' not in opt:
    allo = list(orders)
    if CLS:
        allo += [[3*PERM[s//3] + s % 3 for s in o] for o in orders]
        e(f's_mul_i32 s{sC}, s{sC}, 3')
        e(f's_add_u32 s{sG}, s{sG}, s{sC}')
    ps = [pack(o[1:]) for o in allo]
    e(f's_mov_b32 s{sOrd}, {ps[0]}')
    for g in range(1, len(allo)):
        e(f's_cmp_eq_u32 s{sG}, {g}')
        e(f's_cselect_b32 s{sOrd}, {ps[g]}, s{sOrd}')
if PF == 'mid': par_load('L_lnop')
if 'sched' not in opt:
    e(f's_mov_b32 s{sIt}, 1')
    e(f's_mov_b32 s{sSl}, 0')
def advance():
    e(f's_add_u32 s{sSl}, s{sSl}, 1')
    e(f's_cmp_eq_u32 s{sSl}, 3')
    e(f's_cselect_b32 s{sSl}, 0, s{sSl}')
    e(f's_mov_b32 s{sDX}, {XSLOT}')
    e(f's_cselect_b32 s{sDX}, {(-2*XSLOT) & 0xffffffff}, s{sDX}')
    e(f's_mov_b32 s{sDW}, {WSLOT}')
    e(f's_cselect_b32 s{sDW}, {(-2*WSLOT) & 0xffffffff}, s{sDW}')
    e(f's_add_u32 s{sXl}, s{sXl}, s{sDX}')
    e(f's_add_u32 s{sWl}, s{sWl}, s{sDW}')
    e(f's_and_b32 s{sK}, s{sOrd}, 15')
    e(f's_lshl_b32 s{sT0}, s{sK}, 7')
    e(f's_mul_i32 s{sK}, s{sK}, {64*ROW}')
    if FLIP: e(f's_add_u32 s{sK}, s{sK}, s{sKf}')
    e(f's_lshr_b32 s{sOrd}, s{sOrd}, 4')
def issue_x():
    e(f's_mov_b32 m0, s{sXl}')
    e('s_nop 0')
    for i in range(4): dx(i)
    e(f's_add_u32 m0, s{sXl}, 4096')
    e('s_nop 0')
    dx(4)
def issue_w(ks):
    if ks:
        e(f's_add_u32 m0, s{sWl}, 3072')
        e(f's_add_u32 s{sK}, s{sK}, {KD}')
    else:
        e(f's_mov_b32 m0, s{sWl}')
        e('s_nop 0')
    for tap in range(3): dw(tap)
e('L_lloop:')
advance()
e(f's_mov_b32 m0, s{sXl}')
E0 = int(opt.get('e0', 0))
e(f's_cmp_lt_u32 s{sIt}, {3 + E0}')
e('s_cbranch_scc1 L_lfree')
e('s_waitcnt vmcnt(11)')
e('s_barrier')
e('L_lfree:')
for i in range(4): dx(i)
e(f's_add_u32 m0, s{sXl}, 4096')
e(f's_add_u32 s{sIt}, s{sIt}, 1')
dx(4)
issue_w(0)
e(f's_cmp_gt_u32 s{sIt}, {2 + E0}')
e('s_cbranch_scc1 L_lnb')
e('s_waitcnt vmcnt(8)')
e('s_barrier')
e('L_lnb:')
issue_w(1)
e(f's_cmp_lt_u32 s{sIt}, 9')
e('s_cbranch_scc1 L_lloop')
def par_compute():
    for p in range(4):
        e(f'v_lshlrev_b32 v{vP+p}, 16, v{vP+p}')
    e(f'v_add_f32 v{vP+1}, 0x3727c5ac, v{vP+1}')
    e(f'v_rsq_f32 v{vP+1}, v{vP+1}')
    e(f'v_mul_f32 v{vP+2}, 0xbfb8aa3b, v{vP+2}')
    e(f'v_mul_f32 v{vP+3}, 0xbfb8aa3b, v{vP+3}')
    e(f'v_mul_f32 v{vP+2}, v{vP+1}, v{vP+2}')
    e(f'v_fma_f32 v{vP+3}, -v{vP}, v{vP+2}, v{vP+3}')
    e('v_lshlrev_b32 v2, 2, v1')
    e(f'v_add_u32 v2, {PARM}, v2')
def par_write():
    e(f'ds_write_b32 v2, v{vP+2}')
    e(f'ds_write_b32 v2, v{vP+3} offset:256')
e('s_waitcnt vmcnt(11)')
e('s_barrier')
e(f's_cmp_lg_u32 s{sWave}, 3')
e('s_cbranch_scc1 L_lfin')
par_compute()
e('s_waitcnt vmcnt(0)')
par_write()
e('L_lfin:')
e('s_waitcnt vmcnt(0) lgkmcnt(0)')
e('s_barrier')
if 'lamp' in opt:
    e('s_waitcnt lgkmcnt(0)')
    e(f's_sub_u32 s3, s70, s{sStamp}')
    e('s_mul_i32 s3, s3, 100')
    e(f's_add_u32 s3, s3, s{sStamp}')
    e('s_add_u32 s3, s3, 2000')
    e('L_lamp:')
    e('s_memrealtime s[4:5]')
    e('s_waitcnt lgkmcnt(0)')
    e('s_sub_u32 s6, s4, s3')
    e('s_cmp_lt_i32 s6, 0')
    e('s_cbranch_scc1 L_lamp')
if LST:
    lstamp(30)
    e('s_load_dwordx2 s[50:51], s[0:1], 64')
    e(f's_lshl_b32 s3, s2, 3')
    e(f's_add_u32 s3, s3, s{sWave}')
    e(f's_mul_i32 s3, s3, {NST*8}')
    e('v_lshl_add_u32 v0, v1, 2, s3')
    e('v_and_b32 v2, 1, v1')
    e('v_cmp_eq_u32 vcc, 0, v2')
    e('s_nop 1')
    e('v_cndmask_b32 v30, 0, v30, vcc')
    e('s_waitcnt lgkmcnt(0)')
    e('s_mov_b64 exec, 0xffffffff')
    e('global_store_dword v0, v30, s[50:51]')
e('s_endpgm')

if 'help' in opt:
    HS = [int(c) for c in str(opt['help'])]
    e('L_help:')
    e(f's_cmp_ge_u32 s{sT1}, 32')
    e('s_cbranch_scc1 L_end')
    e(f's_sub_u32 s{sT1}, s{sT1}, s{sT0}')
    e(f's_and_b32 s{sT0}, s2, 7')
    e(f's_min_u32 s{sT0}, s{sT0}, 4')
    e(f's_lshl1_add_u32 s{sT1}, s{sT0}, s{sT1}')
    e(f's_lshr_b32 s{sWave}, s3, 6')
    e(f's_lshl3_add_u32 s{sT1}, s{sT1}, s{sWave}')
    e('v_and_b32 v1, 63, v0')
    e(f's_mov_b32 s{sX+2}, {X_BYTES}')
    e(f's_mov_b32 s{sX+3}, 0x20000')
    e(f's_movk_i32 s{sK}, 128')
    e(f'v_lshl_add_u32 v2, s{sT1}, 6, v1')
    e('v_mul_u32_u24 v2, 1152, v2')
    e(f's_cmp_lt_u32 s{sT1}, 64')
    e('s_waitcnt lgkmcnt(0)')
    e('s_cbranch_scc1 L_hgo')
    e(f's_sub_u32 s{sT1}, s{sT1}, 64')
    div_small(sT0, sT1, 9, 40)
    e(f's_mul_i32 s{sT2}, s{sT0}, {TAP//128 - 576}')
    e(f's_lshl_b32 s{sT1}, s{sT1}, 6')
    e(f's_add_u32 s{sT1}, s{sT1}, s{sT2}')
    e(f'v_add_u32 v2, s{sT1}, v1')
    e('v_lshlrev_b32 v2, 7, v2')
    e(f's_mov_b32 s{sX}, s{sW}')
    e(f's_mov_b32 s{sX+1}, s{sW+1}')
    e(f's_mov_b32 s{sX+2}, {W_BYTES}')
    e(f's_mov_b32 s{sK}, {64*ROW}')
    e('L_hgo:')
    for i, st in enumerate(HS):
        e(f's_mul_i32 s{sT0}, s{sK}, {st}')
        e(f'buffer_load_dword v{4+i}, v2, s[{sX}:{sX+3}], s{sT0} offen')
        if i + 1 < len(HS): e('s_barrier')
    e('s_waitcnt vmcnt(0)')
    e('s_endpgm')

e('L_consumer:')
e('s_load_dwordx2 s[28:29], s[0:1], 48')
if STAMP: e('s_load_dwordx2 s[50:51], s[0:1], 64')
e('s_setprio 3')
vXa = [2, 3]; vXm = [[4, 5], [252, 253], [6, 7]]
vWa = [8, 9]
vOut = 10; vOutM = 11
vPar = 12
ACC = 16
WB = [56, 104]; XB = 152
SC2 = 212; SH2 = 220
T = 228; P = 236; Qs = [240, 244]
cFl, cPoll, cSw, cSr = 248, 249, 250, 251
def acc(tile, t): return ACC + (tile*2 + t)*4
def fx(h, i): return XB + (h*7 + i)*4
def fw(buf, h, k, t): return WB[buf] + ((h*3 + k)*2 + t)*4
A0, A1, A2 = T, T+1, T+2
e('v_and_b32 v13, 15, v1')
e('v_lshrrev_b32 v14, 4, v1')
for r in range(4):
    e(f'v_mov_b32 v{ACC+r}, 0')
e('v_min_u32 v15, 2, v14')
e(f'v_mul_u32_u24 v15, {XSLOT}, v15')
e('v_lshl_add_u32 v15, v13, 4, v15')
e(f'ds_write_b128 v15, v[{ACC}:{ACC+3}] offset:{XBASE+20480}')
e(f's_sub_u32 s{sWave}, s{sWave}, 4')
e(f's_lshr_b32 s{sT0}, s{sWave}, 1')
e(f's_and_b32 s{sT1}, s{sWave}, 1')
if not NF0:
    e('v_and_b32 v15, 3, v1')
    e('v_lshlrev_b32 v15, 2, v15')
    e(f'v_add_u32 v{cFl}, {FLAGL}, v15')
GX = 14
if FLIP:
    GX = A2 + 1
    e(f's_lshl_b32 s{sIt}, s{sF}, 2')
    e(f'v_xor_b32 v{GX}, s{sIt}, v14')
e(f's_lshl_b32 s{sT3}, s{sT0}, 11')
e('v_lshrrev_b32 v15, 1, v13')
e(f'v_xor_b32 v15, v15, v{GX}')
e('v_lshlrev_b32 v15, 4, v15')
e('v_lshl_add_u32 v15, v13, 7, v15')
e(f'v_add_u32 v{vXa[0]}, s{sT3}, v15')
e(f'v_xor_b32 v{vXa[1]}, 64, v{vXa[0]}')
e(f's_mul_i32 s{sIt}, s{sT0}, 10240')
e(f's_add_u32 s{sIt}, s{sIt}, 4096')
e(f'v_lshrrev_b32 v{A2}, 3, v13')
e(f'v_lshl_add_u32 v{A2}, v{A2}, 12, s{sIt}')
e(f'v_add_u32 v{vXm[1][0]}, v{A2}, v15')
e(f'v_xor_b32 v{vXm[1][1]}, 64, v{vXm[1][0]}')
for k in (0, 2):
    regs = vXm[k]
    e(f'v_add_u32 v15, {1 if k==2 else 3}, v13')
    e(f'v_bfi_b32 v15, 3, v15, v13')
    e(f'v_lshrrev_b32 v{A0}, 1, v15')
    e(f'v_xor_b32 v{A0}, v{A0}, v{GX}')
    e(f'v_lshlrev_b32 v{A0}, 4, v{A0}')
    e(f'v_lshl_add_u32 v{A0}, v15, 7, v{A0}')
    e(f'v_add_u32 v{A1}, v{A2}, v{A0}')
    e(f'v_and_b32 v{A0}, 0xff, v{A0}')
    e('v_and_b32 v15, 3, v13')
    e(f'v_cmp_eq_u32 vcc, {0 if k==0 else 3}, v15')
    e(f'v_add_u32 v{A0}, {XBASE+20480}, v{A0}')
    e('s_nop 0')
    e(f'v_cndmask_b32 v{regs[0]}, v{A1}, v{A0}, vcc')
    e(f'v_xor_b32 v{regs[1]}, 64, v{regs[0]}')
e('v_lshrrev_b32 v15, 2, v13')
e(f'v_mul_u32_u24 v{A0}, 6144, v14')
e(f'v_lshl_add_u32 v{A0}, v15, 7, v{A0}')
e('v_lshrrev_b32 v15, 1, v15')
e(f'v_and_b32 v{A1}, 1, v14')
e(f'v_lshl_add_u32 v15, v{A1}, 1, v15')
e(f's_lshl_b32 s{sIt}, s{sT1}, 1')
e(f'v_xor_b32 v15, s{sIt}, v15')
e(f'v_lshl_add_u32 v{A0}, v15, 5, v{A0}')
e('v_and_b32 v15, 3, v13')
e(f'v_lshl_add_u32 v{A0}, v15, 3, v{A0}')
e(f'v_add_u32 v{vWa[0]}, {WBASE}, v{A0}')
e(f'v_xor_b32 v{vWa[1]}, 32, v{vWa[0]}')
assert WBASE % 256 == 0
if not NF0:
    e('s_waitcnt lgkmcnt(0)')
    e('s_barrier')
sNL = 46
deferred = [
 f's_mov_b32 s{sOut+2}, s{sNv}', f's_mov_b32 s{sOut+3}, 0x20000',
 f's_lshl_b32 s{sIt}, s{sT1}, 7', f's_add_u32 s{sIt}, s{sIt}, {PARM}',
 f'v_lshl_add_u32 v{vPar}, v14, 4, s{sIt}',
 f's_lshl_b32 s{sIt}, s{sWave}, 10', f's_add_u32 s{sIt}, s{sIt}, {STG}',
 'v_and_b32 v15, 1, v14', 'v_lshlrev_b32 v15, 1, v15', f'v_lshrrev_b32 v{A0}, 1, v14', f'v_or_b32 v15, v15, v{A0}',
 f'v_bfe_u32 v{A0}, v13, 1, 2', f'v_xor_b32 v15, v15, v{A0}', 'v_lshlrev_b32 v15, 4, v15', 'v_lshl_add_u32 v15, v13, 6, v15',
 f'v_add_u32 v{cSw}, s{sIt}, v15', f'v_lshl_add_u32 v{cSr}, v1, 4, s{sIt}',
 f's_lshl_b32 s{sT2}, s{sCt}, 7', f's_lshl_b32 s{sT3}, s{sT1}, 6', f's_add_u32 s{sT2}, s{sT2}, s{sT3}',
 f's_mul_i32 s{sIt}, s{sT0}, 20', f's_add_u32 s{sIt}, s{sIt}, s{sB0}', f's_mulk_i32 s{sIt}, 4608', f's_add_u32 s{sIt}, s{sIt}, s{sT2}',
 'v_bfe_u32 v15, v1, 3, 2', f'v_and_b32 v{A0}, 3, v1', f'v_xor_b32 v15, v15, v{A0}', f'v_lshl_add_u32 v15, v15, 4, s{sIt}',
 f'v_lshrrev_b32 v{A0}, 2, v1', f'v_mul_u32_u24 v{vOutM}, 1152, v{A0}', f'v_lshl_add_u32 v{vOut}, v{vOutM}, 2, v15',
 f'v_add_u32 v{vOutM}, v{vOutM}, v15', f'v_add_u32 v{vOutM}, {16*4608}, v{vOutM}',
 f's_mov_b32 s{sNL}, 0xbfb8aa3b', f's_mov_b32 s{sNL+1}, 0xbfb8aa3b']

cSw1 = 254
if FULL:
    deferred = [
     f's_mov_b32 s{sOut+2}, s{sNv}', f's_mov_b32 s{sOut+3}, 0x20000',
     f's_lshl_b32 s{sIt}, s{sT1}, 7', f's_add_u32 s{sIt}, s{sIt}, {PARM}',
     f'v_lshl_add_u32 v{vPar}, v14, 4, s{sIt}',
     f's_lshl_b32 s{sIt}, s{sT0}, 11', f's_add_u32 s{sIt}, s{sIt}, {STG}', f's_lshl_b32 s{sT2}, s{sT1}, 2',
     'v_lshrrev_b32 v15, 1, v14', f'v_or_b32 v15, s{sT2}, v15', f'v_and_b32 v{A0}, 7, v13', f'v_xor_b32 v15, v15, v{A0}',
     'v_lshlrev_b32 v15, 4, v15', 'v_lshl_add_u32 v15, v13, 7, v15', f'v_and_b32 v{A0}, 1, v14', f'v_lshl_add_u32 v15, v{A0}, 3, v15',
     f'v_add_u32 v{cSw}, s{sIt}, v15', f'v_xor_b32 v{cSw1}, 32, v{cSw}',
     f's_lshl_b32 s{sT2}, s{sT1}, 10', f's_add_u32 s{sIt}, s{sIt}, s{sT2}', f'v_lshl_add_u32 v{cSr}, v1, 4, s{sIt}',
     f's_lshl_b32 s{sT2}, s{sCt}, 7',
     f's_mul_i32 s{sIt}, s{sT0}, 20', f's_add_u32 s{sIt}, s{sIt}, s{sB0}', f's_mulk_i32 s{sIt}, 4608', f's_add_u32 s{sIt}, s{sIt}, s{sT2}',
     f'v_lshrrev_b32 v{A0}, 3, v1', 'v_and_b32 v15, 7, v1', f'v_xor_b32 v15, v15, v{A0}', f'v_lshl_add_u32 v15, v15, 4, s{sIt}',
     f's_lshl_b32 s{sT2}, s{sT1}, 3', f'v_add_u32 v{A0}, s{sT2}, v{A0}',
     f'v_mul_u32_u24 v{vOutM}, 1152, v{A0}', f'v_lshl_add_u32 v{vOut}, v{vOutM}, 2, v15',
     f'v_add_u32 v{vOutM}, v{vOutM}, v15', f'v_add_u32 v{vOutM}, {16*4608}, v{vOutM}',
     f's_mov_b32 s{sNL}, 0xbfb8aa3b', f's_mov_b32 s{sNL+1}, 0xbfb8aa3b']
    assert STG % 256 == 0

def rx(n, h, i):
    xo = XBASE + (n % 3)*XSLOT
    d = fx(h, i)
    if i < 4: return (f'ds_read_b128 v[{d}:{d+3}], v{vXa[h]} offset:{xo + i*5120}', d)
    return (f'ds_read_b128 v[{d}:{d+3}], v{vXm[i-4][h]} offset:{xo}', d)
def rw(n, h, k, t):
    d = fw(n & 1, h, k, t)
    off = (n % 3)*WSLOT + (h*3+k)*1024
    return [(f'ds_read_b64_tr_b16 v[{d+2*hp}:{d+2*hp+1}], v{vWa[t]} offset:{off + hp*512}', d) for hp in range(2)]
touched = set()
def tile_mfmas(n, tile):
    r = []
    for t in range(2):
        for h in range(2):
            for k in range(3):
                i = tile + k - 1 if tile < 4 else 4 + k
                if tile < 4 and not 0 <= i <= 3: continue
                r.append((acc(tile, t), fw(n & 1, h, k, t), fx(h, i)))
    return r
lds_q = []
mf_count = 0
AGE = int(opt.get('age', 6))
def lds(op):
    e(op[0]); lds_q.append((op[1], mf_count))
def wait_for(regs):
    idx = max((i for i, (d, _) in enumerate(lds_q) if d in regs), default=-1)
    if idx < 0: return False
    while idx + 1 < len(lds_q) and mf_count - lds_q[idx+1][1] >= AGE: idx += 1
    n = min(len(lds_q) - 1 - idx, 14)
    e(f's_waitcnt lgkmcnt({n})')
    del lds_q[:len(lds_q) - n]
    return True
def wait_all():
    e('s_waitcnt lgkmcnt(0)'); lds_q.clear()
def mfma(m):
    global mf_count
    a, A, B = m
    w = wait_for({A, B})
    c = f'v[{a}:{a+3}]' if a in touched else '0'
    touched.add(a)
    e(f'v_mfma_f32_16x16x32_bf16 v[{a}:{a+3}], v[{A}:{A+3}], v[{B}:{B+3}], {c}')
    mf_count += 1
    return w
def w_order(n):
    return [rw(n, h, k, t) for (t, h, k) in [(0,0,1),(0,0,2),(0,1,1),(0,1,2),(1,0,1),(1,0,2),(1,1,1),(1,1,2),(0,0,0),(0,1,0),(1,0,0),(1,1,0)]]
spin_sites = []
if STAMP:
    e(f's_mov_b32 s{sStamp+16}, 0')
    e(f's_mov_b32 s{sStamp+17}, 0')
NPAD = 0 if 'nopad' in opt else int(opt.get('npad', 2))
if NPAD:
    e('s_mov_b64 exec, 0')
    for p in range(NPAD):
        e(f's_branch L_pad{p}')
        e(f'L_ret{p}:')
    e('s_mov_b64 exec, -1')
stamp(1)
e('L_cpoll0:')
e('s_waitcnt lgkmcnt(0)')
e('s_barrier')
stamp(2)
cstamp(5)
par = [(f'ds_read_b128 v[{SC2}:{SC2+3}], v{vPar}', SC2), (f'ds_read_b128 v[{SC2+4}:{SC2+7}], v{vPar} offset:64', SC2),
       (f'ds_read_b128 v[{SH2}:{SH2+3}], v{vPar} offset:256', SC2), (f'ds_read_b128 v[{SH2+4}:{SH2+7}], v{vPar} offset:320', SC2)]
TO = [int(c) for c in opt.get('to', '03124')]
seq = [(n, m) for n in range(7) for tl in range(5) for m in tile_mfmas(n, tl)]
seq += [(7, m) for tl in range(4) for m in tile_mfmas(7, tl)]
head_end = len(seq) + 8
seq += [(8, m) for m in tile_mfmas(8, 0)] + [(7, m) for m in tile_mfmas(7, 4)] + [(8, m) for tl in TO[1:] for m in tile_mfmas(8, tl)]
def stage_reads(n):
    ops = [x for h in range(2) for k in range(3) for t in range(2) for x in rw(n, h, k, t)] + [rx(n, h, i) for h in range(2) for i in range(7)]
    res = []
    for op in ops:
        need = min(i for i, (s, m) in enumerate(seq) if s == n and op[1] in m[1:])
        prev = [i for i, (s, m) in enumerate(seq) if s < n and op[1] in m[1:]]
        res.append([need, (max(prev) + 1) if prev else -1, op])
    if n == 8: res += [[head_end + 2, -1, p] for p in par]
    res.sort(key=lambda r: r[0])
    return res
LEAD = int(opt.get('lead', 7))
Q = stage_reads(0)
def issue_reads(now, extra_deadline=None):
    cnt = 0
    while cnt < 2:
        el = [r for r in Q if r[1] <= now]
        if not el: break
        if cnt == 1:
            dl = lambda r: min(r[0] - LEAD, extra_deadline) if extra_deadline is not None else r[0] - LEAD
            if all(dl(r) - now > j for j, r in enumerate(Q)): break
        r = el[0]; Q.remove(r); lds(r[2]); cnt += 1
    return cnt > 0
for _ in range(int(opt.get('ni', 16))): lds(Q.pop(0)[2])
BG = [int(v) for v in opt.get('bg', '28,24,24,24,24,24,24,18').split(',')]
nb = 0
for i in range(head_end):
    if i == head_end - 8:
        stamp(3); cstamp(6)
    assert seq[i][0] <= nb and all(r[0] > i for r in Q), i
    mfma(seq[i][1])
    bat = 52*nb + BG[nb] if nb < 8 else None
    if bat is not None and i >= bat and not Q:
        wait_all(); e('s_barrier')
        if 'pst' in opt and nb < 7: e(f's_memrealtime s[{84+2*nb}:{85+2*nb}]' if nb < 6 else 's_memrealtime s[4:5]')
        nb += 1; Q = stage_reads(nb)
    elif issue_reads(i, None if bat is None else bat - 4): pass
    elif deferred: e(deferred.pop(0))
assert nb == 8 and not deferred
rest = [m for _, m in seq[head_end:]]
base = 12
done_at = {}
cnt = base
for tl in TO[1:]:
    cnt += len(tile_mfmas(8, tl)); done_at[tl] = cnt
emitted = 0
since = {0: 0}
def em(m):
    global emitted
    assert all(r[0] > head_end + emitted for r in Q)
    mfma(m); emitted += 1
    issue_reads(head_end + emitted - 1)
    for k in since: since[k] += 1
    for tl, at in done_at.items():
        if at == emitted: since[tl] = 0
def ev(x):
    if x == 's_waitcnt lgkmcnt(0)': wait_all()
    elif x.startswith('ds_'): lds((x, None))
    else: e(x)
    for k in since: since[k] += 1
def need(tl):
    while tl not in since: em(rest.pop(0))
    if tl == 0 and PK != 2:
        while since[0] < 3: em(rest.pop(0))
        assert all(r[2][1] != SC2 for r in Q)
        if not wait_for({SC2}): e('s_nop 0')
        return
    while since[tl] < 8:
        if rest: em(rest.pop(0))
        else:
            e(f's_nop {8 - since[tl] - 1}'); since[tl] = 8
    if tl == 0: wait_for({SC2})
def cost(ins):
    if 'exp' in ins or 'rcp' in ins: return 8
    if 'v_pk' in ins or 'v_fma' in ins: return 5
    return 4
def tile_ops(tile, Q):
    a0 = acc(tile, 0)
    def two(pkf, sf):
        return [('pk', pkf(i), [sf(i), sf(i+1)]) for i in range(0, 8, 2)]
    ops = []
    ops += two(lambda i: f'v_pk_fma_f32 v[{a0+i}:{a0+i+1}], v[{a0+i}:{a0+i+1}], v[{SC2+i}:{SC2+i+1}], v[{SH2+i}:{SH2+i+1}]',
               lambda i: f'v_fma_f32 v{a0+i}, v{a0+i}, v{SC2+i}, v{SH2+i}')
    ops += [('s', f'v_exp_f32 v{T+i}, v{a0+i}') for i in range(8)]
    ops += two(lambda i: f'v_pk_fma_f32 v[{T+i}:{T+i+1}], v[{T+i}:{T+i+1}], s[{sNL}:{sNL+1}], s[{sNL}:{sNL+1}]',
               lambda i: f'v_fma_f32 v{T+i}, v{T+i}, s{sNL}, s{sNL}')
    ops += [('s', f'v_rcp_f32 v{T+i}, v{T+i}') for i in range(8)]
    ops += two(lambda i: f'v_pk_mul_f32 v[{a0+i}:{a0+i+1}], v[{a0+i}:{a0+i+1}], v[{T+i}:{T+i+1}]',
               lambda i: f'v_mul_f32 v{a0+i}, v{a0+i}, v{T+i}')
    ops += [('s', f'v_cvt_pk_bf16_f32 v{P+i//2}, v{a0+i}, v{a0+i+1}') for i in range(0, 8, 2)]
    if FULL:
        cv = ops[-4:]
        ops = ops[:-4] + [cv[0], cv[1], cv[2], ('s', f'ds_write_b64 v{cSw}, v[{P}:{P+1}] offset:{tile*4096}'), cv[3],
                          ('s', f'ds_write_b64 v{cSw1}, v[{P+2}:{P+3}] offset:{tile*4096}')]
    else:
        ops += [('s', 's_nop 1'), ('s', f'v_permlane16_swap_b32 v{P}, v{P+2}'), ('s', f'v_permlane16_swap_b32 v{P+1}, v{P+3}'),
                ('s', f'ds_write_b128 v{cSw}, v[{P}:{P+3}]'), ('s', f'ds_read_b128 v[{Q}:{Q+3}], v{cSr}')]
    return ops
def tile_store(tile, Q):
    if tile < 4:
        return f'buffer_store_dwordx4 v[{Q}:{Q+3}], v{vOut}, s[{sOut}:{sOut+3}], 0 offen offset:{tile*1152} {STF}'
    return f'buffer_store_dwordx4 v[{Q}:{Q+3}], v{vOutM}, s[{sOut}:{sOut+3}], 0 offen {STL}'
pend = None
budget = 0
GAPV = int(opt.get('gapv', 8))
for n, tl in enumerate(TO):
    QR = Qs[n % 2]
    need(tl)
    if 't2st' in opt: e(f's_memtime s[{84+2*n}:{85+2*n}]')
    for i, op in enumerate(tile_ops(tl, QR)):
        if op[0] == 'pk':
            ins = [op[1]] if (PK == 2 or (PK == 1 and not rest)) else op[2]
        else:
            ins = [op[1]]
        for x in ins:
            ev(x); budget += cost(x)
            if rest and budget >= GAPV:
                em(rest.pop(0)); budget = 0
        if FULL:
            if pend is not None and i == 8:
                ev('s_waitcnt lgkmcnt(0)'); ev('s_barrier')
                ev(f'ds_read_b128 v[{pend[1]}:{pend[1]+3}], v{cSr} offset:{pend[0]*4096}')
            if pend is not None and i == 20:
                ev('s_waitcnt lgkmcnt(0)')
                ev(tile_store(*pend)); pend = None
        elif pend is not None and i == 12:
            ev('s_waitcnt lgkmcnt(0)')
            ev(tile_store(*pend)); pend = None
    pend = (tl, QR)
if 't2st' in opt: e('s_memtime s[94:95]')
if FULL:
    e('s_waitcnt lgkmcnt(0)'); e('s_barrier')
    e(f'ds_read_b128 v[{pend[1]}:{pend[1]+3}], v{cSr} offset:{pend[0]*4096}')
e('s_waitcnt lgkmcnt(0)')
e(tile_store(*pend))
stamp(4)
cstamp(7)
if 'pst' in opt or 't2st' in opt:
    e('s_waitcnt lgkmcnt(0)')
    if 't2st' in opt: e(f's_mov_b32 s4, s{sStamp+14}')
    e(f's_mov_b32 s{sStamp+18}, s84'); e(f's_mov_b32 s{sStamp+19}, s86')
    e(f's_mov_b32 s{sStamp+20}, s88'); e(f's_mov_b32 s{sStamp+21}, s90')
    e(f's_mov_b32 s{sStamp+22}, s92'); e(f's_mov_b32 s{sStamp+23}, s94')
    e(f's_mov_b32 s{sStamp+28}, s4'); e(f's_mov_b32 s{sStamp+29}, s4')
stamp_flush([0,1,2,3,4,5,6,7,8] + ([9,10,11,14] if ('pst' in opt or 't2st' in opt) else []))
e('s_endpgm')
for name, fidx in spin_sites:
    e(f'L_cspin{name}:')
    if STAMP: e(f's_add_u32 s{sStamp+16}, s{sStamp+16}, 1')
    e(poll(fidx))
    e('s_waitcnt lgkmcnt(0)')
    e(f'v_cmp_ne_u32 vcc, 0, v{cPoll}')
    e(f's_cbranch_vccnz L_cspin{name}')
    e(f's_branch L_cback{name}')
e('L_end:')
e('s_endpgm')

def render(lines):
    body = '\n'.join(lines)
    return HEADER + f'''; Override launch geometry by editing the next line (default: block=256,
; grid=ceil(out_elems/256), lds=0). Harness parses it; keep it on one line.
; @launch grid=({NWG},1,1) block=(512,1,1) lds={LDS_BYTES}
.amdgcn_target "amdgcn-amd-amdhsa--gfx950"
.text
.globl standalone__batchnorm__sampling_kernel
{'' if 'noal' in opt else '.p2align 12'}
.p2align 8
.type standalone__batchnorm__sampling_kernel,@function
standalone__batchnorm__sampling_kernel:
{body}
.section .rodata,"a"
.p2align 6
.amdhsa_kernel standalone__batchnorm__sampling_kernel
  .amdhsa_next_free_vgpr 256
  .amdhsa_next_free_sgpr 96
  .amdhsa_accum_offset 256
  .amdhsa_group_segment_fixed_size 0
  .amdhsa_kernarg_size 72
  .amdhsa_user_sgpr_count 2
  .amdhsa_user_sgpr_kernarg_segment_ptr 1
  .amdhsa_system_sgpr_workgroup_id_x 1
.end_amdhsa_kernel
'''
import subprocess, re, os
def offsets(lines):
    open('_g.s', 'w').write(render(lines))
    subprocess.run(['clang', '-x', 'assembler', '-target', 'amdgcn-amd-amdhsa', '-mcpu=gfx950', '-c', '_g.s', '-o', '_g.o'], check=True)
    d = subprocess.run(['llvm-objdump', '-d', '--mcpu=gfx950', '_g.o'], capture_output=True, text=True).stdout
    offs = [int(m.group(1), 16) for m in re.finditer(r'// ([0-9A-F]{12}):', d)]
    idx = [i for i, l in enumerate(lines) if l.startswith('    ')]
    assert len(offs) == len(idx), (len(offs), len(idx))
    return dict(zip(idx, offs))
if NPAD:
    KSTART = 0x300
    lines = out
    i0 = lines.index('L_cpoll0:')
    for p in range(NPAD):
        tmp = lines + [f'L_pad{q}:' for q in range(p, NPAD)] + ['    s_endpgm']
        offs = offsets(tmp)
        first = (offs[i0+1] + KSTART) // 4096
        bnd = 4096*(first + p + 1) - KSTART
        i = min(i for i, o in offs.items() if o >= bnd)
        lines = lines[:i] + [f'L_pad{p}:', f'    s_cbranch_execz L_ret{p}'] + lines[i:]
    out = lines
open(dst, 'w').write(render(out))
```

```python
import sys
opt = {}
dst = 'standalone__batchnorm__sampling.s'
for a in sys.argv[1:]:
    if a.startswith('--'):
        k, _, v = a[2:].partition('=')
        opt[k] = v if v else True
    else:
        dst = a
STAMP = 'stamp' in opt
AMP = None
if 'amp' in opt:
    AMP = tuple(int(v) for v in opt['amp'].split(',')); STAMP = True
MAP = opt.get('map', 'p4')
ORDER = opt.get('order', '013246578_120435768_201354687')
XNT = ' nt' if 'xnt' in opt else ''
STF = opt.get('stf', 'sc1').replace('+', ' ')
STL = opt.get('stl', STF).replace('+', ' ').replace('none', '')
PK = int(opt.get('pk', 1))
FLIP = MAP in ('p4', 'p5') and 'noflip' not in opt
LST = 'lst' in opt
NF0 = True
PERM = [int(c) for c in opt.get('perm', '102')]
CLS = PERM != [0, 1, 2]
sC = 49
PF = opt.get('ppos', 'mid')

out = []
def e(s=''):
    if 'nodma' in opt and s.startswith('buffer_load_dwordx4') and s.endswith('lds'): return
    out.append('    ' + s if s and not s.endswith(':') else s)

HEADER = open('standalone__batchnorm__sampling.s.ref').read().split('; Override launch')[0]

WSLOT = 24576
XSLOT = 20480 + 256
XBASE = 0
WBASE = XSLOT * 3
FLAGL = WBASE + WSLOT * 3
PARM = FLAGL + 1024
STG = PARM + 512
FULL = 'full' in opt
LDS_BYTES = STG + (20480 if FULL else 4096)
assert LDS_BYTES <= 163840
X_BYTES = 1024*4*576*2
W_BYTES = 3*576*576*2
TAP = 576*576*2
ROW = 1152

sX, sW, sOut = 20, 24, 28
sWave, sQ, sCt, sB0 = 32, 33, 34, 35
sT0, sT1, sT2, sT3 = 36, 37, 38, 39
sXl, sF, sWl, sK = 40, 41, 42, 43
sIt, sDX, sDW = 44, 45, 46
sSl, sFl = 47, 48
sOrd, sG, sKd, sKf = 16, 17, 18, 19
sNv = sX + 2
sStamp = 52
NST = 16
def stamp(i):
    if STAMP: e(f's_memrealtime s[{sStamp+2*i}:{sStamp+2*i+1}]')
def cstamp(i):
    if STAMP: e(f's_memtime s[{sStamp+2*i}:{sStamp+2*i+1}]')
def stamp_flush(used):
    if not STAMP: return
    e('s_waitcnt vmcnt(0) lgkmcnt(0)')
    stamp(NST-1)
    e(f's_memtime s[{sStamp+26}:{sStamp+27}]')
    e('s_waitcnt lgkmcnt(0)')
    if AMP is not None:
        e(f's_sub_u32 s3, s{sStamp+2*AMP[1]}, s{sStamp+2*AMP[0]}')
        e(f's_mul_i32 s3, s3, {AMP[3] if len(AMP) > 3 else 20}')
        e(f's_add_u32 s3, s3, s{sStamp+2*(NST-1)}')
        e('L_amp:')
        e('s_memrealtime s[4:5]')
        e('s_waitcnt lgkmcnt(0)')
        e('s_sub_u32 s6, s4, s3')
        e('s_cmp_lt_i32 s6, 0')
        e('s_cbranch_scc1 L_amp')
        return
    e(f's_lshl_b32 s3, s2, 3')
    e(f's_add_u32 s3, s3, s{sWave}')
    e('s_add_u32 s3, s3, 4')
    e(f's_mul_i32 s3, s3, {NST*8}')
    e('v_mov_b32 v0, s3')
    e('s_mov_b64 exec, 1')
    for i in used + [12, 13, NST-1]:
        e(f'v_mov_b32 v2, s{sStamp+2*i}')
        e(f'v_mov_b32 v3, s{sStamp+2*i+1}')
        e(f'global_store_dwordx2 v0, v[2:3], s[50:51] offset:{8*i}')
        e('s_nop 1')
def div_small(dstr, src_, d, maxv):
    for sh in range(4, 16):
        m = -(-(1 << sh) // d)
        if m <= 64 and all((t*m) >> sh == t // d for t in range(maxv+1)):
            e(f's_mul_i32 s{dstr}, s{src_}, {m}')
            e(f's_lshr_b32 s{dstr}, s{dstr}, {sh}')
            return
    assert 0
def pack(order): return sum(s << (4*i) for i, s in enumerate(order))
orders = [[int(ch) for ch in o] for o in ORDER.split('_')]
for g, o in enumerate(orders): assert sorted(o) == list(range(9)), o
assert len(orders) == 3
FIRST_IS_G = all(o[0] == g for g, o in enumerate(orders))
FIRST_IS_0 = all(o[0] == 0 for o in orders)
assert FIRST_IS_G or FIRST_IS_0

e(f's_load_dwordx2 s[{sW}:{sW+1}], s[0:1], 8')
e(f's_load_dwordx2 s[{sX}:{sX+1}], s[0:1], 0')
if PF == 'front': e('s_load_dwordx8 s[8:15], s[0:1], 16')
if STAMP:
    stamp(0)
    e(f's_memtime s[{sStamp+24}:{sStamp+25}]')
e(f's_lshr_b32 s{sT1}, s2, 3')
if 'nocpf' not in opt:
    e('s_getpc_b64 s[30:31]')
    e('L_pc:')
    e('v_and_b32 v2, 0x180, v0')
    e(f'v_lshl_add_u32 v2, s{sT1}, 9, v2')
    e('v_min_u32 v2, L_end-L_pc, v2')
    e('global_load_dword v255, v2, s[30:31]')
e('v_readfirstlane_b32 s3, v0')
e(f's_and_b32 s{sT0}, s2, 7')
if MAP == 'p3':
    NWG = 240
    e(f's_mul_i32 s{sT2}, s{sT0}, 27')
    e(f's_mul_i32 s{sT3}, s{sT0}, 3')
    e(f's_addk_i32 s{sT3}, {216-27}')
    e(f's_cmp_ge_u32 s{sT1}, 27')
    e(f's_cselect_b32 s{sT2}, s{sT3}, s{sT2}')
    e(f's_add_u32 s{sT2}, s{sT2}, s{sT1}')
    e(f's_cmp_ge_u32 s{sT1}, 30')
    e(f's_cselect_b32 s{sT2}, -1, s{sT2}')
    e(f's_cmpk_ge_u32 s{sT2}, 234')
    e('s_cbranch_scc1 L_end')
    div_small(sQ, sT2, 9, 233)
    e(f's_mul_i32 s{sT0}, s{sQ}, 9')
    e(f's_sub_u32 s{sCt}, s{sT2}, s{sT0}')
    e(f's_mul_i32 s{sB0}, s{sQ}, 40')
    e(f's_mov_b32 s{sNv}, {X_BYTES}')
elif MAP == 'p5':
    NWG = 256
    nL, nR = (int(v) for v in opt.get('n', '39,37').split(','))
    nBL = -(-(1024 - 24*nL) // 3); nBR = -(-(1024 - 24*nR) // 4)
    assert max(nL, nR, nBL, nBR) <= 40
    def P(M, ncol, c0, n, lim):
        assert all((j*M) >> 8 == j // ncol for j in range(lim))
        return M | ncol << 8 | c0 << 12 | n << 16 | lim << 24
    e(f's_mul_i32 s{sB0}, s{sT0}, {6*nL}')
    e(f's_mul_i32 s{sT2}, s{sT0}, {8*nR}')
    e(f's_sub_u32 s{sT2}, s{sT2}, {32*nR}')
    e(f's_cmp_lt_u32 s{sT0}, 4')
    e(f's_cselect_b32 s{sB0}, s{sB0}, s{sT2}')
    e(f's_mov_b32 s{sT2}, {P(64, 4, 5, nR, 32)}')
    e(f's_cselect_b32 s{sT2}, {P(52, 5, 0, nL, 30)}, s{sT2}')
    e(f's_cmp_lg_u32 s{sT0}, 7')
    e('s_cbranch_scc1 L_mp')
    e(f's_sub_u32 s{sT3}, s{sT1}, 15')
    e(f's_cselect_b32 s{sT1}, s{sT1}, s{sT3}')
    e(f's_cselect_b32 s{sB0}, {24*nL}, s{sB0}')
    e(f's_mov_b32 s{sT2}, {P(64, 4, 5, nBR, 16)}')
    e(f's_cselect_b32 s{sT2}, {P(52, 5, 0, nBL, 15)}, s{sT2}')
    e('L_mp:')
    e(f's_lshr_b32 s{sT0}, s{sT2}, 24')
    e(f's_cmp_ge_u32 s{sT1}, s{sT0}')
    e('s_cbranch_scc1 L_end')
    e(f's_and_b32 s{sQ}, s{sT2}, 0xff')
    e(f's_mul_i32 s{sQ}, s{sQ}, s{sT1}')
    e(f's_lshr_b32 s{sQ}, s{sQ}, 8')
    e(f's_bfe_u32 s{sT0}, s{sT2}, 0x40008')
    e(f's_mul_i32 s{sT0}, s{sT0}, s{sQ}')
    e(f's_sub_u32 s{sCt}, s{sT1}, s{sT0}')
    e(f's_bfe_u32 s{sT0}, s{sT2}, 0x4000c')
    e(f's_add_u32 s{sCt}, s{sCt}, s{sT0}')
    e(f's_bfe_u32 s{sT3}, s{sT2}, 0x80010')
    e(f's_mul_i32 s{sT0}, s{sQ}, s{sT3}')
    e(f's_add_u32 s{sB0}, s{sB0}, s{sT0}')
    e(f's_add_u32 s{sNv}, s{sB0}, s{sT3}')
    e(f's_min_u32 s{sNv}, s{sNv}, 0x400')
    e(f's_mulk_i32 s{sNv}, 4608')
else:
    NWG = 256
    def P(M, ncol, lim, c0):
        assert all((j*M) >> 8 == j // ncol for j in range(lim))
        return M | ncol << 8 | lim << 16 | c0 << 24
    e(f's_mul_i32 s{sB0}, s{sT0}, 60')
    e(f's_mul_i32 s{sT2}, s{sT0}, 80')
    e(f's_sub_u32 s{sT2}, s{sT2}, 320')
    e(f's_cmp_lt_u32 s{sT0}, 4')
    e(f's_cselect_b32 s{sB0}, s{sB0}, s{sT2}')
    e(f's_mov_b32 s{sT2}, {P(64, 4, 32, 5)}')
    e(f's_cselect_b32 s{sT2}, {P(52, 5, 30, 0)}, s{sT2}')
    e(f's_cmp_eq_u32 s{sT0}, 7')
    BR = int(opt.get('br', 2))
    e(f's_cselect_b32 s{sT2}, {P(29, 9, 9*BR, 0)}, s{sT2}')
    e(f's_cselect_b32 s{sT3}, {int(opt.get("bn", -(-64//BR)))}, 40')
    e(f's_bfe_u32 s{sT0}, s{sT2}, 0x80010')
    e(f's_cmp_ge_u32 s{sT1}, s{sT0}')
    e('s_cbranch_scc1 L_help' if 'help' in opt else 's_cbranch_scc1 L_end')
    e(f's_and_b32 s{sQ}, s{sT2}, 0xff')
    e(f's_mul_i32 s{sQ}, s{sQ}, s{sT1}')
    e(f's_lshr_b32 s{sQ}, s{sQ}, 8')
    e(f's_bfe_u32 s{sT0}, s{sT2}, 0x80008')
    e(f's_mul_i32 s{sT0}, s{sT0}, s{sQ}')
    e(f's_sub_u32 s{sCt}, s{sT1}, s{sT0}')
    e(f's_lshr_b32 s{sT2}, s{sT2}, 24')
    e(f's_add_u32 s{sCt}, s{sCt}, s{sT2}')
    e(f's_mul_i32 s{sT0}, s{sQ}, s{sT3}')
    e(f's_lshl2_add_u32 s{sB0}, s{sB0}, s{sT0}')
    e(f's_add_u32 s{sNv}, s{sB0}, s{sT3}')
    e(f's_min_u32 s{sNv}, s{sNv}, 0x400')
    e(f's_mulk_i32 s{sNv}, 4608')
if FLIP:
    e(f's_lshr_b32 s{sF}, 0x38, s{sQ}')
    e(f's_and_b32 s{sF}, s{sF}, 1')
e(f's_lshr_b32 s{sWave}, s3, 6')
e('v_and_b32 v1, 63, v0')
e(f's_cmp_ge_u32 s{sWave}, 4')
e('s_cbranch_scc1 L_consumer')

vX = [10, 11, 12, 13, 14]
vW = [15, 16, 17]
vOOB = 18
vP = 20
e(f's_add_u32 s{sG}, s{sQ}, s{sCt}')
div_small(sT1, sG, 3, 40)
e('v_lshrrev_b32 v2, 3, v1')
e(f's_mul_i32 s{sT1}, s{sT1}, 3')
e('v_and_b32 v3, 7, v1')
e(f's_sub_u32 s{sG}, s{sG}, s{sT1}')
sG0 = sG
if CLS:
    e(f's_and_b32 s{sC}, s2, 7')
    e(f's_cmp_eq_u32 s{sC}, 7')
    e(f's_cselect_b32 s{sC}, 31, 0x1e0')
    e(f's_lshr_b32 s{sC}, s{sC}, s{sCt}')
    e(f's_and_b32 s{sC}, s{sC}, 1')
    if PERM[0]:
        sG0 = sOrd
        e(f's_mul_i32 s{sG0}, s{sC}, {3*PERM[0]}')
        if FIRST_IS_G: e(f's_add_u32 s{sG0}, s{sG0}, s{sG}')
        FIRST_IS_G = True
e('v_and_b32 v9, 2, v2')
e(f's_and_b32 s{sT2}, s{sWave}, 1')
e('v_mul_u32_u24 v8, 1152, v2')
e(f's_lshl_b32 s{sT3}, s{sT2}, 2')
e('v_xor_b32 v9, v9, v3')
e(f's_mul_i32 s{sT0}, s{sWave}, 72')
e(f'v_xor_b32 v9, s{sT3}, v9')
e(f's_add_u32 s{sT0}, s{sT0}, s{sCt}')
e('v_lshl_add_u32 v9, v9, 4, v8')
e(f's_lshl_b32 s{sT0}, s{sT0}, 7')
e(f's_mov_b32 s{sW+2}, {W_BYTES}')
e(f'v_add_u32 v{vW[0]}, s{sT0}, v9')
e(f's_mov_b32 s{sW+3}, 0x20000')
e(f'v_add_u32 v{vW[1]}, {TAP-1024}, v{vW[0]}')
if FIRST_IS_G:
    if FLIP:
        e(f's_lshl1_add_u32 s{sK}, s{sG0}, s{sF}')
        e(f's_mul_i32 s{sK}, s{sK}, {32*ROW}')
    else:
        e(f's_mul_i32 s{sK}, s{sG0}, {64*ROW}')
else:
    e(f's_mul_i32 s{sK}, s{sF}, {32*ROW}' if FLIP else f's_mov_b32 s{sK}, 0')
e(f'v_add_u32 v{vW[2]}, {2*TAP-2048}, v{vW[0]}')
e(f's_mul_i32 s{sWl}, s{sWave}, 6144')
e('v_lshrrev_b32 v4, 4, v1')
e(f's_add_u32 s{sWl}, s{sWl}, {WBASE}')
e('v_xor_b32 v5, v3, v4')
e(f's_mov_b32 m0, s{sWl}')
e('v_lshlrev_b32 v5, 4, v5')
e(f's_mov_b32 s{sX+3}, s{sW+3}')
e('v_lshl_add_u32 v6, v8, 2, v5')
LST_OFF = False
def lstamp(lane_expr):
    if str(opt.get('lamp')) == str(lane_expr): e('s_memrealtime s[70:71]')
    if LST and not (LST_OFF and lane_expr != 30):
        e('s_memrealtime s[92:93]')
        e('s_waitcnt lgkmcnt(0)')
        e(f's_mov_b32 s95, {lane_expr}')
        e('v_mov_b32 v31, s92')
        e('v_cmp_eq_u32 vcc, s95, v1')
        e('s_nop 1')
        e('v_cndmask_b32 v30, v30, v31, vcc')
def dw(tap): e(f'buffer_load_dwordx4 v{vW[tap]}, s[{sW}:{sW+3}], s{sK} offen' + (f' offset:{tap*1024}' if tap else '') + ' lds')
def dx(i): e(f'buffer_load_dwordx4 v{vX[i]}, s[{sX}:{sX+3}], s{sT0} offen' + (f' offset:{i*1024}' if 0 < i < 4 else '') + f'{XNT} lds')
def ld_flag():
    e(f's_mov_b32 m0, s{sFl}')
    e('s_mov_b64 exec, 1')
    e(f'buffer_load_dword v{vOOB}, s[{sW}:{sW+3}], 0 offen lds')
    e('s_mov_b64 exec, -1')
    e(f's_add_u32 s{sFl}, s{sFl}, 16')
e('s_waitcnt lgkmcnt(0)')
if LST:
    e(f'v_mov_b32 v30, s{sStamp}')
lstamp(2)
def par_load(lab):
    e(f's_cmp_lg_u32 s{sWave}, 3')
    e(f's_cbranch_scc1 {lab}')
    e(f's_lshl_b32 s{sT1}, s{sCt}, 7')
    e(f'v_lshl_add_u32 v{vP+4}, v1, 1, s{sT1}')
    if PF != 'front': e('s_waitcnt lgkmcnt(0)')
    for p in range(4):
        e(f'global_load_ushort v{vP+p}, v{vP+4}, s[{8+2*p}:{9+2*p}]')
    e(f'{lab}:')
if PF == 'front': par_load('L_lnop')
dw(0)
e(f's_lshl2_add_u32 s{sT1}, s{sB0}, s{sWave}')
e(f's_mulk_i32 s{sT1}, 1152')
if not NF0: e(f's_lshl_b32 s{sFl}, s{sWave}, 2')
dw(1)
e(f'v_add_u32 v{vX[0]}, s{sT1}, v6')
e(f's_mul_i32 s{sXl}, s{sWave}, 5120')
e(f'v_xor_b32 v{vX[1]}, 64, v{vX[0]}')
e(f's_lshl_b32 s{sT0}, s{sG0}, 7' if FIRST_IS_G else f's_mov_b32 s{sT0}, 0')
dw(2)
e(f's_mov_b32 m0, s{sXl}')
e(f'v_add_u32 v{vX[1]}, {8*4608-1024}, v{vX[1]}')
dx(0)
e(f'v_add_u32 v{vX[2]}, {20*4608-2048}, v{vX[0]}')
e(f's_lshr_b32 s{sT1}, s{sWave}, 1')
if not NF0: e(f's_add_u32 s{sFl}, s{sFl}, {FLAGL}')
dx(1)
e(f'v_add_u32 v{vX[3]}, {20*4608-2048}, v{vX[1]}')
e(f's_mul_i32 s{sT1}, s{sT1}, 10')
e(f's_add_u32 s{sT1}, s{sT1}, s{sT2}')
if not NF0: e(f'v_lshl_add_u32 v2, v1, 4, s{sFl}')
if not NF0: e(f'v_bfrev_b32 v{vOOB}, 2')
dx(2)
if not NF0: e(f'ds_write_b32 v2, v{vOOB}')
e(f's_lshl1_add_u32 s{sT1}, s{sT1}, s{sB0}')
e(f's_add_u32 s{sT1}, s{sT1}, 16')
e(f's_mulk_i32 s{sT1}, 4608')
e(f's_lshl_b32 s{sT3}, s{sT2}, 6')
dx(3)
e(f'v_xor_b32 v9, s{sT3}, v5')
e(f's_add_u32 m0, s{sXl}, 4096')
e(f'v_add3_u32 v{vX[4]}, v9, v8, s{sT1}')
dx(4)
if not NF0:
    e('s_waitcnt lgkmcnt(0)')
    ld_flag()
lstamp(4)
if FLIP:
    e(f's_mul_i32 s{sKf}, s{sF}, {32*ROW}')
    e(f's_lshl_b32 s{sKd}, s{sKf}, 1')
    e(f's_sub_u32 s{sKd}, {32*ROW}, s{sKd}')
KD = f's{sKd}' if FLIP else f'{32*ROW}'
e(f's_add_u32 m0, s{sWl}, 3072')
e(f's_add_u32 s{sK}, s{sK}, {KD}')
dw(0); dw(1); dw(2)
if not NF0: ld_flag()
if PF != 'front': e('s_load_dwordx8 s[8:15], s[0:1], 16')
lstamp(6)
if 'l0' in opt:
    for i, vm in enumerate((13, 12, 10, 8, 5, 1)):
        e(f's_waitcnt vmcnt({vm})')
        lstamp(8 + 2*i)
    LST_OFF = True
if not NF0: e('s_barrier')
if 'sched' not in opt:
    allo = list(orders)
    if CLS:
        allo += [[3*PERM[s//3] + s % 3 for s in o] for o in orders]
        e(f's_mul_i32 s{sC}, s{sC}, 3')
        e(f's_add_u32 s{sG}, s{sG}, s{sC}')
    ps = [pack(o[1:]) for o in allo]
    e(f's_mov_b32 s{sOrd}, {ps[0]}')
    for g in range(1, len(allo)):
        e(f's_cmp_eq_u32 s{sG}, {g}')
        e(f's_cselect_b32 s{sOrd}, {ps[g]}, s{sOrd}')
if PF == 'mid': par_load('L_lnop')
if 'sched' not in opt:
    e(f's_mov_b32 s{sIt}, 1')
    e(f's_mov_b32 s{sSl}, 0')
def advance():
    e(f's_add_u32 s{sSl}, s{sSl}, 1')
    e(f's_cmp_eq_u32 s{sSl}, 3')
    e(f's_cselect_b32 s{sSl}, 0, s{sSl}')
    e(f's_mov_b32 s{sDX}, {XSLOT}')
    e(f's_cselect_b32 s{sDX}, {(-2*XSLOT) & 0xffffffff}, s{sDX}')
    e(f's_mov_b32 s{sDW}, {WSLOT}')
    e(f's_cselect_b32 s{sDW}, {(-2*WSLOT) & 0xffffffff}, s{sDW}')
    e(f's_add_u32 s{sXl}, s{sXl}, s{sDX}')
    e(f's_add_u32 s{sWl}, s{sWl}, s{sDW}')
    e(f's_and_b32 s{sK}, s{sOrd}, 15')
    e(f's_lshl_b32 s{sT0}, s{sK}, 7')
    e(f's_mul_i32 s{sK}, s{sK}, {64*ROW}')
    if FLIP: e(f's_add_u32 s{sK}, s{sK}, s{sKf}')
    e(f's_lshr_b32 s{sOrd}, s{sOrd}, 4')
def issue_x():
    e(f's_mov_b32 m0, s{sXl}')
    e('s_nop 0')
    for i in range(4): dx(i)
    e(f's_add_u32 m0, s{sXl}, 4096')
    e('s_nop 0')
    dx(4)
def issue_w(ks):
    if ks:
        e(f's_add_u32 m0, s{sWl}, 3072')
        e(f's_add_u32 s{sK}, s{sK}, {KD}')
    else:
        e(f's_mov_b32 m0, s{sWl}')
        e('s_nop 0')
    for tap in range(3): dw(tap)
e('L_lloop:')
advance()
e(f's_mov_b32 m0, s{sXl}')
E0 = int(opt.get('e0', 0))
if E0 < 6:
    e(f's_cmp_lt_u32 s{sIt}, {3 + E0}')
    e('s_cbranch_scc1 L_lfree')
    e('s_waitcnt vmcnt(11)')
    e('s_barrier')
    e('L_lfree:')
else:
    e('s_nop 0')
for i in range(4): dx(i)
e(f's_add_u32 m0, s{sXl}, 4096')
e(f's_add_u32 s{sIt}, s{sIt}, 1')
dx(4)
issue_w(0)
e(f's_cmp_gt_u32 s{sIt}, {2 + E0}')
e('s_cbranch_scc1 L_lnb')
e('s_waitcnt vmcnt(8)')
e('s_barrier')
e('L_lnb:')
issue_w(1)
e(f's_cmp_lt_u32 s{sIt}, 9')
e('s_cbranch_scc1 L_lloop')
def par_compute():
    for p in range(4):
        e(f'v_lshlrev_b32 v{vP+p}, 16, v{vP+p}')
    e(f'v_add_f32 v{vP+1}, 0x3727c5ac, v{vP+1}')
    e(f'v_rsq_f32 v{vP+1}, v{vP+1}')
    e(f'v_mul_f32 v{vP+2}, 0xbfb8aa3b, v{vP+2}')
    e(f'v_mul_f32 v{vP+3}, 0xbfb8aa3b, v{vP+3}')
    e(f'v_mul_f32 v{vP+2}, v{vP+1}, v{vP+2}')
    e(f'v_fma_f32 v{vP+3}, -v{vP}, v{vP+2}, v{vP+3}')
    e('v_lshlrev_b32 v2, 2, v1')
    e(f'v_add_u32 v2, {PARM}, v2')
def par_write():
    e(f'ds_write_b32 v2, v{vP+2}')
    e(f'ds_write_b32 v2, v{vP+3} offset:256')
e('s_waitcnt vmcnt(11)')
e('s_barrier')
e(f's_cmp_lg_u32 s{sWave}, 3')
e('s_cbranch_scc1 L_lfin')
par_compute()
e('s_waitcnt vmcnt(0)')
par_write()
e('L_lfin:')
e('s_waitcnt vmcnt(0) lgkmcnt(0)')
e('s_barrier')
if 'lamp' in opt:
    e('s_waitcnt lgkmcnt(0)')
    e(f's_sub_u32 s3, s70, s{sStamp}')
    e('s_mul_i32 s3, s3, 100')
    e(f's_add_u32 s3, s3, s{sStamp}')
    e('s_add_u32 s3, s3, 2000')
    e('L_lamp:')
    e('s_memrealtime s[4:5]')
    e('s_waitcnt lgkmcnt(0)')
    e('s_sub_u32 s6, s4, s3')
    e('s_cmp_lt_i32 s6, 0')
    e('s_cbranch_scc1 L_lamp')
if LST:
    lstamp(30)
    e('s_load_dwordx2 s[50:51], s[0:1], 64')
    e(f's_lshl_b32 s3, s2, 3')
    e(f's_add_u32 s3, s3, s{sWave}')
    e(f's_mul_i32 s3, s3, {NST*8}')
    e('v_lshl_add_u32 v0, v1, 2, s3')
    e('v_and_b32 v2, 1, v1')
    e('v_cmp_eq_u32 vcc, 0, v2')
    e('s_nop 1')
    e('v_cndmask_b32 v30, 0, v30, vcc')
    e('s_waitcnt lgkmcnt(0)')
    e('s_mov_b64 exec, 0xffffffff')
    e('global_store_dword v0, v30, s[50:51]')
e('s_endpgm')

if 'help' in opt:
    HS = [int(c) for c in str(opt['help'])]
    e('L_help:')
    e(f's_cmp_ge_u32 s{sT1}, 32')
    e('s_cbranch_scc1 L_end')
    e(f's_sub_u32 s{sT1}, s{sT1}, s{sT0}')
    e(f's_and_b32 s{sT0}, s2, 7')
    e(f's_min_u32 s{sT0}, s{sT0}, 4')
    e(f's_lshl1_add_u32 s{sT1}, s{sT0}, s{sT1}')
    e(f's_lshr_b32 s{sWave}, s3, 6')
    e(f's_lshl3_add_u32 s{sT1}, s{sT1}, s{sWave}')
    e('v_and_b32 v1, 63, v0')
    e(f's_mov_b32 s{sX+2}, {X_BYTES}')
    e(f's_mov_b32 s{sX+3}, 0x20000')
    e(f's_movk_i32 s{sK}, 128')
    e(f'v_lshl_add_u32 v2, s{sT1}, 6, v1')
    e('v_mul_u32_u24 v2, 1152, v2')
    e(f's_cmp_lt_u32 s{sT1}, 64')
    e('s_waitcnt lgkmcnt(0)')
    e('s_cbranch_scc1 L_hgo')
    e(f's_sub_u32 s{sT1}, s{sT1}, 64')
    div_small(sT0, sT1, 9, 40)
    e(f's_mul_i32 s{sT2}, s{sT0}, {TAP//128 - 576}')
    e(f's_lshl_b32 s{sT1}, s{sT1}, 6')
    e(f's_add_u32 s{sT1}, s{sT1}, s{sT2}')
    e(f'v_add_u32 v2, s{sT1}, v1')
    e('v_lshlrev_b32 v2, 7, v2')
    e(f's_mov_b32 s{sX}, s{sW}')
    e(f's_mov_b32 s{sX+1}, s{sW+1}')
    e(f's_mov_b32 s{sX+2}, {W_BYTES}')
    e(f's_mov_b32 s{sK}, {64*ROW}')
    e('L_hgo:')
    for i, st in enumerate(HS):
        e(f's_mul_i32 s{sT0}, s{sK}, {st}')
        e(f'buffer_load_dword v{4+i}, v2, s[{sX}:{sX+3}], s{sT0} offen')
        if i + 1 < len(HS): e('s_barrier')
    e('s_waitcnt vmcnt(0)')
    e('s_endpgm')

e('L_consumer:')
e('s_load_dwordx2 s[28:29], s[0:1], 48')
if STAMP: e('s_load_dwordx2 s[50:51], s[0:1], 64')
e('s_setprio 3')
vXa = [2, 3]; vXm = [[4, 5], [252, 253], [6, 7]]
vWa = [8, 9]
vOut = 10; vOutM = 11
vPar = 12
ACC = 16
WB = [56, 104]; XB = 152
SC2 = 212; SH2 = 220
T = 228; P = 236; Qs = [240, 244]
cFl, cPoll, cSw, cSr = 248, 249, 250, 251
def acc(tile, t): return ACC + (tile*2 + t)*4
def fx(h, i): return XB + (h*7 + i)*4
def fw(buf, h, k, t): return WB[buf] + ((h*3 + k)*2 + t)*4
A0, A1, A2 = T, T+1, T+2
e('v_and_b32 v13, 15, v1')
e('v_lshrrev_b32 v14, 4, v1')
for r in range(4):
    e(f'v_mov_b32 v{ACC+r}, 0')
e('v_min_u32 v15, 2, v14')
e(f'v_mul_u32_u24 v15, {XSLOT}, v15')
e('v_lshl_add_u32 v15, v13, 4, v15')
e(f'ds_write_b128 v15, v[{ACC}:{ACC+3}] offset:{XBASE+20480}')
e(f's_sub_u32 s{sWave}, s{sWave}, 4')
e(f's_lshr_b32 s{sT0}, s{sWave}, 1')
e(f's_and_b32 s{sT1}, s{sWave}, 1')
if not NF0:
    e('v_and_b32 v15, 3, v1')
    e('v_lshlrev_b32 v15, 2, v15')
    e(f'v_add_u32 v{cFl}, {FLAGL}, v15')
GX = 14
if FLIP:
    GX = A2 + 1
    e(f's_lshl_b32 s{sIt}, s{sF}, 2')
    e(f'v_xor_b32 v{GX}, s{sIt}, v14')
e(f's_lshl_b32 s{sT3}, s{sT0}, 11')
e('v_lshrrev_b32 v15, 1, v13')
e(f'v_xor_b32 v15, v15, v{GX}')
e('v_lshlrev_b32 v15, 4, v15')
e('v_lshl_add_u32 v15, v13, 7, v15')
e(f'v_add_u32 v{vXa[0]}, s{sT3}, v15')
e(f'v_xor_b32 v{vXa[1]}, 64, v{vXa[0]}')
e(f's_mul_i32 s{sIt}, s{sT0}, 10240')
e(f's_add_u32 s{sIt}, s{sIt}, 4096')
e(f'v_lshrrev_b32 v{A2}, 3, v13')
e(f'v_lshl_add_u32 v{A2}, v{A2}, 12, s{sIt}')
e(f'v_add_u32 v{vXm[1][0]}, v{A2}, v15')
e(f'v_xor_b32 v{vXm[1][1]}, 64, v{vXm[1][0]}')
for k in (0, 2):
    regs = vXm[k]
    e(f'v_add_u32 v15, {1 if k==2 else 3}, v13')
    e(f'v_bfi_b32 v15, 3, v15, v13')
    e(f'v_lshrrev_b32 v{A0}, 1, v15')
    e(f'v_xor_b32 v{A0}, v{A0}, v{GX}')
    e(f'v_lshlrev_b32 v{A0}, 4, v{A0}')
    e(f'v_lshl_add_u32 v{A0}, v15, 7, v{A0}')
    e(f'v_add_u32 v{A1}, v{A2}, v{A0}')
    e(f'v_and_b32 v{A0}, 0xff, v{A0}')
    e('v_and_b32 v15, 3, v13')
    e(f'v_cmp_eq_u32 vcc, {0 if k==0 else 3}, v15')
    e(f'v_add_u32 v{A0}, {XBASE+20480}, v{A0}')
    e('s_nop 0')
    e(f'v_cndmask_b32 v{regs[0]}, v{A1}, v{A0}, vcc')
    e(f'v_xor_b32 v{regs[1]}, 64, v{regs[0]}')
e('v_lshrrev_b32 v15, 2, v13')
e(f'v_mul_u32_u24 v{A0}, 6144, v14')
e(f'v_lshl_add_u32 v{A0}, v15, 7, v{A0}')
e('v_lshrrev_b32 v15, 1, v15')
e(f'v_and_b32 v{A1}, 1, v14')
e(f'v_lshl_add_u32 v15, v{A1}, 1, v15')
e(f's_lshl_b32 s{sIt}, s{sT1}, 1')
e(f'v_xor_b32 v15, s{sIt}, v15')
e(f'v_lshl_add_u32 v{A0}, v15, 5, v{A0}')
e('v_and_b32 v15, 3, v13')
e(f'v_lshl_add_u32 v{A0}, v15, 3, v{A0}')
e(f'v_add_u32 v{vWa[0]}, {WBASE}, v{A0}')
e(f'v_xor_b32 v{vWa[1]}, 32, v{vWa[0]}')
assert WBASE % 256 == 0
if not NF0:
    e('s_waitcnt lgkmcnt(0)')
    e('s_barrier')
sNL = 46
deferred = [
 f's_mov_b32 s{sOut+2}, s{sNv}', f's_mov_b32 s{sOut+3}, 0x20000',
 f's_lshl_b32 s{sIt}, s{sT1}, 7', f's_add_u32 s{sIt}, s{sIt}, {PARM}',
 f'v_lshl_add_u32 v{vPar}, v14, 4, s{sIt}',
 f's_lshl_b32 s{sIt}, s{sWave}, 10', f's_add_u32 s{sIt}, s{sIt}, {STG}',
 'v_and_b32 v15, 1, v14', 'v_lshlrev_b32 v15, 1, v15', f'v_lshrrev_b32 v{A0}, 1, v14', f'v_or_b32 v15, v15, v{A0}',
 f'v_bfe_u32 v{A0}, v13, 1, 2', f'v_xor_b32 v15, v15, v{A0}', 'v_lshlrev_b32 v15, 4, v15', 'v_lshl_add_u32 v15, v13, 6, v15',
 f'v_add_u32 v{cSw}, s{sIt}, v15', f'v_lshl_add_u32 v{cSr}, v1, 4, s{sIt}',
 f's_lshl_b32 s{sT2}, s{sCt}, 7', f's_lshl_b32 s{sT3}, s{sT1}, 6', f's_add_u32 s{sT2}, s{sT2}, s{sT3}',
 f's_mul_i32 s{sIt}, s{sT0}, 20', f's_add_u32 s{sIt}, s{sIt}, s{sB0}', f's_mulk_i32 s{sIt}, 4608', f's_add_u32 s{sIt}, s{sIt}, s{sT2}',
 'v_bfe_u32 v15, v1, 3, 2', f'v_and_b32 v{A0}, 3, v1', f'v_xor_b32 v15, v15, v{A0}', f'v_lshl_add_u32 v15, v15, 4, s{sIt}',
 f'v_lshrrev_b32 v{A0}, 2, v1', f'v_mul_u32_u24 v{vOutM}, 1152, v{A0}', f'v_lshl_add_u32 v{vOut}, v{vOutM}, 2, v15',
 f'v_add_u32 v{vOutM}, v{vOutM}, v15', f'v_add_u32 v{vOutM}, {16*4608}, v{vOutM}',
 f's_mov_b32 s{sNL}, 0xbfb8aa3b', f's_mov_b32 s{sNL+1}, 0xbfb8aa3b']

cSw1 = 254
if FULL:
    deferred = [
     f's_mov_b32 s{sOut+2}, s{sNv}', f's_mov_b32 s{sOut+3}, 0x20000',
     f's_lshl_b32 s{sIt}, s{sT1}, 7', f's_add_u32 s{sIt}, s{sIt}, {PARM}',
     f'v_lshl_add_u32 v{vPar}, v14, 4, s{sIt}',
     f's_lshl_b32 s{sIt}, s{sT0}, 11', f's_add_u32 s{sIt}, s{sIt}, {STG}', f's_lshl_b32 s{sT2}, s{sT1}, 2',
     'v_lshrrev_b32 v15, 1, v14', f'v_or_b32 v15, s{sT2}, v15', f'v_and_b32 v{A0}, 7, v13', f'v_xor_b32 v15, v15, v{A0}',
     'v_lshlrev_b32 v15, 4, v15', 'v_lshl_add_u32 v15, v13, 7, v15', f'v_and_b32 v{A0}, 1, v14', f'v_lshl_add_u32 v15, v{A0}, 3, v15',
     f'v_add_u32 v{cSw}, s{sIt}, v15', f'v_xor_b32 v{cSw1}, 32, v{cSw}',
     f's_lshl_b32 s{sT2}, s{sT1}, 10', f's_add_u32 s{sIt}, s{sIt}, s{sT2}', f'v_lshl_add_u32 v{cSr}, v1, 4, s{sIt}',
     f's_lshl_b32 s{sT2}, s{sCt}, 7',
     f's_mul_i32 s{sIt}, s{sT0}, 20', f's_add_u32 s{sIt}, s{sIt}, s{sB0}', f's_mulk_i32 s{sIt}, 4608', f's_add_u32 s{sIt}, s{sIt}, s{sT2}',
     f'v_lshrrev_b32 v{A0}, 3, v1', 'v_and_b32 v15, 7, v1', f'v_xor_b32 v15, v15, v{A0}', f'v_lshl_add_u32 v15, v15, 4, s{sIt}',
     f's_lshl_b32 s{sT2}, s{sT1}, 3', f'v_add_u32 v{A0}, s{sT2}, v{A0}',
     f'v_mul_u32_u24 v{vOutM}, 1152, v{A0}', f'v_lshl_add_u32 v{vOut}, v{vOutM}, 2, v15',
     f'v_add_u32 v{vOutM}, v{vOutM}, v15', f'v_add_u32 v{vOutM}, {16*4608}, v{vOutM}',
     f's_mov_b32 s{sNL}, 0xbfb8aa3b', f's_mov_b32 s{sNL+1}, 0xbfb8aa3b']
    assert STG % 256 == 0

def rx(n, h, i):
    xo = XBASE + (n % 3)*XSLOT
    d = fx(h, i)
    if i < 4: return (f'ds_read_b128 v[{d}:{d+3}], v{vXa[h]} offset:{xo + i*5120}', d)
    return (f'ds_read_b128 v[{d}:{d+3}], v{vXm[i-4][h]} offset:{xo}', d)
def rw(n, h, k, t):
    d = fw(n & 1, h, k, t)
    off = (n % 3)*WSLOT + (h*3+k)*1024
    return [(f'ds_read_b64_tr_b16 v[{d+2*hp}:{d+2*hp+1}], v{vWa[t]} offset:{off + hp*512}', d) for hp in range(2)]
touched = set()
def tile_mfmas(n, tile):
    r = []
    for t in range(2):
        for h in range(2):
            for k in range(3):
                i = tile + k - 1 if tile < 4 else 4 + k
                if tile < 4 and not 0 <= i <= 3: continue
                r.append((acc(tile, t), fw(n & 1, h, k, t), fx(h, i)))
    return r
lds_q = []
mf_count = 0
AGE = int(opt.get('age', 6))
def lds(op):
    e(op[0]); lds_q.append((op[1], mf_count))
def wait_for(regs):
    idx = max((i for i, (d, _) in enumerate(lds_q) if d in regs), default=-1)
    if idx < 0: return False
    while idx + 1 < len(lds_q) and mf_count - lds_q[idx+1][1] >= AGE: idx += 1
    n = min(len(lds_q) - 1 - idx, 14)
    e(f's_waitcnt lgkmcnt({n})')
    del lds_q[:len(lds_q) - n]
    return True
def wait_all():
    e('s_waitcnt lgkmcnt(0)'); lds_q.clear()
def mfma(m):
    global mf_count
    a, A, B = m
    w = wait_for({A, B})
    c = f'v[{a}:{a+3}]' if a in touched else '0'
    touched.add(a)
    e(f'v_mfma_f32_16x16x32_bf16 v[{a}:{a+3}], v[{A}:{A+3}], v[{B}:{B+3}], {c}')
    mf_count += 1
    return w
def w_order(n):
    return [rw(n, h, k, t) for (t, h, k) in [(0,0,1),(0,0,2),(0,1,1),(0,1,2),(1,0,1),(1,0,2),(1,1,1),(1,1,2),(0,0,0),(0,1,0),(1,0,0),(1,1,0)]]
spin_sites = []
if STAMP:
    e(f's_mov_b32 s{sStamp+16}, 0')
    e(f's_mov_b32 s{sStamp+17}, 0')
NPAD = 0 if 'nopad' in opt else int(opt.get('npad', 2))
if NPAD:
    e('s_mov_b64 exec, 0')
    for p in range(NPAD):
        e(f's_branch L_pad{p}')
        e(f'L_ret{p}:')
    e('s_mov_b64 exec, -1')
stamp(1)
e('L_cpoll0:')
e('s_waitcnt lgkmcnt(0)')
e('s_barrier')
stamp(2)
cstamp(5)
par = [(f'ds_read_b128 v[{SC2}:{SC2+3}], v{vPar}', SC2), (f'ds_read_b128 v[{SC2+4}:{SC2+7}], v{vPar} offset:64', SC2),
       (f'ds_read_b128 v[{SH2}:{SH2+3}], v{vPar} offset:256', SC2), (f'ds_read_b128 v[{SH2+4}:{SH2+7}], v{vPar} offset:320', SC2)]
TO = [int(c) for c in opt.get('to', '03124')]
seq = [(n, m) for n in range(7) for tl in range(5) for m in tile_mfmas(n, tl)]
seq += [(7, m) for tl in range(4) for m in tile_mfmas(7, tl)]
head_end = len(seq) + 8
seq += [(8, m) for m in tile_mfmas(8, 0)] + [(7, m) for m in tile_mfmas(7, 4)] + [(8, m) for tl in TO[1:] for m in tile_mfmas(8, tl)]
def stage_reads(n):
    ops = [x for h in range(2) for k in range(3) for t in range(2) for x in rw(n, h, k, t)] + [rx(n, h, i) for h in range(2) for i in range(7)]
    res = []
    for op in ops:
        need = min(i for i, (s, m) in enumerate(seq) if s == n and op[1] in m[1:])
        prev = [i for i, (s, m) in enumerate(seq) if s < n and op[1] in m[1:]]
        res.append([need, (max(prev) + 1) if prev else -1, op])
    if n == 8: res += [[head_end + 2, -1, p] for p in par]
    res.sort(key=lambda r: r[0])
    return res
LEAD = int(opt.get('lead', 7))
Q = stage_reads(0)
def issue_reads(now, extra_deadline=None):
    cnt = 0
    while cnt < 2:
        el = [r for r in Q if r[1] <= now]
        if not el: break
        if cnt == 1:
            dl = lambda r: min(r[0] - LEAD, extra_deadline) if extra_deadline is not None else r[0] - LEAD
            if all(dl(r) - now > j for j, r in enumerate(Q)): break
        r = el[0]; Q.remove(r); lds(r[2]); cnt += 1
    return cnt > 0
for _ in range(int(opt.get('ni', 16))): lds(Q.pop(0)[2])
BG = [int(v) for v in opt.get('bg', '28,24,24,24,24,24,24,18').split(',')]
nb = 0
for i in range(head_end):
    if i == head_end - 8:
        stamp(3); cstamp(6)
    assert seq[i][0] <= nb and all(r[0] > i for r in Q), i
    mfma(seq[i][1])
    bat = 52*nb + BG[nb] if nb < 8 else None
    if bat is not None and i >= bat and not Q:
        wait_all(); e('s_barrier')
        if 'pst' in opt and nb < 7: e(f's_memrealtime s[{84+2*nb}:{85+2*nb}]' if nb < 6 else 's_memrealtime s[4:5]')
        nb += 1; Q = stage_reads(nb)
    elif issue_reads(i, None if bat is None else bat - 4): pass
    elif deferred: e(deferred.pop(0))
assert nb == 8 and not deferred
rest = [m for _, m in seq[head_end:]]
base = 12
done_at = {}
cnt = base
for tl in TO[1:]:
    cnt += len(tile_mfmas(8, tl)); done_at[tl] = cnt
emitted = 0
since = {0: 0}
def em(m):
    global emitted
    assert all(r[0] > head_end + emitted for r in Q)
    mfma(m); emitted += 1
    issue_reads(head_end + emitted - 1)
    for k in since: since[k] += 1
    for tl, at in done_at.items():
        if at == emitted: since[tl] = 0
def ev(x):
    if x == 's_waitcnt lgkmcnt(0)': wait_all()
    elif x.startswith('ds_'): lds((x, None))
    else: e(x)
    for k in since: since[k] += 1
def need(tl):
    while tl not in since: em(rest.pop(0))
    if tl == 0 and PK != 2:
        while since[0] < 3: em(rest.pop(0))
        assert all(r[2][1] != SC2 for r in Q)
        if not wait_for({SC2}): e('s_nop 0')
        return
    while since[tl] < 8:
        if rest: em(rest.pop(0))
        else:
            e(f's_nop {8 - since[tl] - 1}'); since[tl] = 8
    if tl == 0: wait_for({SC2})
def cost(ins):
    if 'exp' in ins or 'rcp' in ins: return 8
    if 'v_pk' in ins or 'v_fma' in ins: return 5
    return 4
def tile_ops(tile, Q):
    a0 = acc(tile, 0)
    def two(pkf, sf):
        return [('pk', pkf(i), [sf(i), sf(i+1)]) for i in range(0, 8, 2)]
    ops = []
    ops += two(lambda i: f'v_pk_fma_f32 v[{a0+i}:{a0+i+1}], v[{a0+i}:{a0+i+1}], v[{SC2+i}:{SC2+i+1}], v[{SH2+i}:{SH2+i+1}]',
               lambda i: f'v_fma_f32 v{a0+i}, v{a0+i}, v{SC2+i}, v{SH2+i}')
    ops += [('s', f'v_exp_f32 v{T+i}, v{a0+i}') for i in range(8)]
    ops += two(lambda i: f'v_pk_fma_f32 v[{T+i}:{T+i+1}], v[{T+i}:{T+i+1}], s[{sNL}:{sNL+1}], s[{sNL}:{sNL+1}]',
               lambda i: f'v_fma_f32 v{T+i}, v{T+i}, s{sNL}, s{sNL}')
    ops += [('s', f'v_rcp_f32 v{T+i}, v{T+i}') for i in range(8)]
    ops += two(lambda i: f'v_pk_mul_f32 v[{a0+i}:{a0+i+1}], v[{a0+i}:{a0+i+1}], v[{T+i}:{T+i+1}]',
               lambda i: f'v_mul_f32 v{a0+i}, v{a0+i}, v{T+i}')
    ops += [('s', f'v_cvt_pk_bf16_f32 v{P+i//2}, v{a0+i}, v{a0+i+1}') for i in range(0, 8, 2)]
    if FULL:
        cv = ops[-4:]
        ops = ops[:-4] + [cv[0], cv[1], cv[2], ('s', f'ds_write_b64 v{cSw}, v[{P}:{P+1}] offset:{tile*4096}'), cv[3],
                          ('s', f'ds_write_b64 v{cSw1}, v[{P+2}:{P+3}] offset:{tile*4096}')]
    else:
        ops += [('s', 's_nop 1'), ('s', f'v_permlane16_swap_b32 v{P}, v{P+2}'), ('s', f'v_permlane16_swap_b32 v{P+1}, v{P+3}'),
                ('s', f'ds_write_b128 v{cSw}, v[{P}:{P+3}]'), ('s', f'ds_read_b128 v[{Q}:{Q+3}], v{cSr}')]
    return ops
def tile_store(tile, Q):
    if tile < 4:
        return f'buffer_store_dwordx4 v[{Q}:{Q+3}], v{vOut}, s[{sOut}:{sOut+3}], 0 offen offset:{tile*1152} {STF}'
    return f'buffer_store_dwordx4 v[{Q}:{Q+3}], v{vOutM}, s[{sOut}:{sOut+3}], 0 offen {STL}'
pend = None
budget = 0
GAPV = int(opt.get('gapv', 8))
for n, tl in enumerate(TO):
    QR = Qs[n % 2]
    need(tl)
    if 't2st' in opt: e(f's_memtime s[{84+2*n}:{85+2*n}]')
    for i, op in enumerate(tile_ops(tl, QR)):
        if op[0] == 'pk':
            ins = [op[1]] if (PK == 2 or (PK == 1 and not rest)) else op[2]
        else:
            ins = [op[1]]
        for x in ins:
            ev(x); budget += cost(x)
            if rest and budget >= GAPV:
                em(rest.pop(0)); budget = 0
        if FULL:
            if pend is not None and i == 8:
                ev('s_waitcnt lgkmcnt(0)'); ev('s_barrier')
                ev(f'ds_read_b128 v[{pend[1]}:{pend[1]+3}], v{cSr} offset:{pend[0]*4096}')
            if pend is not None and i == 20:
                ev('s_waitcnt lgkmcnt(0)')
                ev(tile_store(*pend)); pend = None
        elif pend is not None and i == 12:
            ev('s_waitcnt lgkmcnt(0)')
            ev(tile_store(*pend)); pend = None
    pend = (tl, QR)
if 't2st' in opt: e('s_memtime s[94:95]')
if FULL:
    e('s_waitcnt lgkmcnt(0)'); e('s_barrier')
    e(f'ds_read_b128 v[{pend[1]}:{pend[1]+3}], v{cSr} offset:{pend[0]*4096}')
e('s_waitcnt lgkmcnt(0)')
e(tile_store(*pend))
stamp(4)
cstamp(7)
if 'pst' in opt or 't2st' in opt:
    e('s_waitcnt lgkmcnt(0)')
    if 't2st' in opt: e(f's_mov_b32 s4, s{sStamp+14}')
    e(f's_mov_b32 s{sStamp+18}, s84'); e(f's_mov_b32 s{sStamp+19}, s86')
    e(f's_mov_b32 s{sStamp+20}, s88'); e(f's_mov_b32 s{sStamp+21}, s90')
    e(f's_mov_b32 s{sStamp+22}, s92'); e(f's_mov_b32 s{sStamp+23}, s94')
    e(f's_mov_b32 s{sStamp+28}, s4'); e(f's_mov_b32 s{sStamp+29}, s4')
stamp_flush([0,1,2,3,4,5,6,7,8] + ([9,10,11,14] if ('pst' in opt or 't2st' in opt) else []))
e('s_endpgm')
for name, fidx in spin_sites:
    e(f'L_cspin{name}:')
    if STAMP: e(f's_add_u32 s{sStamp+16}, s{sStamp+16}, 1')
    e(poll(fidx))
    e('s_waitcnt lgkmcnt(0)')
    e(f'v_cmp_ne_u32 vcc, 0, v{cPoll}')
    e(f's_cbranch_vccnz L_cspin{name}')
    e(f's_branch L_cback{name}')
e('L_end:')
e('s_endpgm')

def render(lines):
    body = '\n'.join(lines)
    return HEADER + f'''; Override launch geometry by editing the next line (default: block=256,
; grid=ceil(out_elems/256), lds=0). Harness parses it; keep it on one line.
; @launch grid=({NWG},1,1) block=(512,1,1) lds={LDS_BYTES}
.amdgcn_target "amdgcn-amd-amdhsa--gfx950"
.text
.globl standalone__batchnorm__sampling_kernel
{'' if 'noal' in opt else '.p2align 12'}
.p2align 8
.type standalone__batchnorm__sampling_kernel,@function
standalone__batchnorm__sampling_kernel:
{body}
.section .rodata,"a"
.p2align 6
.amdhsa_kernel standalone__batchnorm__sampling_kernel
  .amdhsa_next_free_vgpr 256
  .amdhsa_next_free_sgpr 96
  .amdhsa_accum_offset 256
  .amdhsa_group_segment_fixed_size 0
  .amdhsa_kernarg_size 72
  .amdhsa_user_sgpr_count 2
  .amdhsa_user_sgpr_kernarg_segment_ptr 1
  .amdhsa_system_sgpr_workgroup_id_x 1
.end_amdhsa_kernel
'''
import subprocess, re, os
def offsets(lines):
    open('_g.s', 'w').write(render(lines))
    subprocess.run(['clang', '-x', 'assembler', '-target', 'amdgcn-amd-amdhsa', '-mcpu=gfx950', '-c', '_g.s', '-o', '_g.o'], check=True)
    d = subprocess.run(['llvm-objdump', '-d', '--mcpu=gfx950', '_g.o'], capture_output=True, text=True).stdout
    offs = [int(m.group(1), 16) for m in re.finditer(r'// ([0-9A-F]{12}):', d)]
    idx = [i for i, l in enumerate(lines) if l.startswith('    ')]
    assert len(offs) == len(idx), (len(offs), len(idx))
    return dict(zip(idx, offs))
if NPAD:
    KSTART = 0x300
    lines = out
    i0 = lines.index('L_cpoll0:')
    for p in range(NPAD):
        tmp = lines + [f'L_pad{q}:' for q in range(p, NPAD)] + ['    s_endpgm']
        offs = offsets(tmp)
        first = (offs[i0+1] + KSTART) // 4096
        bnd = 4096*(first + p + 1) - KSTART
        i = min(i for i, o in offs.items() if o >= bnd)
        lines = lines[:i] + [f'L_pad{p}:', f'    s_cbranch_execz L_ret{p}'] + lines[i:]
    out = lines
open(dst, 'w').write(render(out))
```

```python
import sys
opt = {}
dst = 'standalone__batchnorm__sampling.s'
for a in sys.argv[1:]:
    if a.startswith('--'):
        k, _, v = a[2:].partition('=')
        opt[k] = v if v else True
    else:
        dst = a
STAMP = 'stamp' in opt
AMP = None
if 'amp' in opt:
    AMP = tuple(int(v) for v in opt['amp'].split(',')); STAMP = True
MAP = opt.get('map', 'p4')
ORDER = opt.get('order', '013246578_120435768_201354687')
XNT = ' nt' if 'xnt' in opt else ''
STF = opt.get('stf', 'sc1').replace('+', ' ')
STL = opt.get('stl', STF).replace('+', ' ').replace('none', '')
PK = int(opt.get('pk', 1))
FLIP = MAP in ('p4', 'p5') and 'noflip' not in opt
LST = 'lst' in opt
NF0 = True
PERM = [int(c) for c in opt.get('perm', '102')]
CLS = PERM != [0, 1, 2]
sC = 49
PF = opt.get('ppos', 'mid')

out = []
def e(s=''):
    if 'nodma' in opt and s.startswith('buffer_load_dwordx4') and s.endswith('lds'): return
    out.append('    ' + s if s and not s.endswith(':') else s)

HEADER = open('standalone__batchnorm__sampling.s.ref').read().split('; Override launch')[0]

WSLOT = 24576
XSLOT = 20480 + 256
XBASE = 0
WBASE = XSLOT * 3
FLAGL = WBASE + WSLOT * 3
PARM = FLAGL + 1024
STG = PARM + 512
FULL = 'full' in opt
B64 = 'b64' in opt
LDS_BYTES = STG + (20480 if FULL else 4096)
assert LDS_BYTES <= 163840
X_BYTES = 1024*4*576*2
W_BYTES = 3*576*576*2
TAP = 576*576*2
ROW = 1152

sX, sW, sOut = 20, 24, 28
sWave, sQ, sCt, sB0 = 32, 33, 34, 35
sT0, sT1, sT2, sT3 = 36, 37, 38, 39
sXl, sF, sWl, sK = 40, 41, 42, 43
sIt, sDX, sDW = 44, 45, 46
sSl, sFl = 47, 48
sOrd, sG, sKd, sKf = 16, 17, 18, 19
sNv = sX + 2
sStamp = 52
NST = 16
def stamp(i):
    if STAMP: e(f's_memrealtime s[{sStamp+2*i}:{sStamp+2*i+1}]')
def cstamp(i):
    if STAMP: e(f's_memtime s[{sStamp+2*i}:{sStamp+2*i+1}]')
def stamp_flush(used):
    if not STAMP: return
    e('s_waitcnt vmcnt(0) lgkmcnt(0)')
    stamp(NST-1)
    e(f's_memtime s[{sStamp+26}:{sStamp+27}]')
    e('s_waitcnt lgkmcnt(0)')
    if AMP is not None:
        e(f's_sub_u32 s3, s{sStamp+2*AMP[1]}, s{sStamp+2*AMP[0]}')
        e(f's_mul_i32 s3, s3, {AMP[3] if len(AMP) > 3 else 20}')
        e(f's_add_u32 s3, s3, s{sStamp+2*(NST-1)}')
        e('L_amp:')
        e('s_memrealtime s[4:5]')
        e('s_waitcnt lgkmcnt(0)')
        e('s_sub_u32 s6, s4, s3')
        e('s_cmp_lt_i32 s6, 0')
        e('s_cbranch_scc1 L_amp')
        return
    e(f's_lshl_b32 s3, s2, 3')
    e(f's_add_u32 s3, s3, s{sWave}')
    e('s_add_u32 s3, s3, 4')
    e(f's_mul_i32 s3, s3, {NST*8}')
    e('v_mov_b32 v0, s3')
    e('s_mov_b64 exec, 1')
    for i in used + [12, 13, NST-1]:
        e(f'v_mov_b32 v2, s{sStamp+2*i}')
        e(f'v_mov_b32 v3, s{sStamp+2*i+1}')
        e(f'global_store_dwordx2 v0, v[2:3], s[50:51] offset:{8*i}')
        e('s_nop 1')
def div_small(dstr, src_, d, maxv):
    for sh in range(4, 16):
        m = -(-(1 << sh) // d)
        if m <= 64 and all((t*m) >> sh == t // d for t in range(maxv+1)):
            e(f's_mul_i32 s{dstr}, s{src_}, {m}')
            e(f's_lshr_b32 s{dstr}, s{dstr}, {sh}')
            return
    assert 0
def pack(order): return sum(s << (4*i) for i, s in enumerate(order))
orders = [[int(ch) for ch in o] for o in ORDER.split('_')]
for g, o in enumerate(orders): assert sorted(o) == list(range(9)), o
assert len(orders) == 3
FIRST_IS_G = all(o[0] == g for g, o in enumerate(orders))
FIRST_IS_0 = all(o[0] == 0 for o in orders)
assert FIRST_IS_G or FIRST_IS_0

e(f's_load_dwordx2 s[{sW}:{sW+1}], s[0:1], 8')
e(f's_load_dwordx2 s[{sX}:{sX+1}], s[0:1], 0')
if PF == 'front': e('s_load_dwordx8 s[8:15], s[0:1], 16')
if STAMP:
    stamp(0)
    e(f's_memtime s[{sStamp+24}:{sStamp+25}]')
e(f's_lshr_b32 s{sT1}, s2, 3')
if 'nocpf' not in opt:
    e('s_getpc_b64 s[30:31]')
    e('L_pc:')
    e('v_and_b32 v2, 0x180, v0')
    e(f'v_lshl_add_u32 v2, s{sT1}, 9, v2')
    e('v_min_u32 v2, L_end-L_pc, v2')
    e('global_load_dword v255, v2, s[30:31]')
e('v_readfirstlane_b32 s3, v0')
e(f's_and_b32 s{sT0}, s2, 7')
if MAP == 'p3':
    NWG = 240
    e(f's_mul_i32 s{sT2}, s{sT0}, 27')
    e(f's_mul_i32 s{sT3}, s{sT0}, 3')
    e(f's_addk_i32 s{sT3}, {216-27}')
    e(f's_cmp_ge_u32 s{sT1}, 27')
    e(f's_cselect_b32 s{sT2}, s{sT3}, s{sT2}')
    e(f's_add_u32 s{sT2}, s{sT2}, s{sT1}')
    e(f's_cmp_ge_u32 s{sT1}, 30')
    e(f's_cselect_b32 s{sT2}, -1, s{sT2}')
    e(f's_cmpk_ge_u32 s{sT2}, 234')
    e('s_cbranch_scc1 L_end')
    div_small(sQ, sT2, 9, 233)
    e(f's_mul_i32 s{sT0}, s{sQ}, 9')
    e(f's_sub_u32 s{sCt}, s{sT2}, s{sT0}')
    e(f's_mul_i32 s{sB0}, s{sQ}, 40')
    e(f's_mov_b32 s{sNv}, {X_BYTES}')
elif MAP == 'p5':
    NWG = 256
    nL, nR = (int(v) for v in opt.get('n', '39,37').split(','))
    nBL = -(-(1024 - 24*nL) // 3); nBR = -(-(1024 - 24*nR) // 4)
    assert max(nL, nR, nBL, nBR) <= 40
    def P(M, ncol, c0, n, lim):
        assert all((j*M) >> 8 == j // ncol for j in range(lim))
        return M | ncol << 8 | c0 << 12 | n << 16 | lim << 24
    e(f's_mul_i32 s{sB0}, s{sT0}, {6*nL}')
    e(f's_mul_i32 s{sT2}, s{sT0}, {8*nR}')
    e(f's_sub_u32 s{sT2}, s{sT2}, {32*nR}')
    e(f's_cmp_lt_u32 s{sT0}, 4')
    e(f's_cselect_b32 s{sB0}, s{sB0}, s{sT2}')
    e(f's_mov_b32 s{sT2}, {P(64, 4, 5, nR, 32)}')
    e(f's_cselect_b32 s{sT2}, {P(52, 5, 0, nL, 30)}, s{sT2}')
    e(f's_cmp_lg_u32 s{sT0}, 7')
    e('s_cbranch_scc1 L_mp')
    e(f's_sub_u32 s{sT3}, s{sT1}, 15')
    e(f's_cselect_b32 s{sT1}, s{sT1}, s{sT3}')
    e(f's_cselect_b32 s{sB0}, {24*nL}, s{sB0}')
    e(f's_mov_b32 s{sT2}, {P(64, 4, 5, nBR, 16)}')
    e(f's_cselect_b32 s{sT2}, {P(52, 5, 0, nBL, 15)}, s{sT2}')
    e('L_mp:')
    e(f's_lshr_b32 s{sT0}, s{sT2}, 24')
    e(f's_cmp_ge_u32 s{sT1}, s{sT0}')
    e('s_cbranch_scc1 L_end')
    e(f's_and_b32 s{sQ}, s{sT2}, 0xff')
    e(f's_mul_i32 s{sQ}, s{sQ}, s{sT1}')
    e(f's_lshr_b32 s{sQ}, s{sQ}, 8')
    e(f's_bfe_u32 s{sT0}, s{sT2}, 0x40008')
    e(f's_mul_i32 s{sT0}, s{sT0}, s{sQ}')
    e(f's_sub_u32 s{sCt}, s{sT1}, s{sT0}')
    e(f's_bfe_u32 s{sT0}, s{sT2}, 0x4000c')
    e(f's_add_u32 s{sCt}, s{sCt}, s{sT0}')
    e(f's_bfe_u32 s{sT3}, s{sT2}, 0x80010')
    e(f's_mul_i32 s{sT0}, s{sQ}, s{sT3}')
    e(f's_add_u32 s{sB0}, s{sB0}, s{sT0}')
    e(f's_add_u32 s{sNv}, s{sB0}, s{sT3}')
    e(f's_min_u32 s{sNv}, s{sNv}, 0x400')
    e(f's_mulk_i32 s{sNv}, 4608')
else:
    NWG = 256
    def P(M, ncol, lim, c0):
        assert all((j*M) >> 8 == j // ncol for j in range(lim))
        return M | ncol << 8 | lim << 16 | c0 << 24
    e(f's_mul_i32 s{sB0}, s{sT0}, 60')
    e(f's_mul_i32 s{sT2}, s{sT0}, 80')
    e(f's_sub_u32 s{sT2}, s{sT2}, 320')
    e(f's_cmp_lt_u32 s{sT0}, 4')
    e(f's_cselect_b32 s{sB0}, s{sB0}, s{sT2}')
    e(f's_mov_b32 s{sT2}, {P(64, 4, 32, 5)}')
    e(f's_cselect_b32 s{sT2}, {P(52, 5, 30, 0)}, s{sT2}')
    e(f's_cmp_eq_u32 s{sT0}, 7')
    BR = int(opt.get('br', 2))
    e(f's_cselect_b32 s{sT2}, {P(29, 9, 9*BR, 0)}, s{sT2}')
    e(f's_cselect_b32 s{sT3}, {int(opt.get("bn", -(-64//BR)))}, 40')
    e(f's_bfe_u32 s{sT0}, s{sT2}, 0x80010')
    e(f's_cmp_ge_u32 s{sT1}, s{sT0}')
    e('s_cbranch_scc1 L_help' if 'help' in opt else 's_cbranch_scc1 L_end')
    e(f's_and_b32 s{sQ}, s{sT2}, 0xff')
    e(f's_mul_i32 s{sQ}, s{sQ}, s{sT1}')
    e(f's_lshr_b32 s{sQ}, s{sQ}, 8')
    e(f's_bfe_u32 s{sT0}, s{sT2}, 0x80008')
    e(f's_mul_i32 s{sT0}, s{sT0}, s{sQ}')
    e(f's_sub_u32 s{sCt}, s{sT1}, s{sT0}')
    e(f's_lshr_b32 s{sT2}, s{sT2}, 24')
    e(f's_add_u32 s{sCt}, s{sCt}, s{sT2}')
    e(f's_mul_i32 s{sT0}, s{sQ}, s{sT3}')
    e(f's_lshl2_add_u32 s{sB0}, s{sB0}, s{sT0}')
    e(f's_add_u32 s{sNv}, s{sB0}, s{sT3}')
    e(f's_min_u32 s{sNv}, s{sNv}, 0x400')
    e(f's_mulk_i32 s{sNv}, 4608')
if FLIP:
    e(f's_lshr_b32 s{sF}, 0x38, s{sQ}')
    e(f's_and_b32 s{sF}, s{sF}, 1')
e(f's_lshr_b32 s{sWave}, s3, 6')
e('v_and_b32 v1, 63, v0')
e(f's_cmp_ge_u32 s{sWave}, 4')
e('s_cbranch_scc1 L_consumer')

vX = [10, 11, 12, 13, 14]
vW = [15, 16, 17]
vOOB = 18
vP = 20
e(f's_add_u32 s{sG}, s{sQ}, s{sCt}')
div_small(sT1, sG, 3, 40)
e('v_lshrrev_b32 v2, 3, v1')
e(f's_mul_i32 s{sT1}, s{sT1}, 3')
e('v_and_b32 v3, 7, v1')
e(f's_sub_u32 s{sG}, s{sG}, s{sT1}')
sG0 = sG
if CLS:
    e(f's_and_b32 s{sC}, s2, 7')
    e(f's_cmp_eq_u32 s{sC}, 7')
    e(f's_cselect_b32 s{sC}, 31, 0x1e0')
    e(f's_lshr_b32 s{sC}, s{sC}, s{sCt}')
    e(f's_and_b32 s{sC}, s{sC}, 1')
    if PERM[0]:
        sG0 = sOrd
        e(f's_mul_i32 s{sG0}, s{sC}, {3*PERM[0]}')
        if FIRST_IS_G: e(f's_add_u32 s{sG0}, s{sG0}, s{sG}')
        FIRST_IS_G = True
e('v_and_b32 v9, 2, v2')
e(f's_and_b32 s{sT2}, s{sWave}, 1')
e('v_mul_u32_u24 v8, 1152, v2')
e(f's_lshl_b32 s{sT3}, s{sT2}, 2')
e('v_xor_b32 v9, v9, v3')
e(f's_mul_i32 s{sT0}, s{sWave}, 72')
e(f'v_xor_b32 v9, s{sT3}, v9')
e(f's_add_u32 s{sT0}, s{sT0}, s{sCt}')
e('v_lshl_add_u32 v9, v9, 4, v8')
e(f's_lshl_b32 s{sT0}, s{sT0}, 7')
e(f's_mov_b32 s{sW+2}, {W_BYTES}')
e(f'v_add_u32 v{vW[0]}, s{sT0}, v9')
e(f's_mov_b32 s{sW+3}, 0x20000')
e(f'v_add_u32 v{vW[1]}, {TAP-1024}, v{vW[0]}')
if FIRST_IS_G:
    if FLIP:
        e(f's_lshl1_add_u32 s{sK}, s{sG0}, s{sF}')
        e(f's_mul_i32 s{sK}, s{sK}, {32*ROW}')
    else:
        e(f's_mul_i32 s{sK}, s{sG0}, {64*ROW}')
else:
    e(f's_mul_i32 s{sK}, s{sF}, {32*ROW}' if FLIP else f's_mov_b32 s{sK}, 0')
e(f'v_add_u32 v{vW[2]}, {2*TAP-2048}, v{vW[0]}')
e(f's_mul_i32 s{sWl}, s{sWave}, 6144')
e('v_lshrrev_b32 v4, 4, v1')
e(f's_add_u32 s{sWl}, s{sWl}, {WBASE}')
e('v_xor_b32 v5, v3, v4')
e(f's_mov_b32 m0, s{sWl}')
e('v_lshlrev_b32 v5, 4, v5')
e(f's_mov_b32 s{sX+3}, s{sW+3}')
e('v_lshl_add_u32 v6, v8, 2, v5')
LST_OFF = False
def lstamp(lane_expr):
    if str(opt.get('lamp')) == str(lane_expr): e('s_memrealtime s[70:71]')
    if LST and not (LST_OFF and lane_expr != 30):
        e('s_memrealtime s[92:93]')
        e('s_waitcnt lgkmcnt(0)')
        e(f's_mov_b32 s95, {lane_expr}')
        e('v_mov_b32 v31, s92')
        e('v_cmp_eq_u32 vcc, s95, v1')
        e('s_nop 1')
        e('v_cndmask_b32 v30, v30, v31, vcc')
def dw(tap): e(f'buffer_load_dwordx4 v{vW[tap]}, s[{sW}:{sW+3}], s{sK} offen' + (f' offset:{tap*1024}' if tap else '') + ' lds')
def dx(i): e(f'buffer_load_dwordx4 v{vX[i]}, s[{sX}:{sX+3}], s{sT0} offen' + (f' offset:{i*1024}' if 0 < i < 4 else '') + f'{XNT} lds')
def ld_flag():
    e(f's_mov_b32 m0, s{sFl}')
    e('s_mov_b64 exec, 1')
    e(f'buffer_load_dword v{vOOB}, s[{sW}:{sW+3}], 0 offen lds')
    e('s_mov_b64 exec, -1')
    e(f's_add_u32 s{sFl}, s{sFl}, 16')
e('s_waitcnt lgkmcnt(0)')
if LST:
    e(f'v_mov_b32 v30, s{sStamp}')
lstamp(2)
def par_load(lab):
    e(f's_cmp_lg_u32 s{sWave}, 3')
    e(f's_cbranch_scc1 {lab}')
    e(f's_lshl_b32 s{sT1}, s{sCt}, 7')
    e(f'v_lshl_add_u32 v{vP+4}, v1, 1, s{sT1}')
    if PF != 'front': e('s_waitcnt lgkmcnt(0)')
    for p in range(4):
        e(f'global_load_ushort v{vP+p}, v{vP+4}, s[{8+2*p}:{9+2*p}]')
    e(f'{lab}:')
if PF == 'front': par_load('L_lnop')
dw(0)
e(f's_lshl2_add_u32 s{sT1}, s{sB0}, s{sWave}')
e(f's_mulk_i32 s{sT1}, 1152')
if not NF0: e(f's_lshl_b32 s{sFl}, s{sWave}, 2')
dw(1)
e(f'v_add_u32 v{vX[0]}, s{sT1}, v6')
e(f's_mul_i32 s{sXl}, s{sWave}, 5120')
e(f'v_xor_b32 v{vX[1]}, 64, v{vX[0]}')
e(f's_lshl_b32 s{sT0}, s{sG0}, 7' if FIRST_IS_G else f's_mov_b32 s{sT0}, 0')
dw(2)
e(f's_mov_b32 m0, s{sXl}')
e(f'v_add_u32 v{vX[1]}, {8*4608-1024}, v{vX[1]}')
dx(0)
e(f'v_add_u32 v{vX[2]}, {20*4608-2048}, v{vX[0]}')
e(f's_lshr_b32 s{sT1}, s{sWave}, 1')
if not NF0: e(f's_add_u32 s{sFl}, s{sFl}, {FLAGL}')
dx(1)
e(f'v_add_u32 v{vX[3]}, {20*4608-2048}, v{vX[1]}')
e(f's_mul_i32 s{sT1}, s{sT1}, 10')
e(f's_add_u32 s{sT1}, s{sT1}, s{sT2}')
if not NF0: e(f'v_lshl_add_u32 v2, v1, 4, s{sFl}')
if not NF0: e(f'v_bfrev_b32 v{vOOB}, 2')
dx(2)
if not NF0: e(f'ds_write_b32 v2, v{vOOB}')
e(f's_lshl1_add_u32 s{sT1}, s{sT1}, s{sB0}')
e(f's_add_u32 s{sT1}, s{sT1}, 16')
e(f's_mulk_i32 s{sT1}, 4608')
e(f's_lshl_b32 s{sT3}, s{sT2}, 6')
dx(3)
e(f'v_xor_b32 v9, s{sT3}, v5')
e(f's_add_u32 m0, s{sXl}, 4096')
e(f'v_add3_u32 v{vX[4]}, v9, v8, s{sT1}')
dx(4)
if not NF0:
    e('s_waitcnt lgkmcnt(0)')
    ld_flag()
lstamp(4)
if FLIP:
    e(f's_mul_i32 s{sKf}, s{sF}, {32*ROW}')
    e(f's_lshl_b32 s{sKd}, s{sKf}, 1')
    e(f's_sub_u32 s{sKd}, {32*ROW}, s{sKd}')
KD = f's{sKd}' if FLIP else f'{32*ROW}'
e(f's_add_u32 m0, s{sWl}, 3072')
e(f's_add_u32 s{sK}, s{sK}, {KD}')
dw(0); dw(1); dw(2)
if not NF0: ld_flag()
if PF != 'front': e('s_load_dwordx8 s[8:15], s[0:1], 16')
lstamp(6)
if 'l0' in opt:
    for i, vm in enumerate((13, 12, 10, 8, 5, 1)):
        e(f's_waitcnt vmcnt({vm})')
        lstamp(8 + 2*i)
    LST_OFF = True
if not NF0: e('s_barrier')
if 'sched' not in opt:
    allo = list(orders)
    if CLS:
        allo += [[3*PERM[s//3] + s % 3 for s in o] for o in orders]
        e(f's_mul_i32 s{sC}, s{sC}, 3')
        e(f's_add_u32 s{sG}, s{sG}, s{sC}')
    ps = [pack(o[1:]) for o in allo]
    e(f's_mov_b32 s{sOrd}, {ps[0]}')
    for g in range(1, len(allo)):
        e(f's_cmp_eq_u32 s{sG}, {g}')
        e(f's_cselect_b32 s{sOrd}, {ps[g]}, s{sOrd}')
if PF == 'mid': par_load('L_lnop')
if 'sched' not in opt:
    e(f's_mov_b32 s{sIt}, 1')
    e(f's_mov_b32 s{sSl}, 0')
def advance():
    e(f's_add_u32 s{sSl}, s{sSl}, 1')
    e(f's_cmp_eq_u32 s{sSl}, 3')
    e(f's_cselect_b32 s{sSl}, 0, s{sSl}')
    e(f's_mov_b32 s{sDX}, {XSLOT}')
    e(f's_cselect_b32 s{sDX}, {(-2*XSLOT) & 0xffffffff}, s{sDX}')
    e(f's_mov_b32 s{sDW}, {WSLOT}')
    e(f's_cselect_b32 s{sDW}, {(-2*WSLOT) & 0xffffffff}, s{sDW}')
    e(f's_add_u32 s{sXl}, s{sXl}, s{sDX}')
    e(f's_add_u32 s{sWl}, s{sWl}, s{sDW}')
    e(f's_and_b32 s{sK}, s{sOrd}, 15')
    e(f's_lshl_b32 s{sT0}, s{sK}, 7')
    e(f's_mul_i32 s{sK}, s{sK}, {64*ROW}')
    if FLIP: e(f's_add_u32 s{sK}, s{sK}, s{sKf}')
    e(f's_lshr_b32 s{sOrd}, s{sOrd}, 4')
def issue_x():
    e(f's_mov_b32 m0, s{sXl}')
    e('s_nop 0')
    for i in range(4): dx(i)
    e(f's_add_u32 m0, s{sXl}, 4096')
    e('s_nop 0')
    dx(4)
def issue_w(ks):
    if ks:
        e(f's_add_u32 m0, s{sWl}, 3072')
        e(f's_add_u32 s{sK}, s{sK}, {KD}')
    else:
        e(f's_mov_b32 m0, s{sWl}')
        e('s_nop 0')
    for tap in range(3): dw(tap)
e('L_lloop:')
advance()
e(f's_mov_b32 m0, s{sXl}')
E0 = int(opt.get('e0', 0))
if E0 < 6:
    e(f's_cmp_lt_u32 s{sIt}, {3 + E0}')
    e('s_cbranch_scc1 L_lfree')
    e('s_waitcnt vmcnt(11)')
    e('s_barrier')
    e('L_lfree:')
else:
    e('s_nop 0')
for i in range(4): dx(i)
e(f's_add_u32 m0, s{sXl}, 4096')
e(f's_add_u32 s{sIt}, s{sIt}, 1')
dx(4)
issue_w(0)
e(f's_cmp_gt_u32 s{sIt}, {2 + E0}')
e('s_cbranch_scc1 L_lnb')
e('s_waitcnt vmcnt(8)')
e('s_barrier')
e('L_lnb:')
issue_w(1)
e(f's_cmp_lt_u32 s{sIt}, 9')
e('s_cbranch_scc1 L_lloop')
def par_compute():
    for p in range(4):
        e(f'v_lshlrev_b32 v{vP+p}, 16, v{vP+p}')
    e(f'v_add_f32 v{vP+1}, 0x3727c5ac, v{vP+1}')
    e(f'v_rsq_f32 v{vP+1}, v{vP+1}')
    e(f'v_mul_f32 v{vP+2}, 0xbfb8aa3b, v{vP+2}')
    e(f'v_mul_f32 v{vP+3}, 0xbfb8aa3b, v{vP+3}')
    e(f'v_mul_f32 v{vP+2}, v{vP+1}, v{vP+2}')
    e(f'v_fma_f32 v{vP+3}, -v{vP}, v{vP+2}, v{vP+3}')
    e('v_lshlrev_b32 v2, 2, v1')
    e(f'v_add_u32 v2, {PARM}, v2')
def par_write():
    e(f'ds_write_b32 v2, v{vP+2}')
    e(f'ds_write_b32 v2, v{vP+3} offset:256')
e('s_waitcnt vmcnt(11)')
e('s_barrier')
e(f's_cmp_lg_u32 s{sWave}, 3')
e('s_cbranch_scc1 L_lfin')
par_compute()
e('s_waitcnt vmcnt(0)')
par_write()
e('L_lfin:')
e('s_waitcnt vmcnt(0) lgkmcnt(0)')
e('s_barrier')
if 'lamp' in opt:
    e('s_waitcnt lgkmcnt(0)')
    e(f's_sub_u32 s3, s70, s{sStamp}')
    e('s_mul_i32 s3, s3, 100')
    e(f's_add_u32 s3, s3, s{sStamp}')
    e('s_add_u32 s3, s3, 2000')
    e('L_lamp:')
    e('s_memrealtime s[4:5]')
    e('s_waitcnt lgkmcnt(0)')
    e('s_sub_u32 s6, s4, s3')
    e('s_cmp_lt_i32 s6, 0')
    e('s_cbranch_scc1 L_lamp')
if LST:
    lstamp(30)
    e('s_load_dwordx2 s[50:51], s[0:1], 64')
    e(f's_lshl_b32 s3, s2, 3')
    e(f's_add_u32 s3, s3, s{sWave}')
    e(f's_mul_i32 s3, s3, {NST*8}')
    e('v_lshl_add_u32 v0, v1, 2, s3')
    e('v_and_b32 v2, 1, v1')
    e('v_cmp_eq_u32 vcc, 0, v2')
    e('s_nop 1')
    e('v_cndmask_b32 v30, 0, v30, vcc')
    e('s_waitcnt lgkmcnt(0)')
    e('s_mov_b64 exec, 0xffffffff')
    e('global_store_dword v0, v30, s[50:51]')
e('s_endpgm')

if 'help' in opt:
    HS = [int(c) for c in str(opt['help'])]
    e('L_help:')
    e(f's_cmp_ge_u32 s{sT1}, 32')
    e('s_cbranch_scc1 L_end')
    e(f's_sub_u32 s{sT1}, s{sT1}, s{sT0}')
    e(f's_and_b32 s{sT0}, s2, 7')
    e(f's_min_u32 s{sT0}, s{sT0}, 4')
    e(f's_lshl1_add_u32 s{sT1}, s{sT0}, s{sT1}')
    e(f's_lshr_b32 s{sWave}, s3, 6')
    e(f's_lshl3_add_u32 s{sT1}, s{sT1}, s{sWave}')
    e('v_and_b32 v1, 63, v0')
    e(f's_mov_b32 s{sX+2}, {X_BYTES}')
    e(f's_mov_b32 s{sX+3}, 0x20000')
    e(f's_movk_i32 s{sK}, 128')
    e(f'v_lshl_add_u32 v2, s{sT1}, 6, v1')
    e('v_mul_u32_u24 v2, 1152, v2')
    e(f's_cmp_lt_u32 s{sT1}, 64')
    e('s_waitcnt lgkmcnt(0)')
    e('s_cbranch_scc1 L_hgo')
    e(f's_sub_u32 s{sT1}, s{sT1}, 64')
    div_small(sT0, sT1, 9, 40)
    e(f's_mul_i32 s{sT2}, s{sT0}, {TAP//128 - 576}')
    e(f's_lshl_b32 s{sT1}, s{sT1}, 6')
    e(f's_add_u32 s{sT1}, s{sT1}, s{sT2}')
    e(f'v_add_u32 v2, s{sT1}, v1')
    e('v_lshlrev_b32 v2, 7, v2')
    e(f's_mov_b32 s{sX}, s{sW}')
    e(f's_mov_b32 s{sX+1}, s{sW+1}')
    e(f's_mov_b32 s{sX+2}, {W_BYTES}')
    e(f's_mov_b32 s{sK}, {64*ROW}')
    e('L_hgo:')
    for i, st in enumerate(HS):
        e(f's_mul_i32 s{sT0}, s{sK}, {st}')
        e(f'buffer_load_dword v{4+i}, v2, s[{sX}:{sX+3}], s{sT0} offen')
        if i + 1 < len(HS): e('s_barrier')
    e('s_waitcnt vmcnt(0)')
    e('s_endpgm')

e('L_consumer:')
e('s_load_dwordx2 s[28:29], s[0:1], 48')
if STAMP: e('s_load_dwordx2 s[50:51], s[0:1], 64')
e('s_setprio 3')
vXa = [2, 3]; vXm = [[4, 5], [252, 253], [6, 7]]
vWa = [8, 9]
vOut = 10; vOutM = 11
vPar = 12
ACC = 16
WB = [56, 104]; XB = 152
SC2 = 212; SH2 = 220
T = 228; P = 236; Qs = [240, 244]
cFl, cPoll, cSw, cSr = 248, 249, 250, 251
def acc(tile, t): return ACC + (tile*2 + t)*4
def fx(h, i): return XB + (h*7 + i)*4
def fw(buf, h, k, t): return WB[buf] + ((h*3 + k)*2 + t)*4
A0, A1, A2 = T, T+1, T+2
e('v_and_b32 v13, 15, v1')
e('v_lshrrev_b32 v14, 4, v1')
for r in range(4):
    e(f'v_mov_b32 v{ACC+r}, 0')
e('v_min_u32 v15, 2, v14')
e(f'v_mul_u32_u24 v15, {XSLOT}, v15')
e('v_lshl_add_u32 v15, v13, 4, v15')
e(f'ds_write_b128 v15, v[{ACC}:{ACC+3}] offset:{XBASE+20480}')
e(f's_sub_u32 s{sWave}, s{sWave}, 4')
e(f's_lshr_b32 s{sT0}, s{sWave}, 1')
e(f's_and_b32 s{sT1}, s{sWave}, 1')
if not NF0:
    e('v_and_b32 v15, 3, v1')
    e('v_lshlrev_b32 v15, 2, v15')
    e(f'v_add_u32 v{cFl}, {FLAGL}, v15')
GX = 14
if FLIP:
    GX = A2 + 1
    e(f's_lshl_b32 s{sIt}, s{sF}, 2')
    e(f'v_xor_b32 v{GX}, s{sIt}, v14')
e(f's_lshl_b32 s{sT3}, s{sT0}, 11')
e('v_lshrrev_b32 v15, 1, v13')
e(f'v_xor_b32 v15, v15, v{GX}')
e('v_lshlrev_b32 v15, 4, v15')
e('v_lshl_add_u32 v15, v13, 7, v15')
e(f'v_add_u32 v{vXa[0]}, s{sT3}, v15')
e(f'v_xor_b32 v{vXa[1]}, 64, v{vXa[0]}')
e(f's_mul_i32 s{sIt}, s{sT0}, 10240')
e(f's_add_u32 s{sIt}, s{sIt}, 4096')
e(f'v_lshrrev_b32 v{A2}, 3, v13')
e(f'v_lshl_add_u32 v{A2}, v{A2}, 12, s{sIt}')
e(f'v_add_u32 v{vXm[1][0]}, v{A2}, v15')
e(f'v_xor_b32 v{vXm[1][1]}, 64, v{vXm[1][0]}')
for k in (0, 2):
    regs = vXm[k]
    e(f'v_add_u32 v15, {1 if k==2 else 3}, v13')
    e(f'v_bfi_b32 v15, 3, v15, v13')
    e(f'v_lshrrev_b32 v{A0}, 1, v15')
    e(f'v_xor_b32 v{A0}, v{A0}, v{GX}')
    e(f'v_lshlrev_b32 v{A0}, 4, v{A0}')
    e(f'v_lshl_add_u32 v{A0}, v15, 7, v{A0}')
    e(f'v_add_u32 v{A1}, v{A2}, v{A0}')
    e(f'v_and_b32 v{A0}, 0xff, v{A0}')
    e('v_and_b32 v15, 3, v13')
    e(f'v_cmp_eq_u32 vcc, {0 if k==0 else 3}, v15')
    e(f'v_add_u32 v{A0}, {XBASE+20480}, v{A0}')
    e('s_nop 0')
    e(f'v_cndmask_b32 v{regs[0]}, v{A1}, v{A0}, vcc')
    e(f'v_xor_b32 v{regs[1]}, 64, v{regs[0]}')
e('v_lshrrev_b32 v15, 2, v13')
e(f'v_mul_u32_u24 v{A0}, 6144, v14')
e(f'v_lshl_add_u32 v{A0}, v15, 7, v{A0}')
e('v_lshrrev_b32 v15, 1, v15')
e(f'v_and_b32 v{A1}, 1, v14')
e(f'v_lshl_add_u32 v15, v{A1}, 1, v15')
e(f's_lshl_b32 s{sIt}, s{sT1}, 1')
e(f'v_xor_b32 v15, s{sIt}, v15')
e(f'v_lshl_add_u32 v{A0}, v15, 5, v{A0}')
e('v_and_b32 v15, 3, v13')
e(f'v_lshl_add_u32 v{A0}, v15, 3, v{A0}')
e(f'v_add_u32 v{vWa[0]}, {WBASE}, v{A0}')
e(f'v_xor_b32 v{vWa[1]}, 32, v{vWa[0]}')
assert WBASE % 256 == 0
if not NF0:
    e('s_waitcnt lgkmcnt(0)')
    e('s_barrier')
sNL = 46
deferred = [
 f's_mov_b32 s{sOut+2}, s{sNv}', f's_mov_b32 s{sOut+3}, 0x20000',
 f's_lshl_b32 s{sIt}, s{sT1}, 7', f's_add_u32 s{sIt}, s{sIt}, {PARM}',
 f'v_lshl_add_u32 v{vPar}, v14, 4, s{sIt}',
 f's_lshl_b32 s{sIt}, s{sWave}, 10', f's_add_u32 s{sIt}, s{sIt}, {STG}',
 *(['v_lshrrev_b32 v15, 1, v14', f'v_bfe_u32 v{A0}, v13, 1, 2', f'v_xor_b32 v15, v15, v{A0}', 'v_lshlrev_b32 v15, 4, v15', 'v_lshl_add_u32 v15, v13, 6, v15',
    f'v_and_b32 v{A0}, 1, v14', f'v_lshl_add_u32 v15, v{A0}, 3, v15', f'v_add_u32 v{cSw}, s{sIt}, v15', f'v_xor_b32 v254, 32, v{cSw}'] if B64 else
   ['v_and_b32 v15, 1, v14', 'v_lshlrev_b32 v15, 1, v15', f'v_lshrrev_b32 v{A0}, 1, v14', f'v_or_b32 v15, v15, v{A0}',
    f'v_bfe_u32 v{A0}, v13, 1, 2', f'v_xor_b32 v15, v15, v{A0}', 'v_lshlrev_b32 v15, 4, v15', 'v_lshl_add_u32 v15, v13, 6, v15',
    f'v_add_u32 v{cSw}, s{sIt}, v15']), f'v_lshl_add_u32 v{cSr}, v1, 4, s{sIt}',
 f's_lshl_b32 s{sT2}, s{sCt}, 7', f's_lshl_b32 s{sT3}, s{sT1}, 6', f's_add_u32 s{sT2}, s{sT2}, s{sT3}',
 f's_mul_i32 s{sIt}, s{sT0}, 20', f's_add_u32 s{sIt}, s{sIt}, s{sB0}', f's_mulk_i32 s{sIt}, 4608', f's_add_u32 s{sIt}, s{sIt}, s{sT2}',
 'v_bfe_u32 v15, v1, 3, 2', f'v_and_b32 v{A0}, 3, v1', f'v_xor_b32 v15, v15, v{A0}', f'v_lshl_add_u32 v15, v15, 4, s{sIt}',
 f'v_lshrrev_b32 v{A0}, 2, v1', f'v_mul_u32_u24 v{vOutM}, 1152, v{A0}', f'v_lshl_add_u32 v{vOut}, v{vOutM}, 2, v15',
 f'v_add_u32 v{vOutM}, v{vOutM}, v15', f'v_add_u32 v{vOutM}, {16*4608}, v{vOutM}',
 f's_mov_b32 s{sNL}, 0xbfb8aa3b', f's_mov_b32 s{sNL+1}, 0xbfb8aa3b']

cSw1 = 254
if FULL:
    deferred = [
     f's_mov_b32 s{sOut+2}, s{sNv}', f's_mov_b32 s{sOut+3}, 0x20000',
     f's_lshl_b32 s{sIt}, s{sT1}, 7', f's_add_u32 s{sIt}, s{sIt}, {PARM}',
     f'v_lshl_add_u32 v{vPar}, v14, 4, s{sIt}',
     f's_lshl_b32 s{sIt}, s{sT0}, 11', f's_add_u32 s{sIt}, s{sIt}, {STG}', f's_lshl_b32 s{sT2}, s{sT1}, 2',
     'v_lshrrev_b32 v15, 1, v14', f'v_or_b32 v15, s{sT2}, v15', f'v_and_b32 v{A0}, 7, v13', f'v_xor_b32 v15, v15, v{A0}',
     'v_lshlrev_b32 v15, 4, v15', 'v_lshl_add_u32 v15, v13, 7, v15', f'v_and_b32 v{A0}, 1, v14', f'v_lshl_add_u32 v15, v{A0}, 3, v15',
     f'v_add_u32 v{cSw}, s{sIt}, v15', f'v_xor_b32 v{cSw1}, 32, v{cSw}',
     f's_lshl_b32 s{sT2}, s{sT1}, 10', f's_add_u32 s{sIt}, s{sIt}, s{sT2}', f'v_lshl_add_u32 v{cSr}, v1, 4, s{sIt}',
     f's_lshl_b32 s{sT2}, s{sCt}, 7',
     f's_mul_i32 s{sIt}, s{sT0}, 20', f's_add_u32 s{sIt}, s{sIt}, s{sB0}', f's_mulk_i32 s{sIt}, 4608', f's_add_u32 s{sIt}, s{sIt}, s{sT2}',
     f'v_lshrrev_b32 v{A0}, 3, v1', 'v_and_b32 v15, 7, v1', f'v_xor_b32 v15, v15, v{A0}', f'v_lshl_add_u32 v15, v15, 4, s{sIt}',
     f's_lshl_b32 s{sT2}, s{sT1}, 3', f'v_add_u32 v{A0}, s{sT2}, v{A0}',
     f'v_mul_u32_u24 v{vOutM}, 1152, v{A0}', f'v_lshl_add_u32 v{vOut}, v{vOutM}, 2, v15',
     f'v_add_u32 v{vOutM}, v{vOutM}, v15', f'v_add_u32 v{vOutM}, {16*4608}, v{vOutM}',
     f's_mov_b32 s{sNL}, 0xbfb8aa3b', f's_mov_b32 s{sNL+1}, 0xbfb8aa3b']
    assert STG % 256 == 0

def rx(n, h, i):
    xo = XBASE + (n % 3)*XSLOT
    d = fx(h, i)
    if i < 4: return (f'ds_read_b128 v[{d}:{d+3}], v{vXa[h]} offset:{xo + i*5120}', d)
    return (f'ds_read_b128 v[{d}:{d+3}], v{vXm[i-4][h]} offset:{xo}', d)
def rw(n, h, k, t):
    d = fw(n & 1, h, k, t)
    off = (n % 3)*WSLOT + (h*3+k)*1024
    return [(f'ds_read_b64_tr_b16 v[{d+2*hp}:{d+2*hp+1}], v{vWa[t]} offset:{off + hp*512}', d) for hp in range(2)]
touched = set()
def tile_mfmas(n, tile):
    r = []
    for t in range(2):
        for h in range(2):
            for k in range(3):
                i = tile + k - 1 if tile < 4 else 4 + k
                if tile < 4 and not 0 <= i <= 3: continue
                r.append((acc(tile, t), fw(n & 1, h, k, t), fx(h, i)))
    return r
lds_q = []
mf_count = 0
AGE = int(opt.get('age', 6))
def lds(op):
    e(op[0]); lds_q.append((op[1], mf_count))
def wait_for(regs):
    idx = max((i for i, (d, _) in enumerate(lds_q) if d in regs), default=-1)
    if idx < 0: return False
    while idx + 1 < len(lds_q) and mf_count - lds_q[idx+1][1] >= AGE: idx += 1
    n = min(len(lds_q) - 1 - idx, 14)
    e(f's_waitcnt lgkmcnt({n})')
    del lds_q[:len(lds_q) - n]
    return True
def wait_all():
    e('s_waitcnt lgkmcnt(0)'); lds_q.clear()
def mfma(m):
    global mf_count
    a, A, B = m
    w = wait_for({A, B})
    c = f'v[{a}:{a+3}]' if a in touched else '0'
    touched.add(a)
    e(f'v_mfma_f32_16x16x32_bf16 v[{a}:{a+3}], v[{A}:{A+3}], v[{B}:{B+3}], {c}')
    mf_count += 1
    return w
def w_order(n):
    return [rw(n, h, k, t) for (t, h, k) in [(0,0,1),(0,0,2),(0,1,1),(0,1,2),(1,0,1),(1,0,2),(1,1,1),(1,1,2),(0,0,0),(0,1,0),(1,0,0),(1,1,0)]]
spin_sites = []
if STAMP:
    e(f's_mov_b32 s{sStamp+16}, 0')
    e(f's_mov_b32 s{sStamp+17}, 0')
NPAD = 0 if 'nopad' in opt else int(opt.get('npad', 2))
if NPAD:
    e('s_mov_b64 exec, 0')
    for p in range(NPAD):
        e(f's_branch L_pad{p}')
        e(f'L_ret{p}:')
    e('s_mov_b64 exec, -1')
stamp(1)
e('L_cpoll0:')
e('s_waitcnt lgkmcnt(0)')
e('s_barrier')
stamp(2)
cstamp(5)
par = [(f'ds_read_b128 v[{SC2}:{SC2+3}], v{vPar}', SC2), (f'ds_read_b128 v[{SC2+4}:{SC2+7}], v{vPar} offset:64', SC2),
       (f'ds_read_b128 v[{SH2}:{SH2+3}], v{vPar} offset:256', SC2), (f'ds_read_b128 v[{SH2+4}:{SH2+7}], v{vPar} offset:320', SC2)]
TO = [int(c) for c in opt.get('to', '03124')]
seq = [(n, m) for n in range(7) for tl in range(5) for m in tile_mfmas(n, tl)]
seq += [(7, m) for tl in range(4) for m in tile_mfmas(7, tl)]
head_end = len(seq) + 8
P47 = int(opt.get('p47', 0))
blocks = [(8, tl) for tl in TO[1:]]
blocks.insert(P47, (7, 4))
seq += [(8, m) for m in tile_mfmas(8, 0)] + [(s, m) for s, tl in blocks for m in tile_mfmas(s, tl)]
def stage_reads(n):
    ops = [x for h in range(2) for k in range(3) for t in range(2) for x in rw(n, h, k, t)] + [rx(n, h, i) for h in range(2) for i in range(7)]
    res = []
    for op in ops:
        need = min(i for i, (s, m) in enumerate(seq) if s == n and op[1] in m[1:])
        prev = [i for i, (s, m) in enumerate(seq) if s < n and op[1] in m[1:]]
        res.append([need, (max(prev) + 1) if prev else -1, op])
    if n == 8: res += [[head_end + 2, -1, p] for p in par]
    res.sort(key=lambda r: r[0])
    return res
LEAD = int(opt.get('lead', 7))
Q = stage_reads(0)
def issue_reads(now, extra_deadline=None):
    cnt = 0
    while cnt < 2:
        el = [r for r in Q if r[1] <= now]
        if not el: break
        if cnt == 1:
            dl = lambda r: min(r[0] - LEAD, extra_deadline) if extra_deadline is not None else r[0] - LEAD
            if all(dl(r) - now > j for j, r in enumerate(Q)): break
        r = el[0]; Q.remove(r); lds(r[2]); cnt += 1
    return cnt > 0
for _ in range(int(opt.get('ni', 16))): lds(Q.pop(0)[2])
BG = [int(v) for v in opt.get('bg', '28,24,24,24,24,24,24,18').split(',')]
nb = 0
for i in range(head_end):
    if i == head_end - 8:
        stamp(3); cstamp(6)
    assert seq[i][0] <= nb and all(r[0] > i for r in Q), i
    mfma(seq[i][1])
    bat = 52*nb + BG[nb] if nb < 8 else None
    if bat is not None and i >= bat and not Q:
        wait_all(); e('s_barrier')
        if 'pst' in opt and nb < 7: e(f's_memrealtime s[{84+2*nb}:{85+2*nb}]' if nb < 6 else 's_memrealtime s[4:5]')
        nb += 1; Q = stage_reads(nb)
    elif issue_reads(i, None if bat is None else bat - 4): pass
    elif deferred: e(deferred.pop(0))
assert nb == 8 and not deferred
rest = [m for _, m in seq[head_end:]]
base = 12
done_at = {}
cnt = 0
for s, tl in blocks:
    cnt += len(tile_mfmas(s, tl))
    if s == 8: done_at[tl] = cnt
emitted = 0
since = {0: 0}
def em(m):
    global emitted
    assert all(r[0] > head_end + emitted for r in Q)
    mfma(m); emitted += 1
    issue_reads(head_end + emitted - 1)
    for k in since: since[k] += 1
    for tl, at in done_at.items():
        if at == emitted: since[tl] = 0
def ev(x):
    if x == 's_waitcnt lgkmcnt(0)': wait_all()
    elif x.startswith('ds_'): lds((x, None))
    else: e(x)
    for k in since: since[k] += 1
def need(tl):
    while tl not in since: em(rest.pop(0))
    if tl == 0 and PK < 2:
        while since[0] < 3: em(rest.pop(0))
        assert all(r[2][1] != SC2 for r in Q)
        if not wait_for({SC2}): e('s_nop 0')
        return
    while since[tl] < (6 if tl == 0 else 8):
        if rest: em(rest.pop(0))
        else:
            e(f's_nop {8 - since[tl] - 1}'); since[tl] = 8
    if tl == 0: wait_for({SC2})
def cost(ins):
    if 'exp' in ins or 'rcp' in ins: return 8
    if 'v_pk' in ins or 'v_fma' in ins: return 5
    return 4
def tile_ops(tile, Q):
    a0 = acc(tile, 0)
    def two(pkf, sf):
        return [('pk', pkf(i), [sf(i), sf(i+1)]) for i in range(0, 8, 2)]
    ops = []
    ops += two(lambda i: f'v_pk_fma_f32 v[{a0+i}:{a0+i+1}], v[{a0+i}:{a0+i+1}], v[{SC2+i}:{SC2+i+1}], v[{SH2+i}:{SH2+i+1}]',
               lambda i: f'v_fma_f32 v{a0+i}, v{a0+i}, v{SC2+i}, v{SH2+i}')
    ops += [('s', f'v_exp_f32 v{T+i}, v{a0+i}') for i in range(8)]
    ops += two(lambda i: f'v_pk_fma_f32 v[{T+i}:{T+i+1}], v[{T+i}:{T+i+1}], s[{sNL}:{sNL+1}], s[{sNL}:{sNL+1}]',
               lambda i: f'v_fma_f32 v{T+i}, v{T+i}, s{sNL}, s{sNL}')
    ops += [('s', f'v_rcp_f32 v{T+i}, v{T+i}') for i in range(8)]
    ops += two(lambda i: f'v_pk_mul_f32 v[{a0+i}:{a0+i+1}], v[{a0+i}:{a0+i+1}], v[{T+i}:{T+i+1}]',
               lambda i: f'v_mul_f32 v{a0+i}, v{a0+i}, v{T+i}')
    ops += [('s', f'v_cvt_pk_bf16_f32 v{P+i//2}, v{a0+i}, v{a0+i+1}') for i in range(0, 8, 2)]
    if B64:
        cv = ops[-4:]
        ops = ops[:-4] + [cv[0], cv[1], cv[2], ('s', f'ds_write_b64 v{cSw}, v[{P}:{P+1}]'), cv[3],
                          ('s', f'ds_write_b64 v{cSw1}, v[{P+2}:{P+3}]'), ('s', f'ds_read_b128 v[{Q}:{Q+3}], v{cSr}')]
    elif FULL:
        cv = ops[-4:]
        ops = ops[:-4] + [cv[0], cv[1], cv[2], ('s', f'ds_write_b64 v{cSw}, v[{P}:{P+1}] offset:{tile*4096}'), cv[3],
                          ('s', f'ds_write_b64 v{cSw1}, v[{P+2}:{P+3}] offset:{tile*4096}')]
    else:
        ops += [('s', 's_nop 1'), ('s', f'v_permlane16_swap_b32 v{P}, v{P+2}'), ('s', f'v_permlane16_swap_b32 v{P+1}, v{P+3}'),
                ('s', f'ds_write_b128 v{cSw}, v[{P}:{P+3}]'), ('s', f'ds_read_b128 v[{Q}:{Q+3}], v{cSr}')]
    return ops
def tile_store(tile, Q):
    if tile < 4:
        return f'buffer_store_dwordx4 v[{Q}:{Q+3}], v{vOut}, s[{sOut}:{sOut+3}], 0 offen offset:{tile*1152} {STF}'
    return f'buffer_store_dwordx4 v[{Q}:{Q+3}], v{vOutM}, s[{sOut}:{sOut+3}], 0 offen {STL}'
pend = None
budget = 0
GAPV = int(opt.get('gapv', 8))
for n, tl in enumerate(TO):
    QR = Qs[n % 2]
    need(tl)
    if 't2st' in opt: e(f's_memtime s[{84+2*n}:{85+2*n}]')
    for i, op in enumerate(tile_ops(tl, QR)):
        if op[0] == 'pk':
            ins = [op[1]] if (PK >= 2 or (PK == 1 and not rest)) else op[2]
        else:
            ins = [op[1]]
        for x in ins:
            ev(x); budget += cost(x)
            if rest and ((PK < 3 and budget >= GAPV) or (PK == 3 and cost(x) == 8) or (PK == 4 and 'v_pk' not in x and budget >= GAPV)):
                em(rest.pop(0)); budget = 0
            if PK == 4 and 'v_pk' in x: budget = 0
        if FULL:
            if pend is not None and i == 8:
                ev('s_waitcnt lgkmcnt(0)'); ev('s_barrier')
                ev(f'ds_read_b128 v[{pend[1]}:{pend[1]+3}], v{cSr} offset:{pend[0]*4096}')
            if pend is not None and i == 20:
                ev('s_waitcnt lgkmcnt(0)')
                ev(tile_store(*pend)); pend = None
        elif pend is not None and i == int(opt.get('stp', 12)):
            ev('s_waitcnt lgkmcnt(0)')
            ev(tile_store(*pend)); pend = None
    pend = (tl, QR)
if 't2st' in opt: e('s_memtime s[94:95]')
if FULL:
    e('s_waitcnt lgkmcnt(0)'); e('s_barrier')
    e(f'ds_read_b128 v[{pend[1]}:{pend[1]+3}], v{cSr} offset:{pend[0]*4096}')
e('s_waitcnt lgkmcnt(0)')
e(tile_store(*pend))
stamp(4)
cstamp(7)
if 'pst' in opt or 't2st' in opt:
    e('s_waitcnt lgkmcnt(0)')
    if 't2st' in opt: e(f's_mov_b32 s4, s{sStamp+14}')
    e(f's_mov_b32 s{sStamp+18}, s84'); e(f's_mov_b32 s{sStamp+19}, s86')
    e(f's_mov_b32 s{sStamp+20}, s88'); e(f's_mov_b32 s{sStamp+21}, s90')
    e(f's_mov_b32 s{sStamp+22}, s92'); e(f's_mov_b32 s{sStamp+23}, s94')
    e(f's_mov_b32 s{sStamp+28}, s4'); e(f's_mov_b32 s{sStamp+29}, s4')
stamp_flush([0,1,2,3,4,5,6,7,8] + ([9,10,11,14] if ('pst' in opt or 't2st' in opt) else []))
e('s_endpgm')
for name, fidx in spin_sites:
    e(f'L_cspin{name}:')
    if STAMP: e(f's_add_u32 s{sStamp+16}, s{sStamp+16}, 1')
    e(poll(fidx))
    e('s_waitcnt lgkmcnt(0)')
    e(f'v_cmp_ne_u32 vcc, 0, v{cPoll}')
    e(f's_cbranch_vccnz L_cspin{name}')
    e(f's_branch L_cback{name}')
e('L_end:')
e('s_endpgm')

def render(lines):
    body = '\n'.join(lines)
    return HEADER + f'''; Override launch geometry by editing the next line (default: block=256,
; grid=ceil(out_elems/256), lds=0). Harness parses it; keep it on one line.
; @launch grid=({NWG},1,1) block=(512,1,1) lds={LDS_BYTES}
.amdgcn_target "amdgcn-amd-amdhsa--gfx950"
.text
.globl standalone__batchnorm__sampling_kernel
{'' if 'noal' in opt else '.p2align 12'}
.p2align 8
.type standalone__batchnorm__sampling_kernel,@function
standalone__batchnorm__sampling_kernel:
{body}
.section .rodata,"a"
.p2align 6
.amdhsa_kernel standalone__batchnorm__sampling_kernel
  .amdhsa_next_free_vgpr 256
  .amdhsa_next_free_sgpr 96
  .amdhsa_accum_offset 256
  .amdhsa_group_segment_fixed_size 0
  .amdhsa_kernarg_size 72
  .amdhsa_user_sgpr_count 2
  .amdhsa_user_sgpr_kernarg_segment_ptr 1
  .amdhsa_system_sgpr_workgroup_id_x 1
.end_amdhsa_kernel
'''
import subprocess, re, os
def offsets(lines):
    open('_g.s', 'w').write(render(lines))
    subprocess.run(['clang', '-x', 'assembler', '-target', 'amdgcn-amd-amdhsa', '-mcpu=gfx950', '-c', '_g.s', '-o', '_g.o'], check=True)
    d = subprocess.run(['llvm-objdump', '-d', '--mcpu=gfx950', '_g.o'], capture_output=True, text=True).stdout
    offs = [int(m.group(1), 16) for m in re.finditer(r'// ([0-9A-F]{12}):', d)]
    idx = [i for i, l in enumerate(lines) if l.startswith('    ')]
    assert len(offs) == len(idx), (len(offs), len(idx))
    return dict(zip(idx, offs))
if NPAD:
    KSTART = 0x300
    lines = out
    i0 = lines.index('L_cpoll0:')
    for p in range(NPAD):
        tmp = lines + [f'L_pad{q}:' for q in range(p, NPAD)] + ['    s_endpgm']
        offs = offsets(tmp)
        first = (offs[i0+1] + KSTART) // 4096
        bnd = 4096*(first + p + 1) - KSTART
        i = min(i for i, o in offs.items() if o >= bnd)
        lines = lines[:i] + [f'L_pad{p}:', f'    s_cbranch_execz L_ret{p}'] + lines[i:]
    out = lines
open(dst, 'w').write(render(out))
```

```python
import sys
opt = {}
dst = 'standalone__batchnorm__sampling.s'
for a in sys.argv[1:]:
    if a.startswith('--'):
        k, _, v = a[2:].partition('=')
        opt[k] = v if v else True
    else:
        dst = a
STAMP = 'stamp' in opt
AMP = None
if 'amp' in opt:
    AMP = tuple(int(v) for v in opt['amp'].split(',')); STAMP = True
MAP = opt.get('map', 'p4')
ORDER = opt.get('order', '013246578_120435768_201354687')
XNT = ' nt' if 'xnt' in opt else ''
STF = opt.get('stf', 'sc1').replace('+', ' ')
STL = opt.get('stl', STF).replace('+', ' ').replace('none', '')
PK = int(opt.get('pk', 1))
FLIP = MAP in ('p4', 'p5') and 'noflip' not in opt
LST = 'lst' in opt
NF0 = True
PERM = [int(c) for c in opt.get('perm', '102')]
CLS = PERM != [0, 1, 2]
sC = 49
PF = opt.get('ppos', 'mid')

out = []
def e(s=''):
    if 'nodma' in opt and s.startswith('buffer_load_dwordx4') and s.endswith('lds'): return
    out.append('    ' + s if s and not s.endswith(':') else s)

HEADER = open('standalone__batchnorm__sampling.s.ref').read().split('; Override launch')[0]

WSLOT = 24576
XSLOT = 20480 + 256
XBASE = 0
WBASE = XSLOT * 3
FLAGL = WBASE + WSLOT * 3
PARM = FLAGL + 1024
STG = PARM + 512
FULL = 'full' in opt
B64 = 'b64' in opt
LDS_BYTES = STG + (20480 if FULL else 4096)
assert LDS_BYTES <= 163840
X_BYTES = 1024*4*576*2
W_BYTES = 3*576*576*2
TAP = 576*576*2
ROW = 1152

sX, sW, sOut = 20, 24, 28
sWave, sQ, sCt, sB0 = 32, 33, 34, 35
sT0, sT1, sT2, sT3 = 36, 37, 38, 39
sXl, sF, sWl, sK = 40, 41, 42, 43
sIt, sDX, sDW = 44, 45, 46
sSl, sFl = 47, 48
sOrd, sG, sKd, sKf = 16, 17, 18, 19
sNv = sX + 2
sStamp = 52
NST = 16
def stamp(i):
    if STAMP: e(f's_memrealtime s[{sStamp+2*i}:{sStamp+2*i+1}]')
def cstamp(i):
    if STAMP: e(f's_memtime s[{sStamp+2*i}:{sStamp+2*i+1}]')
def stamp_flush(used):
    if not STAMP: return
    e('s_waitcnt vmcnt(0) lgkmcnt(0)')
    stamp(NST-1)
    e(f's_memtime s[{sStamp+26}:{sStamp+27}]')
    e('s_waitcnt lgkmcnt(0)')
    if AMP is not None:
        e(f's_sub_u32 s3, s{sStamp+2*AMP[1]}, s{sStamp+2*AMP[0]}')
        e(f's_mul_i32 s3, s3, {AMP[3] if len(AMP) > 3 else 20}')
        e(f's_add_u32 s3, s3, s{sStamp+2*(NST-1)}')
        e('L_amp:')
        e('s_memrealtime s[4:5]')
        e('s_waitcnt lgkmcnt(0)')
        e('s_sub_u32 s6, s4, s3')
        e('s_cmp_lt_i32 s6, 0')
        e('s_cbranch_scc1 L_amp')
        return
    e(f's_lshl_b32 s3, s2, 3')
    e(f's_add_u32 s3, s3, s{sWave}')
    e('s_add_u32 s3, s3, 4')
    e(f's_mul_i32 s3, s3, {NST*8}')
    e('v_mov_b32 v0, s3')
    e('s_mov_b64 exec, 1')
    for i in used + [12, 13, NST-1]:
        e(f'v_mov_b32 v2, s{sStamp+2*i}')
        e(f'v_mov_b32 v3, s{sStamp+2*i+1}')
        e(f'global_store_dwordx2 v0, v[2:3], s[50:51] offset:{8*i}')
        e('s_nop 1')
def div_small(dstr, src_, d, maxv):
    for sh in range(4, 16):
        m = -(-(1 << sh) // d)
        if m <= 64 and all((t*m) >> sh == t // d for t in range(maxv+1)):
            e(f's_mul_i32 s{dstr}, s{src_}, {m}')
            e(f's_lshr_b32 s{dstr}, s{dstr}, {sh}')
            return
    assert 0
def pack(order): return sum(s << (4*i) for i, s in enumerate(order))
orders = [[int(ch) for ch in o] for o in ORDER.split('_')]
for g, o in enumerate(orders): assert sorted(o) == list(range(9)), o
assert len(orders) == 3
FIRST_IS_G = all(o[0] == g for g, o in enumerate(orders))
FIRST_IS_0 = all(o[0] == 0 for o in orders)
assert FIRST_IS_G or FIRST_IS_0

e(f's_load_dwordx2 s[{sW}:{sW+1}], s[0:1], 8')
e(f's_load_dwordx2 s[{sX}:{sX+1}], s[0:1], 0')
if PF == 'front': e('s_load_dwordx8 s[8:15], s[0:1], 16')
if STAMP:
    stamp(0)
    e(f's_memtime s[{sStamp+24}:{sStamp+25}]')
e(f's_lshr_b32 s{sT1}, s2, 3')
if 'nocpf' not in opt:
    e('s_getpc_b64 s[30:31]')
    e('L_pc:')
    e('v_and_b32 v2, 0x180, v0')
    e(f'v_lshl_add_u32 v2, s{sT1}, 9, v2')
    e('v_min_u32 v2, L_end-L_pc, v2')
    e('global_load_dword v255, v2, s[30:31]')
e('v_readfirstlane_b32 s3, v0')
e(f's_and_b32 s{sT0}, s2, 7')
if MAP == 'p3':
    NWG = 240
    e(f's_mul_i32 s{sT2}, s{sT0}, 27')
    e(f's_mul_i32 s{sT3}, s{sT0}, 3')
    e(f's_addk_i32 s{sT3}, {216-27}')
    e(f's_cmp_ge_u32 s{sT1}, 27')
    e(f's_cselect_b32 s{sT2}, s{sT3}, s{sT2}')
    e(f's_add_u32 s{sT2}, s{sT2}, s{sT1}')
    e(f's_cmp_ge_u32 s{sT1}, 30')
    e(f's_cselect_b32 s{sT2}, -1, s{sT2}')
    e(f's_cmpk_ge_u32 s{sT2}, 234')
    e('s_cbranch_scc1 L_end')
    div_small(sQ, sT2, 9, 233)
    e(f's_mul_i32 s{sT0}, s{sQ}, 9')
    e(f's_sub_u32 s{sCt}, s{sT2}, s{sT0}')
    e(f's_mul_i32 s{sB0}, s{sQ}, 40')
    e(f's_mov_b32 s{sNv}, {X_BYTES}')
elif MAP == 'p5':
    NWG = 256
    nL, nR = (int(v) for v in opt.get('n', '39,37').split(','))
    nBL = -(-(1024 - 24*nL) // 3); nBR = -(-(1024 - 24*nR) // 4)
    assert max(nL, nR, nBL, nBR) <= 40
    def P(M, ncol, c0, n, lim):
        assert all((j*M) >> 8 == j // ncol for j in range(lim))
        return M | ncol << 8 | c0 << 12 | n << 16 | lim << 24
    e(f's_mul_i32 s{sB0}, s{sT0}, {6*nL}')
    e(f's_mul_i32 s{sT2}, s{sT0}, {8*nR}')
    e(f's_sub_u32 s{sT2}, s{sT2}, {32*nR}')
    e(f's_cmp_lt_u32 s{sT0}, 4')
    e(f's_cselect_b32 s{sB0}, s{sB0}, s{sT2}')
    e(f's_mov_b32 s{sT2}, {P(64, 4, 5, nR, 32)}')
    e(f's_cselect_b32 s{sT2}, {P(52, 5, 0, nL, 30)}, s{sT2}')
    e(f's_cmp_lg_u32 s{sT0}, 7')
    e('s_cbranch_scc1 L_mp')
    e(f's_sub_u32 s{sT3}, s{sT1}, 15')
    e(f's_cselect_b32 s{sT1}, s{sT1}, s{sT3}')
    e(f's_cselect_b32 s{sB0}, {24*nL}, s{sB0}')
    e(f's_mov_b32 s{sT2}, {P(64, 4, 5, nBR, 16)}')
    e(f's_cselect_b32 s{sT2}, {P(52, 5, 0, nBL, 15)}, s{sT2}')
    e('L_mp:')
    e(f's_lshr_b32 s{sT0}, s{sT2}, 24')
    e(f's_cmp_ge_u32 s{sT1}, s{sT0}')
    e('s_cbranch_scc1 L_end')
    e(f's_and_b32 s{sQ}, s{sT2}, 0xff')
    e(f's_mul_i32 s{sQ}, s{sQ}, s{sT1}')
    e(f's_lshr_b32 s{sQ}, s{sQ}, 8')
    e(f's_bfe_u32 s{sT0}, s{sT2}, 0x40008')
    e(f's_mul_i32 s{sT0}, s{sT0}, s{sQ}')
    e(f's_sub_u32 s{sCt}, s{sT1}, s{sT0}')
    e(f's_bfe_u32 s{sT0}, s{sT2}, 0x4000c')
    e(f's_add_u32 s{sCt}, s{sCt}, s{sT0}')
    e(f's_bfe_u32 s{sT3}, s{sT2}, 0x80010')
    e(f's_mul_i32 s{sT0}, s{sQ}, s{sT3}')
    e(f's_add_u32 s{sB0}, s{sB0}, s{sT0}')
    e(f's_add_u32 s{sNv}, s{sB0}, s{sT3}')
    e(f's_min_u32 s{sNv}, s{sNv}, 0x400')
    e(f's_mulk_i32 s{sNv}, 4608')
else:
    NWG = 256
    def P(M, ncol, lim, c0):
        assert all((j*M) >> 8 == j // ncol for j in range(lim))
        return M | ncol << 8 | lim << 16 | c0 << 24
    e(f's_mul_i32 s{sB0}, s{sT0}, 60')
    e(f's_mul_i32 s{sT2}, s{sT0}, 80')
    e(f's_sub_u32 s{sT2}, s{sT2}, 320')
    e(f's_cmp_lt_u32 s{sT0}, 4')
    e(f's_cselect_b32 s{sB0}, s{sB0}, s{sT2}')
    e(f's_mov_b32 s{sT2}, {P(64, 4, 32, 5)}')
    e(f's_cselect_b32 s{sT2}, {P(52, 5, 30, 0)}, s{sT2}')
    e(f's_cmp_eq_u32 s{sT0}, 7')
    BR = int(opt.get('br', 2))
    e(f's_cselect_b32 s{sT2}, {P(29, 9, 9*BR, 0)}, s{sT2}')
    e(f's_cselect_b32 s{sT3}, {int(opt.get("bn", -(-64//BR)))}, 40')
    e(f's_bfe_u32 s{sT0}, s{sT2}, 0x80010')
    e(f's_cmp_ge_u32 s{sT1}, s{sT0}')
    e('s_cbranch_scc1 L_help' if 'help' in opt else 's_cbranch_scc1 L_end')
    e(f's_and_b32 s{sQ}, s{sT2}, 0xff')
    e(f's_mul_i32 s{sQ}, s{sQ}, s{sT1}')
    e(f's_lshr_b32 s{sQ}, s{sQ}, 8')
    e(f's_bfe_u32 s{sT0}, s{sT2}, 0x80008')
    e(f's_mul_i32 s{sT0}, s{sT0}, s{sQ}')
    e(f's_sub_u32 s{sCt}, s{sT1}, s{sT0}')
    e(f's_lshr_b32 s{sT2}, s{sT2}, 24')
    e(f's_add_u32 s{sCt}, s{sCt}, s{sT2}')
    e(f's_mul_i32 s{sT0}, s{sQ}, s{sT3}')
    e(f's_lshl2_add_u32 s{sB0}, s{sB0}, s{sT0}')
    e(f's_add_u32 s{sNv}, s{sB0}, s{sT3}')
    e(f's_min_u32 s{sNv}, s{sNv}, 0x400')
    e(f's_mulk_i32 s{sNv}, 4608')
if FLIP:
    e(f's_lshr_b32 s{sF}, 0x38, s{sQ}')
    e(f's_and_b32 s{sF}, s{sF}, 1')
e(f's_lshr_b32 s{sWave}, s3, 6')
e('v_and_b32 v1, 63, v0')
e(f's_cmp_ge_u32 s{sWave}, 4')
e('s_cbranch_scc1 L_consumer')

vX = [10, 11, 12, 13, 14]
vW = [15, 16, 17]
vOOB = 18
vP = 20
e(f's_add_u32 s{sG}, s{sQ}, s{sCt}')
div_small(sT1, sG, 3, 40)
e('v_lshrrev_b32 v2, 3, v1')
e(f's_mul_i32 s{sT1}, s{sT1}, 3')
e('v_and_b32 v3, 7, v1')
e(f's_sub_u32 s{sG}, s{sG}, s{sT1}')
sG0 = sG
if CLS:
    e(f's_and_b32 s{sC}, s2, 7')
    e(f's_cmp_eq_u32 s{sC}, 7')
    e(f's_cselect_b32 s{sC}, 31, 0x1e0')
    e(f's_lshr_b32 s{sC}, s{sC}, s{sCt}')
    e(f's_and_b32 s{sC}, s{sC}, 1')
    if PERM[0]:
        sG0 = sOrd
        e(f's_mul_i32 s{sG0}, s{sC}, {3*PERM[0]}')
        if FIRST_IS_G: e(f's_add_u32 s{sG0}, s{sG0}, s{sG}')
        FIRST_IS_G = True
e('v_and_b32 v9, 2, v2')
e(f's_and_b32 s{sT2}, s{sWave}, 1')
e('v_mul_u32_u24 v8, 1152, v2')
e(f's_lshl_b32 s{sT3}, s{sT2}, 2')
e('v_xor_b32 v9, v9, v3')
e(f's_mul_i32 s{sT0}, s{sWave}, 72')
e(f'v_xor_b32 v9, s{sT3}, v9')
e(f's_add_u32 s{sT0}, s{sT0}, s{sCt}')
e('v_lshl_add_u32 v9, v9, 4, v8')
e(f's_lshl_b32 s{sT0}, s{sT0}, 7')
e(f's_mov_b32 s{sW+2}, {W_BYTES}')
e(f'v_add_u32 v{vW[0]}, s{sT0}, v9')
e(f's_mov_b32 s{sW+3}, 0x20000')
e(f'v_add_u32 v{vW[1]}, {TAP-1024}, v{vW[0]}')
if FIRST_IS_G:
    if FLIP:
        e(f's_lshl1_add_u32 s{sK}, s{sG0}, s{sF}')
        e(f's_mul_i32 s{sK}, s{sK}, {32*ROW}')
    else:
        e(f's_mul_i32 s{sK}, s{sG0}, {64*ROW}')
else:
    e(f's_mul_i32 s{sK}, s{sF}, {32*ROW}' if FLIP else f's_mov_b32 s{sK}, 0')
e(f'v_add_u32 v{vW[2]}, {2*TAP-2048}, v{vW[0]}')
e(f's_mul_i32 s{sWl}, s{sWave}, 6144')
e('v_lshrrev_b32 v4, 4, v1')
e(f's_add_u32 s{sWl}, s{sWl}, {WBASE}')
e('v_xor_b32 v5, v3, v4')
e(f's_mov_b32 m0, s{sWl}')
e('v_lshlrev_b32 v5, 4, v5')
e(f's_mov_b32 s{sX+3}, s{sW+3}')
e('v_lshl_add_u32 v6, v8, 2, v5')
LST_OFF = False
def lstamp(lane_expr):
    if str(opt.get('lamp')) == str(lane_expr): e('s_memrealtime s[70:71]')
    if LST and not (LST_OFF and lane_expr != 30):
        e('s_memrealtime s[92:93]')
        e('s_waitcnt lgkmcnt(0)')
        e(f's_mov_b32 s95, {lane_expr}')
        e('v_mov_b32 v31, s92')
        e('v_cmp_eq_u32 vcc, s95, v1')
        e('s_nop 1')
        e('v_cndmask_b32 v30, v30, v31, vcc')
def dw(tap): e(f'buffer_load_dwordx4 v{vW[tap]}, s[{sW}:{sW+3}], s{sK} offen' + (f' offset:{tap*1024}' if tap else '') + ' lds')
def dx(i): e(f'buffer_load_dwordx4 v{vX[i]}, s[{sX}:{sX+3}], s{sT0} offen' + (f' offset:{i*1024}' if 0 < i < 4 else '') + f'{XNT} lds')
def ld_flag():
    e(f's_mov_b32 m0, s{sFl}')
    e('s_mov_b64 exec, 1')
    e(f'buffer_load_dword v{vOOB}, s[{sW}:{sW+3}], 0 offen lds')
    e('s_mov_b64 exec, -1')
    e(f's_add_u32 s{sFl}, s{sFl}, 16')
e('s_waitcnt lgkmcnt(0)')
if LST:
    e(f'v_mov_b32 v30, s{sStamp}')
lstamp(2)
def par_load(lab):
    e(f's_cmp_lg_u32 s{sWave}, 3')
    e(f's_cbranch_scc1 {lab}')
    e(f's_lshl_b32 s{sT1}, s{sCt}, 7')
    e(f'v_lshl_add_u32 v{vP+4}, v1, 1, s{sT1}')
    if PF != 'front': e('s_waitcnt lgkmcnt(0)')
    for p in range(4):
        e(f'global_load_ushort v{vP+p}, v{vP+4}, s[{8+2*p}:{9+2*p}]')
    e(f'{lab}:')
if PF == 'front': par_load('L_lnop')
dw(0)
e(f's_lshl2_add_u32 s{sT1}, s{sB0}, s{sWave}')
e(f's_mulk_i32 s{sT1}, 1152')
if not NF0: e(f's_lshl_b32 s{sFl}, s{sWave}, 2')
dw(1)
e(f'v_add_u32 v{vX[0]}, s{sT1}, v6')
e(f's_mul_i32 s{sXl}, s{sWave}, 5120')
e(f'v_xor_b32 v{vX[1]}, 64, v{vX[0]}')
e(f's_lshl_b32 s{sT0}, s{sG0}, 7' if FIRST_IS_G else f's_mov_b32 s{sT0}, 0')
dw(2)
e(f's_mov_b32 m0, s{sXl}')
e(f'v_add_u32 v{vX[1]}, {8*4608-1024}, v{vX[1]}')
dx(0)
e(f'v_add_u32 v{vX[2]}, {20*4608-2048}, v{vX[0]}')
e(f's_lshr_b32 s{sT1}, s{sWave}, 1')
if not NF0: e(f's_add_u32 s{sFl}, s{sFl}, {FLAGL}')
dx(1)
e(f'v_add_u32 v{vX[3]}, {20*4608-2048}, v{vX[1]}')
e(f's_mul_i32 s{sT1}, s{sT1}, 10')
e(f's_add_u32 s{sT1}, s{sT1}, s{sT2}')
if not NF0: e(f'v_lshl_add_u32 v2, v1, 4, s{sFl}')
if not NF0: e(f'v_bfrev_b32 v{vOOB}, 2')
dx(2)
if not NF0: e(f'ds_write_b32 v2, v{vOOB}')
e(f's_lshl1_add_u32 s{sT1}, s{sT1}, s{sB0}')
e(f's_add_u32 s{sT1}, s{sT1}, 16')
e(f's_mulk_i32 s{sT1}, 4608')
e(f's_lshl_b32 s{sT3}, s{sT2}, 6')
dx(3)
e(f'v_xor_b32 v9, s{sT3}, v5')
e(f's_add_u32 m0, s{sXl}, 4096')
e(f'v_add3_u32 v{vX[4]}, v9, v8, s{sT1}')
dx(4)
if not NF0:
    e('s_waitcnt lgkmcnt(0)')
    ld_flag()
lstamp(4)
if FLIP:
    e(f's_mul_i32 s{sKf}, s{sF}, {32*ROW}')
    e(f's_lshl_b32 s{sKd}, s{sKf}, 1')
    e(f's_sub_u32 s{sKd}, {32*ROW}, s{sKd}')
KD = f's{sKd}' if FLIP else f'{32*ROW}'
e(f's_add_u32 m0, s{sWl}, 3072')
e(f's_add_u32 s{sK}, s{sK}, {KD}')
dw(0); dw(1); dw(2)
if not NF0: ld_flag()
if PF != 'front': e('s_load_dwordx8 s[8:15], s[0:1], 16')
lstamp(6)
if 'l0' in opt:
    for i, vm in enumerate((13, 12, 10, 8, 5, 1)):
        e(f's_waitcnt vmcnt({vm})')
        lstamp(8 + 2*i)
    LST_OFF = True
if not NF0: e('s_barrier')
if 'sched' not in opt:
    allo = list(orders)
    if CLS:
        allo += [[3*PERM[s//3] + s % 3 for s in o] for o in orders]
        e(f's_mul_i32 s{sC}, s{sC}, 3')
        e(f's_add_u32 s{sG}, s{sG}, s{sC}')
    ps = [pack(o[1:]) for o in allo]
    e(f's_mov_b32 s{sOrd}, {ps[0]}')
    for g in range(1, len(allo)):
        e(f's_cmp_eq_u32 s{sG}, {g}')
        e(f's_cselect_b32 s{sOrd}, {ps[g]}, s{sOrd}')
if 'sb' in opt: e('s_barrier')
if PF == 'mid': par_load('L_lnop')
if 'sched' not in opt:
    e(f's_mov_b32 s{sIt}, 1')
    e(f's_mov_b32 s{sSl}, 0')
def advance():
    e(f's_add_u32 s{sSl}, s{sSl}, 1')
    e(f's_cmp_eq_u32 s{sSl}, 3')
    e(f's_cselect_b32 s{sSl}, 0, s{sSl}')
    e(f's_mov_b32 s{sDX}, {XSLOT}')
    e(f's_cselect_b32 s{sDX}, {(-2*XSLOT) & 0xffffffff}, s{sDX}')
    e(f's_mov_b32 s{sDW}, {WSLOT}')
    e(f's_cselect_b32 s{sDW}, {(-2*WSLOT) & 0xffffffff}, s{sDW}')
    e(f's_add_u32 s{sXl}, s{sXl}, s{sDX}')
    e(f's_add_u32 s{sWl}, s{sWl}, s{sDW}')
    e(f's_and_b32 s{sK}, s{sOrd}, 15')
    e(f's_lshl_b32 s{sT0}, s{sK}, 7')
    e(f's_mul_i32 s{sK}, s{sK}, {64*ROW}')
    if FLIP: e(f's_add_u32 s{sK}, s{sK}, s{sKf}')
    e(f's_lshr_b32 s{sOrd}, s{sOrd}, 4')
def issue_x():
    e(f's_mov_b32 m0, s{sXl}')
    e('s_nop 0')
    for i in range(4): dx(i)
    e(f's_add_u32 m0, s{sXl}, 4096')
    e('s_nop 0')
    dx(4)
def issue_w(ks):
    if ks:
        e(f's_add_u32 m0, s{sWl}, 3072')
        e(f's_add_u32 s{sK}, s{sK}, {KD}')
    else:
        e(f's_mov_b32 m0, s{sWl}')
        e('s_nop 0')
    for tap in range(3): dw(tap)
e('L_lloop:')
advance()
e(f's_mov_b32 m0, s{sXl}')
E0 = int(opt.get('e0', 0))
if E0 < 6:
    e(f's_cmp_lt_u32 s{sIt}, {3 + E0}')
    e('s_cbranch_scc1 L_lfree')
    e('s_waitcnt vmcnt(11)')
    e('s_barrier')
    e('L_lfree:')
else:
    e('s_nop 0')
for i in range(4): dx(i)
e(f's_add_u32 m0, s{sXl}, 4096')
e(f's_add_u32 s{sIt}, s{sIt}, 1')
dx(4)
issue_w(0)
e(f's_cmp_gt_u32 s{sIt}, {2 + E0}')
e('s_cbranch_scc1 L_lnb')
e('s_waitcnt vmcnt(8)')
e('s_barrier')
e('L_lnb:')
issue_w(1)
e(f's_cmp_lt_u32 s{sIt}, 9')
e('s_cbranch_scc1 L_lloop')
def par_compute():
    for p in range(4):
        e(f'v_lshlrev_b32 v{vP+p}, 16, v{vP+p}')
    e(f'v_add_f32 v{vP+1}, 0x3727c5ac, v{vP+1}')
    e(f'v_rsq_f32 v{vP+1}, v{vP+1}')
    e(f'v_mul_f32 v{vP+2}, 0xbfb8aa3b, v{vP+2}')
    e(f'v_mul_f32 v{vP+3}, 0xbfb8aa3b, v{vP+3}')
    e(f'v_mul_f32 v{vP+2}, v{vP+1}, v{vP+2}')
    e(f'v_fma_f32 v{vP+3}, -v{vP}, v{vP+2}, v{vP+3}')
    e('v_lshlrev_b32 v2, 2, v1')
    e(f'v_add_u32 v2, {PARM}, v2')
def par_write():
    e(f'ds_write_b32 v2, v{vP+2}')
    e(f'ds_write_b32 v2, v{vP+3} offset:256')
e('s_waitcnt vmcnt(11)')
e('s_barrier')
e(f's_cmp_lg_u32 s{sWave}, 3')
e('s_cbranch_scc1 L_lfin')
par_compute()
e('s_waitcnt vmcnt(0)')
par_write()
e('L_lfin:')
e('s_waitcnt vmcnt(0) lgkmcnt(0)')
e('s_barrier')
if 'lamp' in opt:
    e('s_waitcnt lgkmcnt(0)')
    e(f's_sub_u32 s3, s70, s{sStamp}')
    e('s_mul_i32 s3, s3, 100')
    e(f's_add_u32 s3, s3, s{sStamp}')
    e('s_add_u32 s3, s3, 2000')
    e('L_lamp:')
    e('s_memrealtime s[4:5]')
    e('s_waitcnt lgkmcnt(0)')
    e('s_sub_u32 s6, s4, s3')
    e('s_cmp_lt_i32 s6, 0')
    e('s_cbranch_scc1 L_lamp')
if LST:
    lstamp(30)
    e('s_load_dwordx2 s[50:51], s[0:1], 64')
    e(f's_lshl_b32 s3, s2, 3')
    e(f's_add_u32 s3, s3, s{sWave}')
    e(f's_mul_i32 s3, s3, {NST*8}')
    e('v_lshl_add_u32 v0, v1, 2, s3')
    e('v_and_b32 v2, 1, v1')
    e('v_cmp_eq_u32 vcc, 0, v2')
    e('s_nop 1')
    e('v_cndmask_b32 v30, 0, v30, vcc')
    e('s_waitcnt lgkmcnt(0)')
    e('s_mov_b64 exec, 0xffffffff')
    e('global_store_dword v0, v30, s[50:51]')
e('s_endpgm')

if 'help' in opt:
    HS = [int(c) for c in str(opt['help'])]
    e('L_help:')
    e(f's_cmp_ge_u32 s{sT1}, 32')
    e('s_cbranch_scc1 L_end')
    e(f's_sub_u32 s{sT1}, s{sT1}, s{sT0}')
    e(f's_and_b32 s{sT0}, s2, 7')
    e(f's_min_u32 s{sT0}, s{sT0}, 4')
    e(f's_lshl1_add_u32 s{sT1}, s{sT0}, s{sT1}')
    e(f's_lshr_b32 s{sWave}, s3, 6')
    e(f's_lshl3_add_u32 s{sT1}, s{sT1}, s{sWave}')
    e('v_and_b32 v1, 63, v0')
    e(f's_mov_b32 s{sX+2}, {X_BYTES}')
    e(f's_mov_b32 s{sX+3}, 0x20000')
    e(f's_movk_i32 s{sK}, 128')
    e(f'v_lshl_add_u32 v2, s{sT1}, 6, v1')
    e('v_mul_u32_u24 v2, 1152, v2')
    e(f's_cmp_lt_u32 s{sT1}, 64')
    e('s_waitcnt lgkmcnt(0)')
    e('s_cbranch_scc1 L_hgo')
    e(f's_sub_u32 s{sT1}, s{sT1}, 64')
    div_small(sT0, sT1, 9, 40)
    e(f's_mul_i32 s{sT2}, s{sT0}, {TAP//128 - 576}')
    e(f's_lshl_b32 s{sT1}, s{sT1}, 6')
    e(f's_add_u32 s{sT1}, s{sT1}, s{sT2}')
    e(f'v_add_u32 v2, s{sT1}, v1')
    e('v_lshlrev_b32 v2, 7, v2')
    e(f's_mov_b32 s{sX}, s{sW}')
    e(f's_mov_b32 s{sX+1}, s{sW+1}')
    e(f's_mov_b32 s{sX+2}, {W_BYTES}')
    e(f's_mov_b32 s{sK}, {64*ROW}')
    e('L_hgo:')
    for i, st in enumerate(HS):
        e(f's_mul_i32 s{sT0}, s{sK}, {st}')
        e(f'buffer_load_dword v{4+i}, v2, s[{sX}:{sX+3}], s{sT0} offen')
        if i + 1 < len(HS): e('s_barrier')
    e('s_waitcnt vmcnt(0)')
    e('s_endpgm')

e('L_consumer:')
e('s_load_dwordx2 s[28:29], s[0:1], 48')
if STAMP: e('s_load_dwordx2 s[50:51], s[0:1], 64')
e('s_setprio 3')
vXa = [2, 3]; vXm = [[4, 5], [252, 253], [6, 7]]
vWa = [8, 9]
vOut = 10; vOutM = 11
vPar = 12
ACC = 16
WB = [56, 104]; XB = 152
SC2 = 212; SH2 = 220
T = 228; P = 236; Qs = [240, 244]
cFl, cPoll, cSw, cSr = 248, 249, 250, 251
def acc(tile, t): return ACC + (tile*2 + t)*4
def fx(h, i): return XB + (h*7 + i)*4
def fw(buf, h, k, t): return WB[buf] + ((h*3 + k)*2 + t)*4
A0, A1, A2 = T, T+1, T+2
e('v_and_b32 v13, 15, v1')
e('v_lshrrev_b32 v14, 4, v1')
for r in range(4):
    e(f'v_mov_b32 v{ACC+r}, 0')
e('v_min_u32 v15, 2, v14')
e(f'v_mul_u32_u24 v15, {XSLOT}, v15')
e('v_lshl_add_u32 v15, v13, 4, v15')
e(f'ds_write_b128 v15, v[{ACC}:{ACC+3}] offset:{XBASE+20480}')
e(f's_sub_u32 s{sWave}, s{sWave}, 4')
e(f's_lshr_b32 s{sT0}, s{sWave}, 1')
e(f's_and_b32 s{sT1}, s{sWave}, 1')
if not NF0:
    e('v_and_b32 v15, 3, v1')
    e('v_lshlrev_b32 v15, 2, v15')
    e(f'v_add_u32 v{cFl}, {FLAGL}, v15')
GX = 14
if FLIP:
    GX = A2 + 1
    e(f's_lshl_b32 s{sIt}, s{sF}, 2')
    e(f'v_xor_b32 v{GX}, s{sIt}, v14')
e(f's_lshl_b32 s{sT3}, s{sT0}, 11')
e('v_lshrrev_b32 v15, 1, v13')
e(f'v_xor_b32 v15, v15, v{GX}')
e('v_lshlrev_b32 v15, 4, v15')
e('v_lshl_add_u32 v15, v13, 7, v15')
e(f'v_add_u32 v{vXa[0]}, s{sT3}, v15')
e(f'v_xor_b32 v{vXa[1]}, 64, v{vXa[0]}')
e(f's_mul_i32 s{sIt}, s{sT0}, 10240')
e(f's_add_u32 s{sIt}, s{sIt}, 4096')
e(f'v_lshrrev_b32 v{A2}, 3, v13')
e(f'v_lshl_add_u32 v{A2}, v{A2}, 12, s{sIt}')
e(f'v_add_u32 v{vXm[1][0]}, v{A2}, v15')
e(f'v_xor_b32 v{vXm[1][1]}, 64, v{vXm[1][0]}')
for k in (0, 2):
    regs = vXm[k]
    e(f'v_add_u32 v15, {1 if k==2 else 3}, v13')
    e(f'v_bfi_b32 v15, 3, v15, v13')
    e(f'v_lshrrev_b32 v{A0}, 1, v15')
    e(f'v_xor_b32 v{A0}, v{A0}, v{GX}')
    e(f'v_lshlrev_b32 v{A0}, 4, v{A0}')
    e(f'v_lshl_add_u32 v{A0}, v15, 7, v{A0}')
    e(f'v_add_u32 v{A1}, v{A2}, v{A0}')
    e(f'v_and_b32 v{A0}, 0xff, v{A0}')
    e('v_and_b32 v15, 3, v13')
    e(f'v_cmp_eq_u32 vcc, {0 if k==0 else 3}, v15')
    e(f'v_add_u32 v{A0}, {XBASE+20480}, v{A0}')
    e('s_nop 0')
    e(f'v_cndmask_b32 v{regs[0]}, v{A1}, v{A0}, vcc')
    e(f'v_xor_b32 v{regs[1]}, 64, v{regs[0]}')
e('v_lshrrev_b32 v15, 2, v13')
e(f'v_mul_u32_u24 v{A0}, 6144, v14')
e(f'v_lshl_add_u32 v{A0}, v15, 7, v{A0}')
e('v_lshrrev_b32 v15, 1, v15')
e(f'v_and_b32 v{A1}, 1, v14')
e(f'v_lshl_add_u32 v15, v{A1}, 1, v15')
e(f's_lshl_b32 s{sIt}, s{sT1}, 1')
e(f'v_xor_b32 v15, s{sIt}, v15')
e(f'v_lshl_add_u32 v{A0}, v15, 5, v{A0}')
e('v_and_b32 v15, 3, v13')
e(f'v_lshl_add_u32 v{A0}, v15, 3, v{A0}')
e(f'v_add_u32 v{vWa[0]}, {WBASE}, v{A0}')
e(f'v_xor_b32 v{vWa[1]}, 32, v{vWa[0]}')
assert WBASE % 256 == 0
if not NF0:
    e('s_waitcnt lgkmcnt(0)')
    e('s_barrier')
sNL = 46
deferred = [
 f's_mov_b32 s{sOut+2}, s{sNv}', f's_mov_b32 s{sOut+3}, 0x20000',
 f's_lshl_b32 s{sIt}, s{sT1}, 7', f's_add_u32 s{sIt}, s{sIt}, {PARM}',
 f'v_lshl_add_u32 v{vPar}, v14, 4, s{sIt}',
 f's_lshl_b32 s{sIt}, s{sWave}, 10', f's_add_u32 s{sIt}, s{sIt}, {STG}',
 *(['v_lshrrev_b32 v15, 1, v14', f'v_bfe_u32 v{A0}, v13, 1, 2', f'v_xor_b32 v15, v15, v{A0}', 'v_lshlrev_b32 v15, 4, v15', 'v_lshl_add_u32 v15, v13, 6, v15',
    f'v_and_b32 v{A0}, 1, v14', f'v_lshl_add_u32 v15, v{A0}, 3, v15', f'v_add_u32 v{cSw}, s{sIt}, v15', f'v_xor_b32 v254, 32, v{cSw}'] if B64 else
   ['v_and_b32 v15, 1, v14', 'v_lshlrev_b32 v15, 1, v15', f'v_lshrrev_b32 v{A0}, 1, v14', f'v_or_b32 v15, v15, v{A0}',
    f'v_bfe_u32 v{A0}, v13, 1, 2', f'v_xor_b32 v15, v15, v{A0}', 'v_lshlrev_b32 v15, 4, v15', 'v_lshl_add_u32 v15, v13, 6, v15',
    f'v_add_u32 v{cSw}, s{sIt}, v15']), f'v_lshl_add_u32 v{cSr}, v1, 4, s{sIt}',
 f's_lshl_b32 s{sT2}, s{sCt}, 7', f's_lshl_b32 s{sT3}, s{sT1}, 6', f's_add_u32 s{sT2}, s{sT2}, s{sT3}',
 f's_mul_i32 s{sIt}, s{sT0}, 20', f's_add_u32 s{sIt}, s{sIt}, s{sB0}', f's_mulk_i32 s{sIt}, 4608', f's_add_u32 s{sIt}, s{sIt}, s{sT2}',
 'v_bfe_u32 v15, v1, 3, 2', f'v_and_b32 v{A0}, 3, v1', f'v_xor_b32 v15, v15, v{A0}', f'v_lshl_add_u32 v15, v15, 4, s{sIt}',
 f'v_lshrrev_b32 v{A0}, 2, v1', f'v_mul_u32_u24 v{vOutM}, 1152, v{A0}', f'v_lshl_add_u32 v{vOut}, v{vOutM}, 2, v15',
 f'v_add_u32 v{vOutM}, v{vOutM}, v15', f'v_add_u32 v{vOutM}, {16*4608}, v{vOutM}',
 f's_mov_b32 s{sNL}, 0xbfb8aa3b', f's_mov_b32 s{sNL+1}, 0xbfb8aa3b']

cSw1 = 254
if FULL:
    deferred = [
     f's_mov_b32 s{sOut+2}, s{sNv}', f's_mov_b32 s{sOut+3}, 0x20000',
     f's_lshl_b32 s{sIt}, s{sT1}, 7', f's_add_u32 s{sIt}, s{sIt}, {PARM}',
     f'v_lshl_add_u32 v{vPar}, v14, 4, s{sIt}',
     f's_lshl_b32 s{sIt}, s{sT0}, 11', f's_add_u32 s{sIt}, s{sIt}, {STG}', f's_lshl_b32 s{sT2}, s{sT1}, 2',
     'v_lshrrev_b32 v15, 1, v14', f'v_or_b32 v15, s{sT2}, v15', f'v_and_b32 v{A0}, 7, v13', f'v_xor_b32 v15, v15, v{A0}',
     'v_lshlrev_b32 v15, 4, v15', 'v_lshl_add_u32 v15, v13, 7, v15', f'v_and_b32 v{A0}, 1, v14', f'v_lshl_add_u32 v15, v{A0}, 3, v15',
     f'v_add_u32 v{cSw}, s{sIt}, v15', f'v_xor_b32 v{cSw1}, 32, v{cSw}',
     f's_lshl_b32 s{sT2}, s{sT1}, 10', f's_add_u32 s{sIt}, s{sIt}, s{sT2}', f'v_lshl_add_u32 v{cSr}, v1, 4, s{sIt}',
     f's_lshl_b32 s{sT2}, s{sCt}, 7',
     f's_mul_i32 s{sIt}, s{sT0}, 20', f's_add_u32 s{sIt}, s{sIt}, s{sB0}', f's_mulk_i32 s{sIt}, 4608', f's_add_u32 s{sIt}, s{sIt}, s{sT2}',
     f'v_lshrrev_b32 v{A0}, 3, v1', 'v_and_b32 v15, 7, v1', f'v_xor_b32 v15, v15, v{A0}', f'v_lshl_add_u32 v15, v15, 4, s{sIt}',
     f's_lshl_b32 s{sT2}, s{sT1}, 3', f'v_add_u32 v{A0}, s{sT2}, v{A0}',
     f'v_mul_u32_u24 v{vOutM}, 1152, v{A0}', f'v_lshl_add_u32 v{vOut}, v{vOutM}, 2, v15',
     f'v_add_u32 v{vOutM}, v{vOutM}, v15', f'v_add_u32 v{vOutM}, {16*4608}, v{vOutM}',
     f's_mov_b32 s{sNL}, 0xbfb8aa3b', f's_mov_b32 s{sNL+1}, 0xbfb8aa3b']
    assert STG % 256 == 0

def rx(n, h, i):
    xo = XBASE + (n % 3)*XSLOT
    d = fx(h, i)
    if i < 4: return (f'ds_read_b128 v[{d}:{d+3}], v{vXa[h]} offset:{xo + i*5120}', d)
    return (f'ds_read_b128 v[{d}:{d+3}], v{vXm[i-4][h]} offset:{xo}', d)
def rw(n, h, k, t):
    d = fw(n & 1, h, k, t)
    off = (n % 3)*WSLOT + (h*3+k)*1024
    return [(f'ds_read_b64_tr_b16 v[{d+2*hp}:{d+2*hp+1}], v{vWa[t]} offset:{off + hp*512}', d) for hp in range(2)]
touched = set()
def tile_mfmas(n, tile):
    r = []
    for t in range(2):
        for h in range(2):
            for k in range(3):
                i = tile + k - 1 if tile < 4 else 4 + k
                if tile < 4 and not 0 <= i <= 3: continue
                r.append((acc(tile, t), fw(n & 1, h, k, t), fx(h, i)))
    return r
lds_q = []
mf_count = 0
AGE = int(opt.get('age', 6))
def lds(op):
    e(op[0]); lds_q.append((op[1], mf_count))
def wait_for(regs):
    idx = max((i for i, (d, _) in enumerate(lds_q) if d in regs), default=-1)
    if idx < 0: return False
    while idx + 1 < len(lds_q) and mf_count - lds_q[idx+1][1] >= AGE: idx += 1
    n = min(len(lds_q) - 1 - idx, 14)
    e(f's_waitcnt lgkmcnt({n})')
    del lds_q[:len(lds_q) - n]
    return True
def wait_all():
    e('s_waitcnt lgkmcnt(0)'); lds_q.clear()
def mfma(m):
    global mf_count
    a, A, B = m
    w = wait_for({A, B})
    c = f'v[{a}:{a+3}]' if a in touched else '0'
    touched.add(a)
    e(f'v_mfma_f32_16x16x32_bf16 v[{a}:{a+3}], v[{A}:{A+3}], v[{B}:{B+3}], {c}')
    mf_count += 1
    return w
def w_order(n):
    return [rw(n, h, k, t) for (t, h, k) in [(0,0,1),(0,0,2),(0,1,1),(0,1,2),(1,0,1),(1,0,2),(1,1,1),(1,1,2),(0,0,0),(0,1,0),(1,0,0),(1,1,0)]]
spin_sites = []
if STAMP:
    e(f's_mov_b32 s{sStamp+16}, 0')
    e(f's_mov_b32 s{sStamp+17}, 0')
if 'sb' in opt: e('s_barrier')
NPAD = 0 if 'nopad' in opt else int(opt.get('npad', 2))
if NPAD:
    e('s_mov_b64 exec, 0')
    for p in range(NPAD):
        e(f's_branch L_pad{p}')
        e(f'L_ret{p}:')
    e('s_mov_b64 exec, -1')
stamp(1)
e('L_cpoll0:')
e('s_waitcnt lgkmcnt(0)')
e('s_barrier')
stamp(2)
cstamp(5)
par = [(f'ds_read_b128 v[{SC2}:{SC2+3}], v{vPar}', SC2), (f'ds_read_b128 v[{SC2+4}:{SC2+7}], v{vPar} offset:64', SC2),
       (f'ds_read_b128 v[{SH2}:{SH2+3}], v{vPar} offset:256', SC2), (f'ds_read_b128 v[{SH2+4}:{SH2+7}], v{vPar} offset:320', SC2)]
TO = [int(c) for c in opt.get('to', '03124')]
seq = [(n, m) for n in range(7) for tl in range(5) for m in tile_mfmas(n, tl)]
seq += [(7, m) for tl in range(4) for m in tile_mfmas(7, tl)]
head_end = len(seq) + 8
P47 = int(opt.get('p47', 0))
blocks = [(8, tl) for tl in TO[1:]]
blocks.insert(P47, (7, 4))
seq += [(8, m) for m in tile_mfmas(8, 0)] + [(s, m) for s, tl in blocks for m in tile_mfmas(s, tl)]
def stage_reads(n):
    ops = [x for h in range(2) for k in range(3) for t in range(2) for x in rw(n, h, k, t)] + [rx(n, h, i) for h in range(2) for i in range(7)]
    res = []
    for op in ops:
        need = min(i for i, (s, m) in enumerate(seq) if s == n and op[1] in m[1:])
        prev = [i for i, (s, m) in enumerate(seq) if s < n and op[1] in m[1:]]
        res.append([need, (max(prev) + 1) if prev else -1, op])
    if n == 8: res += [[head_end + 2, -1, p] for p in par]
    res.sort(key=lambda r: r[0])
    return res
LEAD = int(opt.get('lead', 7))
Q = stage_reads(0)
def issue_reads(now, extra_deadline=None):
    cnt = 0
    while cnt < 2:
        el = [r for r in Q if r[1] <= now]
        if not el: break
        if cnt == 1:
            dl = lambda r: min(r[0] - LEAD, extra_deadline) if extra_deadline is not None else r[0] - LEAD
            if all(dl(r) - now > j for j, r in enumerate(Q)): break
        r = el[0]; Q.remove(r); lds(r[2]); cnt += 1
    return cnt > 0
for _ in range(int(opt.get('ni', 16))): lds(Q.pop(0)[2])
BG = [int(v) for v in opt.get('bg', '28,24,24,24,24,24,24,18').split(',')]
nb = 0
for i in range(head_end):
    if i == head_end - 8:
        stamp(3); cstamp(6)
    assert seq[i][0] <= nb and all(r[0] > i for r in Q), i
    mfma(seq[i][1])
    bat = 52*nb + BG[nb] if nb < 8 else None
    if bat is not None and i >= bat and not Q:
        wait_all(); e('s_barrier')
        if 'pst2' in opt and nb < 7:
            r = f's[{84+2*nb}:{85+2*nb}]' if nb < 6 else 's[4:5]'
            e('s_bitcmp1_b32 s3, 6'); e(f's_cbranch_scc1 L_c{nb}'); e(f's_memrealtime {r}'); e(f's_branch L_cc{nb}'); e(f'L_c{nb}:'); e(f's_memtime {r}'); e(f'L_cc{nb}:')
        elif 'pst' in opt and nb < 7: e(f's_memrealtime s[{84+2*nb}:{85+2*nb}]' if nb < 6 else 's_memrealtime s[4:5]')
        nb += 1; Q = stage_reads(nb)
    elif issue_reads(i, None if bat is None else bat - 4): pass
    elif deferred: e(deferred.pop(0))
assert nb == 8 and not deferred
rest = [m for _, m in seq[head_end:]]
base = 12
done_at = {}
cnt = 0
for s, tl in blocks:
    cnt += len(tile_mfmas(s, tl))
    if s == 8: done_at[tl] = cnt
emitted = 0
since = {0: 0}
def em(m):
    global emitted
    assert all(r[0] > head_end + emitted for r in Q)
    mfma(m); emitted += 1
    issue_reads(head_end + emitted - 1)
    for k in since: since[k] += 1
    for tl, at in done_at.items():
        if at == emitted: since[tl] = 0
def ev(x):
    if x == 's_waitcnt lgkmcnt(0)': wait_all()
    elif x.startswith('ds_'): lds((x, None))
    else: e(x)
    for k in since: since[k] += 1
def need(tl):
    while tl not in since: em(rest.pop(0))
    if tl == 0 and PK < 2:
        while since[0] < 3: em(rest.pop(0))
        assert all(r[2][1] != SC2 for r in Q)
        if not wait_for({SC2}): e('s_nop 0')
        return
    while since[tl] < (6 if tl == 0 else 8):
        if rest: em(rest.pop(0))
        else:
            e(f's_nop {8 - since[tl] - 1}'); since[tl] = 8
    if tl == 0: wait_for({SC2})
def cost(ins):
    if 'exp' in ins or 'rcp' in ins: return 8
    if 'v_pk' in ins or 'v_fma' in ins: return 5
    return 4
def tile_ops(tile, Q):
    a0 = acc(tile, 0)
    def two(pkf, sf):
        return [('pk', pkf(i), [sf(i), sf(i+1)]) for i in range(0, 8, 2)]
    ops = []
    ops += two(lambda i: f'v_pk_fma_f32 v[{a0+i}:{a0+i+1}], v[{a0+i}:{a0+i+1}], v[{SC2+i}:{SC2+i+1}], v[{SH2+i}:{SH2+i+1}]',
               lambda i: f'v_fma_f32 v{a0+i}, v{a0+i}, v{SC2+i}, v{SH2+i}')
    ops += [('s', f'v_exp_f32 v{T+i}, v{a0+i}') for i in range(8)]
    ops += two(lambda i: f'v_pk_fma_f32 v[{T+i}:{T+i+1}], v[{T+i}:{T+i+1}], s[{sNL}:{sNL+1}], s[{sNL}:{sNL+1}]',
               lambda i: f'v_fma_f32 v{T+i}, v{T+i}, s{sNL}, s{sNL}')
    ops += [('s', f'v_rcp_f32 v{T+i}, v{T+i}') for i in range(8)]
    ops += two(lambda i: f'v_pk_mul_f32 v[{a0+i}:{a0+i+1}], v[{a0+i}:{a0+i+1}], v[{T+i}:{T+i+1}]',
               lambda i: f'v_mul_f32 v{a0+i}, v{a0+i}, v{T+i}')
    ops += [('s', f'v_cvt_pk_bf16_f32 v{P+i//2}, v{a0+i}, v{a0+i+1}') for i in range(0, 8, 2)]
    if B64:
        cv = ops[-4:]
        ops = ops[:-4] + [cv[0], cv[1], cv[2], ('s', f'ds_write_b64 v{cSw}, v[{P}:{P+1}]'), cv[3],
                          ('s', f'ds_write_b64 v{cSw1}, v[{P+2}:{P+3}]'), ('s', f'ds_read_b128 v[{Q}:{Q+3}], v{cSr}')]
    elif FULL:
        cv = ops[-4:]
        ops = ops[:-4] + [cv[0], cv[1], cv[2], ('s', f'ds_write_b64 v{cSw}, v[{P}:{P+1}] offset:{tile*4096}'), cv[3],
                          ('s', f'ds_write_b64 v{cSw1}, v[{P+2}:{P+3}] offset:{tile*4096}')]
    else:
        ops += [('s', 's_nop 1'), ('s', f'v_permlane16_swap_b32 v{P}, v{P+2}'), ('s', f'v_permlane16_swap_b32 v{P+1}, v{P+3}'),
                ('s', f'ds_write_b128 v{cSw}, v[{P}:{P+3}]'), ('s', f'ds_read_b128 v[{Q}:{Q+3}], v{cSr}')]
    return ops
def tile_store(tile, Q):
    if tile < 4:
        return f'buffer_store_dwordx4 v[{Q}:{Q+3}], v{vOut}, s[{sOut}:{sOut+3}], 0 offen offset:{tile*1152} {STF}'
    return f'buffer_store_dwordx4 v[{Q}:{Q+3}], v{vOutM}, s[{sOut}:{sOut+3}], 0 offen {STL}'
pend = None
budget = 0
GAPV = int(opt.get('gapv', 8))
for n, tl in enumerate(TO):
    QR = Qs[n % 2]
    need(tl)
    if 't2st' in opt: e(f's_memtime s[{84+2*n}:{85+2*n}]')
    for i, op in enumerate(tile_ops(tl, QR)):
        if op[0] == 'pk':
            ins = [op[1]] if (PK >= 2 or (PK == 1 and not rest)) else op[2]
        else:
            ins = [op[1]]
        for x in ins:
            ev(x); budget += cost(x)
            if rest and ((PK < 3 and budget >= GAPV) or (PK == 3 and cost(x) == 8) or (PK == 4 and 'v_pk' not in x and budget >= GAPV)):
                em(rest.pop(0)); budget = 0
            if PK == 4 and 'v_pk' in x: budget = 0
        if FULL:
            if pend is not None and i == 8:
                ev('s_waitcnt lgkmcnt(0)'); ev('s_barrier')
                ev(f'ds_read_b128 v[{pend[1]}:{pend[1]+3}], v{cSr} offset:{pend[0]*4096}')
            if pend is not None and i == 20:
                ev('s_waitcnt lgkmcnt(0)')
                ev(tile_store(*pend)); pend = None
        elif pend is not None and i == int(opt.get('stp', 12)):
            ev('s_waitcnt lgkmcnt(0)')
            ev(tile_store(*pend)); pend = None
    pend = (tl, QR)
if 't2st' in opt: e('s_memtime s[94:95]')
if FULL:
    e('s_waitcnt lgkmcnt(0)'); e('s_barrier')
    e(f'ds_read_b128 v[{pend[1]}:{pend[1]+3}], v{cSr} offset:{pend[0]*4096}')
e('s_waitcnt lgkmcnt(0)')
e(tile_store(*pend))
stamp(4)
cstamp(7)
if 'pst' in opt or 't2st' in opt:
    e('s_waitcnt lgkmcnt(0)')
    if 't2st' in opt: e(f's_mov_b32 s4, s{sStamp+14}')
    e(f's_mov_b32 s{sStamp+18}, s84'); e(f's_mov_b32 s{sStamp+19}, s86')
    e(f's_mov_b32 s{sStamp+20}, s88'); e(f's_mov_b32 s{sStamp+21}, s90')
    e(f's_mov_b32 s{sStamp+22}, s92'); e(f's_mov_b32 s{sStamp+23}, s94')
    e(f's_mov_b32 s{sStamp+28}, s4'); e(f's_mov_b32 s{sStamp+29}, s4')
stamp_flush([0,1,2,3,4,5,6,7,8] + ([9,10,11,14] if ('pst' in opt or 't2st' in opt) else []))
e('s_endpgm')
for name, fidx in spin_sites:
    e(f'L_cspin{name}:')
    if STAMP: e(f's_add_u32 s{sStamp+16}, s{sStamp+16}, 1')
    e(poll(fidx))
    e('s_waitcnt lgkmcnt(0)')
    e(f'v_cmp_ne_u32 vcc, 0, v{cPoll}')
    e(f's_cbranch_vccnz L_cspin{name}')
    e(f's_branch L_cback{name}')
e('L_end:')
e('s_endpgm')

def render(lines):
    body = '\n'.join(lines)
    return HEADER + f'''; Override launch geometry by editing the next line (default: block=256,
; grid=ceil(out_elems/256), lds=0). Harness parses it; keep it on one line.
; @launch grid=({NWG},1,1) block=(512,1,1) lds={LDS_BYTES}
.amdgcn_target "amdgcn-amd-amdhsa--gfx950"
.text
.globl standalone__batchnorm__sampling_kernel
{'' if 'noal' in opt else '.p2align 12'}
.p2align 8
.type standalone__batchnorm__sampling_kernel,@function
standalone__batchnorm__sampling_kernel:
{body}
.section .rodata,"a"
.p2align 6
.amdhsa_kernel standalone__batchnorm__sampling_kernel
  .amdhsa_next_free_vgpr 256
  .amdhsa_next_free_sgpr 96
  .amdhsa_accum_offset 256
  .amdhsa_group_segment_fixed_size 0
  .amdhsa_kernarg_size 72
  .amdhsa_user_sgpr_count 2
  .amdhsa_user_sgpr_kernarg_segment_ptr 1
  .amdhsa_system_sgpr_workgroup_id_x 1
.end_amdhsa_kernel
'''
import subprocess, re, os
def offsets(lines):
    open('_g.s', 'w').write(render(lines))
    subprocess.run(['clang', '-x', 'assembler', '-target', 'amdgcn-amd-amdhsa', '-mcpu=gfx950', '-c', '_g.s', '-o', '_g.o'], check=True)
    d = subprocess.run(['llvm-objdump', '-d', '--mcpu=gfx950', '_g.o'], capture_output=True, text=True).stdout
    offs = [int(m.group(1), 16) for m in re.finditer(r'// ([0-9A-F]{12}):', d)]
    idx = [i for i, l in enumerate(lines) if l.startswith('    ')]
    assert len(offs) == len(idx), (len(offs), len(idx))
    return dict(zip(idx, offs))
if NPAD:
    KSTART = 0x300
    lines = out
    i0 = lines.index('L_cpoll0:')
    for p in range(NPAD):
        tmp = lines + [f'L_pad{q}:' for q in range(p, NPAD)] + ['    s_endpgm']
        offs = offsets(tmp)
        first = (offs[i0+1] + KSTART) // 4096
        bnd = 4096*(first + p + 1) - KSTART
        i = min(i for i, o in offs.items() if o >= bnd)
        lines = lines[:i] + [f'L_pad{p}:', f'    s_cbranch_execz L_ret{p}'] + lines[i:]
    out = lines
open(dst, 'w').write(render(out))
```
